```python
import torch

def _softmax(x, axis=-1):
    return torch.softmax(x, dim=axis)
def _gelu(x):
    return torch.nn.functional.gelu(x, approximate="tanh")
def _silu(x):
    return torch.nn.functional.silu(x)
def _sigmoid(x):
    return torch.sigmoid(x)
def _layernorm(x, axis=-1, eps=1e-5):
    m = x.mean(dim=axis, keepdim=True)
    v = x.var(dim=axis, keepdim=True, unbiased=False)
    return (x - m) / torch.sqrt(v + eps)
def _scatter_add(tgt, idx, src, axis=0):
    return tgt.clone().index_add_(axis, idx, src)
def _segment_sum(src, seg, n):
    out = torch.zeros((n,) + src.shape[1:], dtype=src.dtype)
    return out.index_add_(0, seg, src)
def _pad(x, pw):
    flat = tuple(v for pair in reversed(pw) for v in pair)
    return torch.nn.functional.pad(x, flat)

kernel_name = 'concat_heads__gqa_block_cached__gqa_block_cached__near_ridge'

def setup_inputs():

    _w = (lambda a: (lambda t: t.to(torch.bfloat16) if t.is_floating_point() else t)(torch.as_tensor(a)))
    def _A_setup():
        B, Sq, D = 8, 160, 512
        Hq, Hkv, Sk, Dh = 32, 32, 512, 128
        assert Hq % Hkv == 0, (Hq, Hkv)
        return {
            "x": _w((lambda *s: torch.randn(*s, dtype=torch.bfloat16) * 0.8)(B, Sq, D)),
            "k_cache": _w((lambda *s: torch.randn(*s, dtype=torch.bfloat16) * 0.8)(B, Hkv, Sk, Dh)),
            "v_cache": _w((lambda *s: torch.randn(*s, dtype=torch.bfloat16) * 0.05)(B, Hkv, Sk, Dh)),
            "wq": _w((lambda *s: torch.randn(*s, dtype=torch.bfloat16) * 0.8)(D, Hq * Dh) * (D ** -0.5)),
            "wo": _w((lambda *s: torch.randn(*s, dtype=torch.bfloat16) * 0.05)(Hq * Dh, D) * ((Hq * Dh) ** -0.5)),
        }
    _A_in = _A_setup()

    def _B_setup():
        B, Sq, D = 8, 160, 512
        Hq, Hkv, Sk, Dh = 32, 32, 512, 128
        assert Hq % Hkv == 0, (Hq, Hkv)
        return {
            "x": _w((lambda *s: torch.randn(*s, dtype=torch.bfloat16) * 0.8)(B, Sq, D)),
            "k_cache": _w((lambda *s: torch.randn(*s, dtype=torch.bfloat16) * 0.8)(B, Hkv, Sk, Dh)),
            "v_cache": _w((lambda *s: torch.randn(*s, dtype=torch.bfloat16) * 0.05)(B, Hkv, Sk, Dh)),
            "wq": _w((lambda *s: torch.randn(*s, dtype=torch.bfloat16) * 0.8)(D, Hq * Dh) * (D ** -0.5)),
            "wo": _w((lambda *s: torch.randn(*s, dtype=torch.bfloat16) * 0.05)(Hq * Dh, D) * ((Hq * Dh) ** -0.5)),
        }
    _B_in = _B_setup()

    return {
        "A_x": _A_in["x"],
        "A_k_cache": _A_in["k_cache"],
        "A_v_cache": _A_in["v_cache"],
        "A_wq": _A_in["wq"],
        "A_wo": _A_in["wo"],
        "B_x": _B_in["x"],
        "B_k_cache": _B_in["k_cache"],
        "B_v_cache": _B_in["v_cache"],
        "B_wq": _B_in["wq"],
        "B_wo": _B_in["wo"],
    }

def reference(A_x, A_k_cache, A_v_cache, A_wq, A_wo, B_x, B_k_cache, B_v_cache, B_wq, B_wo):
    def _A_ref(x, k_cache, v_cache, wq, wo):
        B, Sq, D = x.shape
        Hq, Dh = 32, 128
        Hkv = k_cache.shape[1]
        rep = Hq // Hkv
        q = (lambda x, *d: x.permute(*d))((x @ wq).reshape(B, Sq, Hq, Dh), 0, 2, 1, 3)
        k = (lambda x, n, axis: torch.repeat_interleave(x, n, dim=axis))(k_cache, rep, axis=1)
        v = (lambda x, n, axis: torch.repeat_interleave(x, n, dim=axis))(v_cache, rep, axis=1)
        scores = torch.einsum("bhqd,bhkd->bhqk", q, k) * (Dh ** -0.5)
        p = _softmax(scores, axis=-1)
        o = torch.einsum("bhqk,bhkd->bhqd", p, v)
        return (lambda x, *d: x.permute(*d))(o, 0, 2, 1, 3).reshape(B, Sq, Hq * Dh) @ wo

    def _B_ref(x, k_cache, v_cache, wq, wo):
        B, Sq, D = x.shape
        Hq, Dh = 32, 128
        Hkv = k_cache.shape[1]
        rep = Hq // Hkv
        q = (lambda x, *d: x.permute(*d))((x @ wq).reshape(B, Sq, Hq, Dh), 0, 2, 1, 3)
        k = (lambda x, n, axis: torch.repeat_interleave(x, n, dim=axis))(k_cache, rep, axis=1)
        v = (lambda x, n, axis: torch.repeat_interleave(x, n, dim=axis))(v_cache, rep, axis=1)
        scores = torch.einsum("bhqd,bhkd->bhqk", q, k) * (Dh ** -0.5)
        p = _softmax(scores, axis=-1)
        o = torch.einsum("bhqk,bhkd->bhqd", p, v)
        return (lambda x, *d: x.permute(*d))(o, 0, 2, 1, 3).reshape(B, Sq, Hq * Dh) @ wo

    a = _A_ref(A_x, A_k_cache, A_v_cache, A_wq, A_wo)
    b = _B_ref(B_x, B_k_cache, B_v_cache, B_wq, B_wo)
    return torch.concatenate([a, b], axis=-1)
```

```python
class Asm:
    def __init__(self):
        self.L = []
        self.lg = []
    def e(self, s):
        for ln in s.strip("\n").split("\n"):
            ln = ln.rstrip()
            if ln.strip():
                self.L.append("  " + ln.strip())
    def lab(self, n):
        self.L.append(n + ":")
    def c(self, s):
        self.L.append("  ; " + s)
    def raw(self, s):
        self.L.append(s)
    def ds(self, instr, tag):
        assert len(self.lg) < 15, "too many outstanding LDS ops"
        self.e(instr); self.lg.append(tag)
    def need(self, *tags):
        idx = -1
        for i, t in enumerate(self.lg):
            if t in tags: idx = i
        if idx < 0: return
        n = len(self.lg) - 1 - idx
        self.e(f"s_waitcnt lgkmcnt({n})")
        self.lg = self.lg[idx+1:]
    def drain(self):
        if self.lg:
            self.e("s_waitcnt lgkmcnt(0)")
        self.lg = []
    def nop(self, n):
        while n > 0:
            k = min(n, 16)
            self.e(f"s_nop {k-1}")
            n -= k
    def text(self):
        return "\n".join(self.L) + "\n"

def v(a, n=1):
    return f"v{a}" if n == 1 else f"v[{a}:{a+n-1}]"
def s(a, n=1):
    return f"s{a}" if n == 1 else f"s[{a}:{a+n-1}]"

def kdesc(name, vgpr, sgpr=102, accum=None):
    if accum is None: accum = min(256, (vgpr + 3)//4*4)
    return f""".section .rodata,"a"
.p2align 6
.amdhsa_kernel {name}
  .amdhsa_next_free_vgpr {vgpr}
  .amdhsa_next_free_sgpr {sgpr}
  .amdhsa_accum_offset {accum}
  .amdhsa_group_segment_fixed_size 0
  .amdhsa_kernarg_size 104
  .amdhsa_user_sgpr_count 2
  .amdhsa_user_sgpr_kernarg_segment_ptr 1
  .amdhsa_system_sgpr_workgroup_id_x 1
  .amdhsa_float_denorm_mode_32 3
.end_amdhsa_kernel
.text
"""
```

```python
import sys, math
from dsl import *

NAME = "concat_heads__gqa_block_cached__gqa_block_cached__near_ridge"
PROF = False
QSCALE = math.log2(math.e) / math.sqrt(128.0)
import struct
def f2u(x): return struct.unpack("<I", struct.pack("<f", x))[0]

WS_O = 0
WS_P = 32 << 20
WS_T = 128 << 20

def srd(a, sd, sbase, size, off_s=None):
    if off_s is None:
        a.e(f"s_mov_b32 s{sd}, s{sbase}")
        a.e(f"s_mov_b32 s{sd+1}, s{sbase+1}")
    else:
        a.e(f"s_add_u32 s{sd}, s{sbase}, s{off_s}")
        a.e(f"s_addc_u32 s{sd+1}, s{sbase+1}, 0")
    a.e(f"s_mov_b32 s{sd+2}, {size}")
    a.e(f"s_mov_b32 s{sd+3}, 0x00020000")

def stamp(a, idx, sWS=None):
    pass

def gen_k1(name):
    a = Asm()
    sX, sWQ, sK, sV, sO = 8, 12, 16, 20, 24
    sW, sHS, sQB, sL = 28, 29, 30, 31
    sL1024 = 32
    sReg, sRegD = 33, 34
    sT0, sT1, sT2, sT3 = 35, 36, 37, 38
    sCnt = 39
    sRole = 40
    sTile = 41
    sXo, sWo = 42, 43
    sH0 = 44
    sBeta, sB = 45, 46
    sPtr = 48
    sWS = 56
    vO, vQ, vS, vNM, vF = 0, 64, 96, 112, 128
    vA = 144
    vA0K, vA0V, vL0, vL1, vMX, vMX2 = 148, 149, 150, 151, 152, 153
    vT0, vT1 = 154, 155
    vDK, vDV, vDX, vDW, vXB, vOst = 156, 157, 158, 159, 160, 161
    vLane = 162
    NV = 168
    R = 32768

    a.raw(f".globl {name}\n.p2align 8\n.type {name},@function\n{name}:")
    a.e("s_cmp_ge_u32 s2, 256")
    a.e(f"s_cbranch_scc1 {name}_end")
    a.e(f"s_load_dwordx2 s[{sWS}:{sWS+1}], s[0:1], 96")
    a.e(f"s_and_b32 s{sT0}, s2, 7")
    a.e(f"s_lshr_b32 s{sT1}, s2, 3")
    a.e(f"s_lshr_b32 s{sBeta}, s{sT0}, 2")
    a.e(f"s_and_b32 s{sT0}, s{sT0}, 3")
    a.e(f"s_lshr_b32 s{sB}, s{sT1}, 2")
    a.e(f"s_and_b32 s{sT1}, s{sT1}, 3")
    a.e(f"s_lshl_b32 s{sT0}, s{sT0}, 2")
    a.e(f"s_add_u32 s{sH0}, s{sT0}, s{sT1}")
    a.e(f"s_lshl_b32 s{sH0}, s{sH0}, 1")
    a.e(f"s_mul_i32 s{sT2}, s{sBeta}, 40")
    a.e(f"s_add_u32 s0, s0, s{sT2}")
    a.e(f"s_addc_u32 s1, s1, 0")
    a.e(f"s_load_dwordx8 s[{sPtr}:{sPtr+7}], s[0:1], 0")
    a.e(f"v_lshrrev_b32 v1, 6, v0")
    a.e(f"v_and_b32 v{vLane}, 63, v0")
    a.e(f"v_readfirstlane_b32 s{sW}, v1")
    a.e(f"s_and_b32 s{sHS}, s{sW}, 1")
    a.e(f"s_lshr_b32 s{sQB}, s{sW}, 1")
    a.e(f"s_lshr_b32 s{sT0}, s{sW}, 2")
    a.e(f"s_lshl_b32 s{sT0}, s{sT0}, 1")
    a.e(f"s_or_b32 s{sL}, s{sT0}, s{sHS}")
    a.e(f"s_lshl_b32 s{sL1024}, s{sL}, 10")
    a.e(f"s_and_b32 s{sT0}, s{sW}, 2")
    a.e(f"s_cmp_eq_u32 s{sT0}, 0")
    a.e(f"s_cselect_b32 s{sRole}, 2, 1")
    a.e(f"s_cmp_ge_u32 s{sW}, 8")
    a.e(f"s_cselect_b32 s{sRole}, 0, s{sRole}")
    L = vLane
    a.e(f"""
    v_lshrrev_b32 v1, 5, v{L}            ; h
    v_bfe_u32 v2, v{L}, 2, 2             ; r
    v_lshl_add_u32 v3, v1, 3, v2         ; 8h+r
    v_lshlrev_b32 v3, 8, v3
    v_lshl_add_u32 v3, v2, 6, v3         ; + r*64
    v_bfe_u32 v4, v{L}, 4, 1
    v_lshl_add_u32 v3, v4, 5, v3         ; + g*32
    v_and_b32 v4, 1, v{L}
    v_lshl_add_u32 v3, v4, 4, v3         ; + c0*16
    v_bfe_u32 v4, v{L}, 1, 1
    v_lshl_add_u32 v3, v4, 3, v3         ; + c1*8
    s_lshl_b32 s{sT0}, s{sHS}, 13
    s_add_u32 s{sT1}, s{sT0}, 16384
    v_add_u32 v{vA0V}, s{sT1}, v3
    """)
    a.e(f"""
    v_and_b32 v2, 0x13, v{L}
    v_and_b32 v3, 4, v{L}
    v_lshl_or_b32 v2, v3, 1, v2
    v_and_b32 v3, 8, v{L}
    v_lshrrev_b32 v3, 1, v3
    v_or_b32 v2, v2, v3                  ; rho
    v_bfe_u32 v3, v2, 1, 3
    v_xor_b32 v3, v3, v1
    v_lshlrev_b32 v3, 4, v3
    v_lshl_add_u32 v3, v2, 7, v3
    v_add_u32 v{vA0K}, s{sT0}, v3
    """)
    a.e(f"""
    v_and_b32 v2, 31, v{L}
    v_bfe_u32 v3, v{L}, 2, 2
    v_xor_b32 v3, v3, v1
    v_lshlrev_b32 v3, 4, v3
    v_lshl_add_u32 v3, v2, 6, v3
    s_lshl_b32 s{sT0}, s{sQB}, 11
    v_add_u32 v{vXB}, s{sT0}, v3
    """)
    a.e(f"""
    v_lshrrev_b32 v2, 3, v{L}            ; i>>3
    s_lshl_b32 s{sT0}, s{sL}, 3
    v_add_u32 v2, s{sT0}, v2             ; row = 8l + (i>>3)
    v_bfe_u32 v3, v2, 1, 3
    v_and_b32 v4, 7, v{L}
    v_xor_b32 v3, v3, v4
    v_lshlrev_b32 v3, 4, v3
    v_lshl_add_u32 v{vDK}, v2, 8, v3
    v_lshrrev_b32 v2, 4, v{L}            ; i>>4
    v_lshlrev_b32 v3, 2, v2
    v_and_b32 v4, 15, v{L}
    v_xor_b32 v3, v3, v4
    v_lshlrev_b32 v3, 4, v3
    v_lshl_add_u32 v{vDV}, v2, 8, v3     ; V: (i>>4)*256 + swz*16
    v_lshl_add_u32 v{vDW}, v2, 13, v3
    v_and_b32 v2, 3, v2                  ; (i>>4)&3
    v_and_b32 v4, 3, v{L}
    v_xor_b32 v2, v2, v4
    v_lshlrev_b32 v2, 4, v2
    v_lshrrev_b32 v3, 2, v{L}
    v_lshl_add_u32 v{vDX}, v3, 10, v2    ; x: (i>>2)*1024 + swz*16
    v_lshlrev_b32 v{vOst}, 4, v{L}
    """)
    a.e("s_waitcnt lgkmcnt(0)")
    a.e(f"s_mul_i32 s{sT0}, s{sB}, 163840")
    srd(a, sX, sPtr+0, 163840, sT0)
    a.e(f"s_lshl_b32 s{sT0}, s{sB}, 5")
    a.e(f"s_add_u32 s{sT0}, s{sT0}, s{sH0}")
    a.e(f"s_lshl_b32 s{sT0}, s{sT0}, 17")
    srd(a, sK, sPtr+2, 262144, sT0)
    srd(a, sV, sPtr+4, 262144, sT0)
    a.e(f"s_lshl_b32 s{sT0}, s{sH0}, 8")
    srd(a, sWQ, sPtr+6, 0, sT0)
    a.e(f"s_sub_u32 s{sWQ+2}, 4194304, s{sT0}")
    a.e(f"s_lshl_b32 s{sT0}, s{sBeta}, 3")
    a.e(f"s_add_u32 s{sT0}, s{sT0}, s{sB}")
    a.e(f"s_mul_i32 s{sT0}, s{sT0}, 1310720")
    srd(a, sO, sWS, 1310720, sT0)

    def dma(voff, sr, m0base, m0imm, sbase, simm, nt):
        a.e(f"s_add_u32 m0, s{m0base}, {m0imm}")
        a.e(f"s_add_u32 s{sT3}, s{sbase}, {simm}")
        a.e(f"buffer_load_dwordx4 v{voff}, s[{sr}:{sr+3}], s{sT3} offen {'nt ' if nt else ''}lds")

    def issue_kv():
        a.e(f"s_add_u32 s{sT0}, s{sRegD}, s{sL1024}")
        a.e(f"s_add_u32 s{sT1}, s{sTile}, s{sL1024}")
        for hs2 in (0, 1):
            for half in (0, 1):
                dma(vDK, sK, sT0, hs2*8192 + half*4096, sTile, hs2*131072 + half*128, True)
        for hs2 in (0, 1):
            for nn in (0, 4):
                dma(vDV, sV, sT0, 16384 + hs2*8192 + nn*1024, sT1, hs2*131072 + nn*1024, True)

    def issue_q(tag):
        a.e(f"s_add_u32 s{sT0}, s{sRegD}, s{sL1024}")
        dma(vDX, sX, sT0, 0, sXo, 0, False)
        dma(vDX, sX, sT0, 4096, sXo, 65536, False)
        for hs2 in (0, 1):
            for nn in (0, 4):
                dma(vDW, sWQ, sT0, 10240 + hs2*8192 + nn*1024, sWo, nn*32768 + hs2*256, False)
        a.e(f"s_cmp_ge_u32 s{sL}, 2")
        a.e(f"s_cbranch_scc1 {name}_xs_{tag}")
        dma(vDX, sX, sT0, 8192, sXo, 131072, False)
        a.lab(f"{name}_xs_{tag}")
        a.e(f"s_add_u32 s{sXo}, s{sXo}, 64")
        a.e(f"s_add_u32 s{sWo}, s{sWo}, 262144")

    def qreg(sigma): return (2 + (sigma + 2) % 3) * R

    a.e(f"s_lshl_b32 s{sXo}, s{sL}, 14")
    a.e(f"s_lshl_b32 s{sWo}, s{sL}, 15")
    a.e(f"s_cmp_eq_u32 s{sRole}, 1")
    a.e(f"s_cbranch_scc0 {name}_p1")
    a.e(f"s_mov_b32 s{sRegD}, {qreg(0)}")
    issue_q("p0")
    a.e(f"s_mov_b32 s{sRegD}, {qreg(1)}")
    issue_q("p1")
    a.e(f"s_branch {name}_p2")
    a.lab(f"{name}_p1")
    a.e(f"s_cmp_eq_u32 s{sRole}, 2")
    a.e(f"s_cbranch_scc0 {name}_p2")
    a.e(f"s_mov_b32 s{sRegD}, 0")
    a.e(f"s_mov_b32 s{sTile}, 0")
    issue_kv()
    a.e(f"s_mov_b32 s{sRegD}, {R}")
    a.e(f"s_mov_b32 s{sTile}, 8192")
    issue_kv()
    a.lab(f"{name}_p2")

    vB0, vB1, vAF = 96, 100, 104
    def q_compute(first):
        a.e(f"s_sub_u32 s{sT0}, s{sReg}, 6144")
        a.e(f"v_add_u32 v{vA}, s{sT0}, v{vA0V}")
        a.e(f"v_add_u32 v{vT0}, s{sReg}, v{vXB}")
        a.e(f"v_xor_b32 v{vA+1}, 64, v{vA}")
        a.e(f"v_xor_b32 v{vA+2}, 128, v{vA}")
        a.e(f"v_xor_b32 v{vA+3}, 192, v{vA}")
        a.e(f"v_xor_b32 v{vT1}, 32, v{vT0}")
        def rdA(sx, t):
            d = vAF + (sx*4 + t)*4
            a.ds(f"ds_read_b64_tr_b16 v[{d}:{d+1}], v{vA+t} offset:{sx*4096}", ("A", sx, t, 0))
            a.ds(f"ds_read_b64_tr_b16 v[{d+2}:{d+3}], v{vA+t} offset:{sx*4096+1024}", ("A", sx, t, 1))
        a.ds(f"ds_read_b128 v[{vB0}:{vB0+3}], v{vT0}", ("B", 0))
        for t in range(4): rdA(0, t)
        a.ds(f"ds_read_b128 v[{vB1}:{vB1+3}], v{vT1}", ("B", 1))
        rdA(1, 0); rdA(1, 1)
        return rdA
    def q_mfmas(rdA, first):
        pend = [(1, 2), (1, 3)]
        for sx in range(2):
            for t in range(4):
                a.need(("B", sx), ("A", sx, t, 0), ("A", sx, t, 1))
                d = vAF + (sx*4 + t)*4
                b = vB0 if sx == 0 else vB1
                cop = "0" if (first and sx == 0) else f"v[{vO+16*t}:{vO+16*t+15}]"
                a.e(f"v_mfma_f32_32x32x16_bf16 v[{vO+16*t}:{vO+16*t+15}], v[{d}:{d+3}], v[{b}:{b+3}], {cop}")
                if pend: rdA(*pend.pop(0))
        a.drain()

    def q_stage(tag, first, wait_n, issue):
        a.e(f"s_cmp_eq_u32 s{sRole}, 1")
        a.e(f"s_cbranch_scc0 {name}_qw_{tag}")
        a.e(f"s_waitcnt vmcnt({wait_n})")
        a.lab(f"{name}_qw_{tag}")
        a.e("s_barrier")
        rdA = q_compute(first)
        a.e(f"s_cmp_eq_u32 s{sRole}, 1")
        a.e(f"s_cbranch_scc0 {name}_qi_{tag}")
        issue()
        a.lab(f"{name}_qi_{tag}")
        q_mfmas(rdA, first)

    a.e(f"s_mov_b32 s{sReg}, {qreg(0)}")
    a.e(f"s_mov_b32 s{sRegD}, {qreg(2)}")
    q_stage("s0", True, 6, lambda: issue_q("s0"))
    a.e(f"s_mov_b32 s{sCnt}, 1")
    a.lab(f"{name}_qloop")
    for sr in (sReg, sRegD):
        a.e(f"s_add_u32 s{sr}, s{sr}, {R}")
        a.e(f"s_cmp_eq_u32 s{sr}, {5*R}")
        a.e(f"s_cselect_b32 s{sr}, {2*R}, s{sr}")
    q_stage("lp", False, 6, lambda: issue_q("lp"))
    a.e(f"s_add_u32 s{sCnt}, s{sCnt}, 1")
    a.e(f"s_cmp_lt_u32 s{sCnt}, 14")
    a.e(f"s_cbranch_scc1 {name}_qloop")
    a.e(f"s_mov_b32 s{sReg}, {qreg(14)}")
    a.e(f"s_mov_b32 s{sRegD}, {2*R}")
    a.e(f"s_mov_b32 s{sTile}, {2*8192}")
    q_stage("s14", False, 6, issue_kv)
    a.e(f"s_mov_b32 s{sReg}, {qreg(15)}")
    a.e(f"s_mov_b32 s{sRegD}, {3*R}")
    a.e(f"s_mov_b32 s{sTile}, {3*8192}")
    q_stage("s15", False, 8, issue_kv)
    a.nop(12)
    a.e(f"s_mov_b32 s{sT0}, {hex(f2u(QSCALE))}")
    for r in range(64):
        a.e(f"v_mul_f32 v{vO+r}, s{sT0}, v{vO+r}")
    for r in range(32):
        a.e(f"v_cvt_pk_bf16_f32 v{vQ+r}, v{vO+2*r}, v{vO+2*r+1}")

    def att_step(tag, first):
        a.e(f"s_cmp_eq_u32 s{sRole}, 2")
        a.e(f"s_cbranch_scc0 {name}_aw1_{tag}")
        a.e(f"s_waitcnt vmcnt({8 if first else 0})")
        a.e(f"s_branch {name}_aw2_{tag}")
        a.lab(f"{name}_aw1_{tag}")
        if not first:
            a.e(f"s_cmp_eq_u32 s{sRole}, 1")
            a.e(f"s_cbranch_scc0 {name}_aw2_{tag}")
            a.e(f"s_cmp_le_u32 s{sCnt}, 12")
            a.e(f"s_cbranch_scc0 {name}_aw3_{tag}")
            a.e("s_waitcnt vmcnt(24)")
            a.e(f"s_branch {name}_aw2_{tag}")
            a.lab(f"{name}_aw3_{tag}")
            a.e(f"s_cmp_eq_u32 s{sCnt}, 13")
            a.e(f"s_cbranch_scc0 {name}_aw4_{tag}")
            a.e("s_waitcnt vmcnt(16)")
            a.e(f"s_branch {name}_aw2_{tag}")
            a.lab(f"{name}_aw4_{tag}")
            a.e(f"s_cmp_eq_u32 s{sCnt}, 14")
            a.e(f"s_cbranch_scc0 {name}_aw5_{tag}")
            a.e("s_waitcnt vmcnt(8)")
            a.e(f"s_branch {name}_aw2_{tag}")
            a.lab(f"{name}_aw5_{tag}")
            a.e("s_waitcnt vmcnt(0)")
        a.lab(f"{name}_aw2_{tag}")
        a.e("s_barrier")
        a.e(f"v_add_u32 v{vA}, s{sReg}, v{vA0K}")
        a.e(f"v_xor_b32 v{vA+1}, 32, v{vA}")
        a.e(f"v_xor_b32 v{vA+2}, 64, v{vA}")
        a.e(f"v_xor_b32 v{vA+3}, 96, v{vA}")
        def rdK(j):
            f = vF + (j & 3)*4
            a.ds(f"ds_read_b128 v[{f}:{f+3}], v{vA+(j&3)} offset:{(j>>2)*4096}", ("K", j))
        for j in range(4): rdK(j)
        a.e(f"s_cmp_eq_u32 s{sRole}, 1")
        a.e(f"s_cbranch_scc0 {name}_ai_{tag}")
        if not first:
            a.e(f"s_cmp_le_u32 s{sCnt}, 11")
            a.e(f"s_cbranch_scc0 {name}_ai_{tag}")
        issue_kv()
        a.lab(f"{name}_ai_{tag}")
        for j in range(8):
            a.need(("K", j))
            f = vF + (j & 3)*4
            cop = f"v[{vS}:{vS+15}]" if j else ("0" if first else f"v[{vNM}:{vNM+15}]")
            a.e(f"v_mfma_f32_32x32x16_bf16 v[{vS}:{vS+15}], v[{f}:{f+3}], v[{vQ+4*j}:{vQ+4*j+3}], {cop}")
            if j < 4: rdK(j+4)
            if j == 3:
                pass
        a.e(f"v_add_u32 v{vA}, s{sReg}, v{vA0V}")
        a.e(f"v_xor_b32 v{vA+1}, 64, v{vA}")
        a.e(f"v_xor_b32 v{vA+2}, 128, v{vA}")
        a.e(f"v_xor_b32 v{vA+3}, 192, v{vA}")
        def rdV(sx, t):
            f = vF + t*4
            a.ds(f"ds_read_b64_tr_b16 v[{f}:{f+1}], v{vA+t} offset:{sx*4096}", ("V", sx, t, 0))
            a.ds(f"ds_read_b64_tr_b16 v[{f+2}:{f+3}], v{vA+t} offset:{sx*4096+1024}", ("V", sx, t, 1))
        for t in range(4): rdV(0, t)
        a.nop(4)
        S = lambda r: f"v{vS+r}"
        a.e(f"v_max3_f32 v{vMX}, {S(0)}, {S(1)}, {S(2)}")
        a.e(f"v_max3_f32 v{vMX2}, {S(3)}, {S(4)}, {S(5)}")
        a.e(f"v_max3_f32 v{vMX}, v{vMX}, {S(6)}, {S(7)}")
        a.e(f"v_max3_f32 v{vMX2}, v{vMX2}, {S(8)}, {S(9)}")
        a.e(f"v_max3_f32 v{vMX}, v{vMX}, {S(10)}, {S(11)}")
        a.e(f"v_max3_f32 v{vMX2}, v{vMX2}, {S(12)}, {S(13)}")
        a.e(f"v_max3_f32 v{vMX}, v{vMX}, {S(14)}, {S(15)}")
        a.e(f"v_max_f32 v{vMX}, v{vMX}, v{vMX2}")
        if first:
            a.e(f"v_mov_b32 v{vMX2}, v{vMX}")
            a.nop(2)
            a.e(f"v_permlane32_swap_b32 v{vMX}, v{vMX2}")
            a.nop(1)
            a.e(f"v_max_f32 v{vMX}, v{vMX}, v{vMX2}")
            for r in range(16):
                a.e(f"v_sub_f32 {S(r)}, {S(r)}, v{vMX}")
            for r in range(16):
                a.e(f"v_sub_f32 v{vNM+r}, 0, v{vMX}")
            a.e(f"v_mov_b32 v{vL0}, 0")
            a.e(f"v_mov_b32 v{vL1}, 0")
        else:
            a.e(f"v_cmp_lt_f32 vcc, 0x41200000, v{vMX}")
            a.e(f"s_cbranch_vccnz {name}_rare_{tag}")
            a.lab(f"{name}_back_{tag}")
        for r in range(16):
            a.e(f"v_exp_f32 {S(r)}, {S(r)}")
            if r >= 1:
                a.e(f"v_add_f32 v{vL0 + ((r-1)&1)}, v{vL0 + ((r-1)&1)}, {S(r-1)}")
        a.e(f"v_cvt_pk_bf16_f32 {S(0)}, {S(0)}, {S(1)}")
        a.e(f"v_add_f32 v{vL1}, v{vL1}, {S(15)}")
        for r in range(1, 8):
            a.e(f"v_cvt_pk_bf16_f32 {S(r)}, {S(2*r)}, {S(2*r+1)}")
        a.nop(2)
        for sx in range(2):
            for t in range(4):
                a.need(("V", sx, t, 0), ("V", sx, t, 1))
                f = vF + t*4
                cop = "0" if (first and sx == 0) else f"v[{vO+16*t}:{vO+16*t+15}]"
                a.e(f"v_mfma_f32_32x32x16_bf16 v[{vO+16*t}:{vO+16*t+15}], v[{f}:{f+3}], v[{vS+4*sx}:{vS+4*sx+3}], {cop}")
                if sx == 0: rdV(1, t)
        a.drain()

    def rare(tag):
        a.lab(f"{name}_rare_{tag}")
        a.c("raise the subtracted max to the running row max and rescale what was accumulated")
        a.e(f"v_mov_b32 v{vMX2}, v{vMX}")
        a.nop(2)
        a.e(f"v_permlane32_swap_b32 v{vMX}, v{vMX2}")
        a.nop(1)
        a.e(f"v_max_f32 v{vMX}, v{vMX}, v{vMX2}")
        a.e(f"v_max_f32 v{vMX}, 0, v{vMX}")
        a.e(f"v_sub_f32 v{vMX2}, 0, v{vMX}")
        a.e(f"v_exp_f32 v{vMX2}, v{vMX2}")
        for r in range(16):
            a.e(f"v_sub_f32 v{vS+r}, v{vS+r}, v{vMX}")
        for r in range(16):
            a.e(f"v_sub_f32 v{vNM+r}, v{vNM+r}, v{vMX}")
        for r in range(64):
            a.e(f"v_mul_f32 v{vO+r}, v{vO+r}, v{vMX2}")
        a.e(f"v_mul_f32 v{vL0}, v{vL0}, v{vMX2}")
        a.e(f"v_mul_f32 v{vL1}, v{vL1}, v{vMX2}")
        a.e(f"s_branch {name}_back_{tag}")

    a.e(f"s_mov_b32 s{sReg}, 0")
    a.e(f"s_mov_b32 s{sRegD}, {4*R}")
    a.e(f"s_mov_b32 s{sTile}, {4*8192}")
    att_step("t0", True)
    a.e(f"s_mov_b32 s{sCnt}, 1")
    a.lab(f"{name}_aloop")
    a.e(f"s_mov_b32 s{sRegD}, s{sReg}")
    a.e(f"s_add_u32 s{sReg}, s{sReg}, {R}")
    a.e(f"s_cmp_eq_u32 s{sReg}, {5*R}")
    a.e(f"s_cselect_b32 s{sReg}, 0, s{sReg}")
    a.e(f"s_add_u32 s{sTile}, s{sTile}, 8192")
    att_step("lp", False)
    a.e(f"s_add_u32 s{sCnt}, s{sCnt}, 1")
    a.e(f"s_cmp_lt_u32 s{sCnt}, 16")
    a.e(f"s_cbranch_scc1 {name}_aloop")

    a.e(f"v_add_f32 v{vL0}, v{vL0}, v{vL1}")
    a.nop(1)
    a.e(f"v_mov_b32 v{vL1}, v{vL0}")
    a.nop(2)
    a.e(f"v_permlane32_swap_b32 v{vL0}, v{vL1}")
    a.nop(1)
    a.e(f"v_add_f32 v{vL0}, v{vL0}, v{vL1}")
    a.nop(1)
    a.e(f"v_rcp_f32 v{vL0}, v{vL0}")
    a.nop(12)
    a.e(f"s_lshl_b32 s{sT0}, s{sQB}, 18")
    a.e(f"s_add_u32 s{sT1}, s{sH0}, s{sHS}")
    a.e(f"s_lshl_b32 s{sT1}, s{sT1}, 13")
    a.e(f"s_add_u32 s{sT0}, s{sT0}, s{sT1}")
    for fr in range(8):
        for r in range(8):
            a.e(f"v_mul_f32 v{vO+8*fr+r}, v{vO+8*fr+r}, v{vL0}")
        for r in range(4):
            a.e(f"v_cvt_pk_bf16_f32 v{vQ+4*fr+r}, v{vO+8*fr+2*r}, v{vO+8*fr+2*r+1}")
        a.e(f"s_add_u32 s{sT1}, s{sT0}, {fr*1024}")
        a.e(f"buffer_store_dwordx4 v[{vQ+4*fr}:{vQ+4*fr+3}], v{vOst}, s[{sO}:{sO+3}], s{sT1} offen")
    a.e("s_waitcnt vmcnt(0)")
    a.e(f"s_branch {name}_end")
    rare("lp")
    a.lab(f"{name}_end")
    a.e("s_endpgm")
    return a.text(), NV

def gen_k2(name):
    a = Asm()
    sOW, sWO, sP = 8, 12, 16
    sW, sNT, sKH = 20, 21, 22
    sReg, sRegD, sCnt = 23, 24, 25
    sT0, sT1, sT2, sT3 = 26, 27, 28, 29
    sBeta, sB, sKQ, sNQ = 30, 31, 32, 33
    sOo, sWo = 34, 35
    sWS, sPW = 36, 38
    sLdsO, sLdsW = 40, 41
    vAcc, vB, vAF, vA0, vA, vLin, vDW, vLane = 0, 80, 120, 128, 129, 130, 131, 132
    NV = 136
    ST = 36864
    a.raw(f".globl {name}\n.p2align 8\n.type {name},@function\n{name}:")
    a.e("s_cmp_ge_u32 s2, 256")
    a.e(f"s_cbranch_scc1 {name}_end")
    a.e(f"s_load_dwordx2 s[{sWS}:{sWS+1}], s[0:1], 96")
    a.e(f"s_and_b32 s{sT0}, s2, 7")
    a.e(f"s_lshr_b32 s{sT1}, s2, 3")
    a.e(f"s_lshr_b32 s{sBeta}, s{sT0}, 2")
    a.e(f"s_and_b32 s{sKQ}, s{sT0}, 3")
    a.e(f"s_lshr_b32 s{sB}, s{sT1}, 2")
    a.e(f"s_and_b32 s{sNQ}, s{sT1}, 3")
    a.e(f"s_mul_i32 s{sT2}, s{sBeta}, 40")
    a.e(f"s_add_u32 s0, s0, s{sT2}")
    a.e(f"s_addc_u32 s1, s1, 0")
    a.e(f"s_load_dwordx2 s[{sPW}:{sPW+1}], s[0:1], 32")
    a.e(f"v_lshrrev_b32 v1, 6, v0")
    a.e(f"v_and_b32 v{vLane}, 63, v0")
    a.e(f"v_readfirstlane_b32 s{sW}, v1")
    a.e(f"s_and_b32 s{sNT}, s{sW}, 3")
    a.e(f"s_lshr_b32 s{sKH}, s{sW}, 2")
    L = vLane
    a.e(f"""
    v_lshrrev_b32 v1, 5, v{L}            ; h
    v_bfe_u32 v2, v{L}, 2, 2             ; r
    v_lshl_add_u32 v3, v1, 3, v2         ; 8h+r
    v_lshlrev_b32 v3, 8, v3
    v_xor_b32 v2, s{sNT}, v2             ; r ^ nt
    v_lshl_add_u32 v3, v2, 6, v3
    v_bfe_u32 v4, v{L}, 4, 1
    v_lshl_add_u32 v3, v4, 5, v3
    v_and_b32 v4, 1, v{L}
    v_lshl_add_u32 v3, v4, 4, v3
    v_bfe_u32 v4, v{L}, 1, 1
    v_lshl_add_u32 v3, v4, 3, v3
    s_lshl_b32 s{sT0}, s{sKH}, 13
    s_add_u32 s{sT0}, s{sT0}, 20480
    v_add_u32 v{vA0}, s{sT0}, v3
    v_lshlrev_b32 v{vLin}, 4, v{L}
    v_lshrrev_b32 v2, 4, v{L}
    v_lshlrev_b32 v3, 2, v2
    v_and_b32 v4, 15, v{L}
    v_xor_b32 v3, v3, v4
    v_lshlrev_b32 v3, 4, v3
    v_lshl_add_u32 v{vDW}, v2, 10, v3
    """)
    a.e("s_waitcnt lgkmcnt(0)")
    a.e(f"s_lshl_b32 s{sT0}, s{sBeta}, 3")
    a.e(f"s_add_u32 s{sT0}, s{sT0}, s{sB}")
    a.e(f"s_mul_i32 s{sT1}, s{sT0}, 1310720")
    srd(a, sOW, sWS, 1310720, sT1)
    a.e(f"s_lshl_b32 s{sT1}, s{sKQ}, 20")
    a.e(f"s_lshl_b32 s{sT2}, s{sNQ}, 8")
    a.e(f"s_add_u32 s{sT1}, s{sT1}, s{sT2}")
    srd(a, sWO, sPW, 0, sT1)
    a.e(f"s_sub_u32 s{sWO+2}, 4194304, s{sT1}")
    a.e(f"s_lshl_b32 s{sT1}, s{sKQ}, 4")
    a.e(f"s_add_u32 s{sT1}, s{sT1}, s{sT0}")
    a.e(f"s_lshl_b32 s{sT1}, s{sT1}, 2")
    a.e(f"s_add_u32 s{sT1}, s{sT1}, s{sNQ}")
    a.e(f"s_mul_i32 s{sT1}, s{sT1}, 81920")
    a.e(f"s_add_u32 s{sT1}, s{sT1}, {WS_P}")
    srd(a, sP, sWS, 81920, sT1)
    a.e(f"s_lshl_b32 s{sWo}, s{sKH}, 19")
    a.e(f"s_lshl_b32 s{sT1}, s{sNT}, 13")
    a.e(f"s_add_u32 s{sWo}, s{sWo}, s{sT1}")
    a.e(f"s_lshl_b32 s{sLdsW}, s{sKH}, 13")
    a.e(f"s_lshl_b32 s{sT1}, s{sNT}, 11")
    a.e(f"s_add_u32 s{sLdsW}, s{sLdsW}, s{sT1}")
    a.e(f"s_add_u32 s{sLdsW}, s{sLdsW}, 20480")
    a.e(f"s_lshl_b32 s{sLdsO}, s{sW}, 10")
    for m in range(3):
        a.e(f"s_add_u32 s{sT0}, s{sW}, {8*m}")
        a.e(f"s_cmp_ge_u32 s{sT0}, 10")
        a.e(f"s_cselect_b32 s{sT1}, 1, 0")
        a.e(f"s_mul_i32 s{sT2}, s{sT1}, 10")
        a.e(f"s_sub_u32 s{sT2}, s{sT0}, s{sT2}")
        a.e(f"s_lshr_b32 s{sT3}, s{sT2}, 1")
        a.e(f"s_lshl_b32 s{sT3}, s{sT3}, 8")
        a.e(f"s_and_b32 s{sT2}, s{sT2}, 1")
        a.e(f"s_add_u32 s{sT3}, s{sT3}, s{sT2}")
        a.e(f"s_lshl_b32 s{sT1}, s{sT1}, 5")
        a.e(f"s_add_u32 s{sT3}, s{sT3}, s{sT1}")
        a.e(f"s_lshl_b32 s{sT1}, s{sKQ}, 6")
        a.e(f"s_add_u32 s{sT3}, s{sT3}, s{sT1}")
        a.e(f"s_lshl_b32 s{44+m}, s{sT3}, 10")
    def issue(tag):
        for m in range(2):
            a.e(f"s_add_u32 s{sT0}, s{sRegD}, s{sLdsW}")
            a.e(f"s_add_u32 m0, s{sT0}, {m*1024}")
            a.e(f"s_add_u32 s{sT3}, s{sWo}, {m*4096}")
            a.e(f"buffer_load_dwordx4 v{vDW}, s[{sWO}:{sWO+3}], s{sT3} offen lds")
        for m in range(3):
            if m == 2:
                a.e(f"s_cmp_ge_u32 s{sW}, 4")
                a.e(f"s_cbranch_scc1 {name}_os_{tag}")
            a.e(f"s_add_u32 s{sT0}, s{sRegD}, s{sLdsO}")
            a.e(f"s_add_u32 m0, s{sT0}, {m*8192}")
            a.e(f"s_nop 0")
            a.e(f"buffer_load_dwordx4 v{vLin}, s[{sOW}:{sOW+3}], s{44+m} offen lds")
        a.lab(f"{name}_os_{tag}")
        a.e(f"s_add_u32 s{sWo}, s{sWo}, 32768")
        for m in range(3):
            a.e(f"s_add_u32 s{44+m}, s{44+m}, 2048")
    for p in range(3):
        a.e(f"s_mov_b32 s{sRegD}, {p*ST}")
        issue(f"p{p}")
    def stage(tag, first, wait_n, do_issue):
        a.e(f"s_waitcnt vmcnt({wait_n})")
        a.e("s_barrier")
        a.e(f"v_add_u32 v{vA}, s{sReg}, v{vA0}")
        a.e(f"s_mul_i32 s{sT0}, s{sKH}, 10240")
        a.e(f"s_add_u32 s{sT0}, s{sT0}, s{sReg}")
        a.e(f"v_add_u32 v{vLane}, s{sT0}, v{vLin}")
        def rdA(sx):
            d = vAF + 4*sx
            a.ds(f"ds_read_b64_tr_b16 v[{d}:{d+1}], v{vA} offset:{sx*4096}", ("A", sx, 0))
            a.ds(f"ds_read_b64_tr_b16 v[{d+2}:{d+3}], v{vA} offset:{sx*4096+1024}", ("A", sx, 1))
        def rdB(sx, qb):
            d = vB + (sx*5 + qb)*4
            a.ds(f"ds_read_b128 v[{d}:{d+3}], v{vLane} offset:{(qb*2+sx)*1024}", ("B", sx, qb))
        rdA(0)
        for qb in range(5): rdB(0, qb)
        rdA(1)
        for qb in range(5): rdB(1, qb)
        if do_issue: issue(tag)
        for sx in range(2):
            for qb in range(5):
                a.need(("A", sx, 0), ("A", sx, 1), ("B", sx, qb))
                d = vB + (sx*5 + qb)*4
                cop = "0" if (first and sx == 0) else f"v[{vAcc+16*qb}:{vAcc+16*qb+15}]"
                a.e(f"v_mfma_f32_32x32x16_bf16 v[{vAcc+16*qb}:{vAcc+16*qb+15}], v[{vAF+4*sx}:{vAF+4*sx+3}], v[{d}:{d+3}], {cop}")
        a.drain()
    a.e(f"s_mov_b32 s{sReg}, 0")
    a.e(f"s_mov_b32 s{sRegD}, {3*ST}")
    stage("s0", True, 8, True)
    a.e(f"s_mov_b32 s{sCnt}, 1")
    a.lab(f"{name}_loop")
    a.e(f"s_mov_b32 s{sRegD}, s{sReg}")
    a.e(f"s_add_u32 s{sReg}, s{sReg}, {ST}")
    a.e(f"s_cmp_eq_u32 s{sReg}, {4*ST}")
    a.e(f"s_cselect_b32 s{sReg}, 0, s{sReg}")
    stage("lp", False, 8, True)
    a.e(f"s_add_u32 s{sCnt}, s{sCnt}, 1")
    a.e(f"s_cmp_lt_u32 s{sCnt}, 13")
    a.e(f"s_cbranch_scc1 {name}_loop")
    for sg, wn in ((13, 8), (14, 4), (15, 0)):
        a.e(f"s_mov_b32 s{sReg}, {(sg % 4)*ST}")
        stage(f"s{sg}", False, wn, False)
    a.e("s_barrier")
    a.nop(12)
    a.e(f"s_mul_i32 s{sT0}, s{sNT}, 20480")
    a.e(f"v_add_u32 v{vA}, s{sT0}, v{vLin}")
    a.e(f"s_cmp_eq_u32 s{sKH}, 1")
    a.e(f"s_cbranch_scc0 {name}_r0")
    for qb in range(5):
        for c in range(4):
            r = vAcc + 16*qb + 4*c
            a.e(f"ds_write_b128 v{vA}, v[{r}:{r+3}] offset:{(qb*4+c)*1024}")
    a.e("s_waitcnt lgkmcnt(0)")
    a.e("s_barrier")
    a.e(f"s_branch {name}_end")
    a.lab(f"{name}_r0")
    a.e("s_barrier")
    for qb in range(5):
        for c in range(4):
            d = vB + 4*c
            a.e(f"ds_read_b128 v[{d}:{d+3}], v{vA} offset:{(qb*4+c)*1024}")
        a.e("s_waitcnt lgkmcnt(0)")
        for r in range(16):
            a.e(f"v_add_f32 v{vAcc+16*qb+r}, v{vAcc+16*qb+r}, v{vB+r}")
        for c in range(4):
            r = vAcc + 16*qb + 4*c
            a.e(f"s_add_u32 s{sT1}, s{sT0}, {(qb*4+c)*1024}")
            a.e(f"buffer_store_dwordx4 v[{r}:{r+3}], v{vLin}, s[{sP}:{sP+3}], s{sT1} offen")
    a.e("s_waitcnt vmcnt(0)")
    a.lab(f"{name}_end")
    a.e("s_endpgm")
    return a.text(), NV

def gen_k3(name):
    a = Asm()
    sP, sO = 8, 12
    sWS, sOut = 16, 18
    NV = 80
    a.raw(f".globl {name}\n.p2align 8\n.type {name},@function\n{name}:")
    a.e("s_cmp_ge_u32 s2, 320")
    a.e(f"s_cbranch_scc1 {name}_end")
    a.e(f"s_load_dwordx2 s[{sWS}:{sWS+1}], s[0:1], 96")
    a.e(f"s_load_dwordx2 s[{sOut}:{sOut+1}], s[0:1], 80")
    a.e("v_lshrrev_b32 v1, 6, v0")
    a.e("v_and_b32 v2, 63, v0")
    a.e("v_readfirstlane_b32 s20, v1")
    a.e("s_lshl_b32 s21, s2, 2")
    a.e("s_add_u32 s21, s21, s20")
    a.e("s_mul_hi_u32 s22, s21, 0x33333334")
    a.e("s_mul_i32 s23, s22, 5")
    a.e("s_sub_u32 s23, s21, s23")
    a.e("s_and_b32 s24, s22, 15")
    a.e("s_lshr_b32 s25, s22, 4")
    a.e("s_lshr_b32 s26, s25, 3")
    a.e("s_and_b32 s27, s25, 7")
    a.e("v_lshlrev_b32 v3, 4, v2")
    a.e("s_mul_i32 s28, s27, 160")
    a.e("s_lshl_b32 s29, s23, 5")
    a.e("s_add_u32 s28, s28, s29")
    a.e("s_lshl_b32 s28, s28, 11")
    a.e("s_lshl_b32 s29, s26, 10")
    a.e("s_add_u32 s28, s28, s29")
    a.e("s_lshl_b32 s29, s24, 6")
    a.e("s_add_u32 s28, s28, s29")
    a.e("v_and_b32 v4, 31, v2")
    a.e("v_lshlrev_b32 v4, 11, v4")
    a.e("v_lshrrev_b32 v5, 5, v2")
    a.e("v_lshl_add_u32 v4, v5, 4, v4")
    a.e("s_waitcnt lgkmcnt(0)")
    a.e(f"s_add_u32 s8, s{sWS}, {WS_P}")
    a.e(f"s_addc_u32 s9, s{sWS+1}, 0")
    a.e(f"s_mov_b32 s10, {4*16*4*81920}")
    a.e("s_mov_b32 s11, 0x00020000")
    srd(a, sO, sOut, 8*160*1024*2)
    a.e("s_lshl_b32 s30, s21, 12")
    for kq in range(4):
        for c in range(4):
            d = 8 + (kq*4 + c)*4
            a.e(f"s_add_u32 s31, s30, {kq*64*81920 + c*1024}")
            a.e(f"buffer_load_dwordx4 v[{d}:{d+3}], v3, s[8:11], s31 offen")
    a.e("s_waitcnt vmcnt(8)")
    for r in range(16):
        a.e(f"v_add_f32 v{8+r}, v{8+r}, v{24+r}")
    a.e("s_waitcnt vmcnt(0)")
    for r in range(16):
        a.e(f"v_add_f32 v{40+r}, v{40+r}, v{56+r}")
    for r in range(16):
        a.e(f"v_add_f32 v{8+r}, v{8+r}, v{40+r}")
    for r in range(8):
        a.e(f"v_cvt_pk_bf16_f32 v{24+r}, v{8+2*r}, v{8+2*r+1}")
    a.e(f"buffer_store_dwordx4 v[24:27], v4, s[{sO}:{sO+3}], s28 offen")
    a.e(f"buffer_store_dwordx4 v[28:31], v4, s[{sO}:{sO+3}], s28 offen offset:32")
    a.e("s_waitcnt vmcnt(0)")
    a.lab(f"{name}_end")
    a.e("s_endpgm")
    return a.text(), NV

HEADER = open("cdna_kernels/" + NAME + ".s.ref").read().split("; Override launch")[0]

def build(path):
    k1, k2, k3 = "attn_kernel", "oproj_kernel", "oreduce_kernel"
    t1, v1 = gen_k1(k1)
    t2, v2 = gen_k2(k2)
    t3, v3 = gen_k3(k3)
    out = HEADER
    out += f"; @launch kernel={k1} grid=(256,1,1) block=(640,1,1) lds=163840\n"
    out += f"; @launch kernel={k2} grid=(256,1,1) block=(512,1,1) lds=147456\n"
    out += f"; @launch kernel={k3} grid=(320,1,1) block=(256,1,1) lds=0\n"
    out += '.amdgcn_target "amdgcn-amd-amdhsa--gfx950"\n.text\n'
    out += t1 + kdesc(k1, v1) + t2 + kdesc(k2, v2) + t3 + kdesc(k3, v3)
    open(path, "w").write(out)

if __name__ == "__main__":
    build(sys.argv[1] if len(sys.argv) > 1 else "cdna_kernels/" + NAME + ".s")
```

```python
import sys, math
from dsl import *

NAME = "concat_heads__gqa_block_cached__gqa_block_cached__near_ridge"
PROF = False
QSCALE = math.log2(math.e) / math.sqrt(128.0)
import struct
def f2u(x): return struct.unpack("<I", struct.pack("<f", x))[0]

WS_O = 0
WS_P = 32 << 20
WS_T = 128 << 20

def srd(a, sd, sbase, size, off_s=None):
    if off_s is None:
        a.e(f"s_mov_b32 s{sd}, s{sbase}")
        a.e(f"s_mov_b32 s{sd+1}, s{sbase+1}")
    else:
        a.e(f"s_add_u32 s{sd}, s{sbase}, s{off_s}")
        a.e(f"s_addc_u32 s{sd+1}, s{sbase+1}, 0")
    a.e(f"s_mov_b32 s{sd+2}, {size}")
    a.e(f"s_mov_b32 s{sd+3}, 0x00020000")

def stamp(a, idx):
    if not globals()["PROF"]: return
    a.e(f"s_memtime s[{64+2*idx}:{65+2*idx}]")
    a.e("s_waitcnt lgkmcnt(0)")
def stamp_nw(a, idx):
    if not globals()["PROF"]: return
    a.e(f"s_memtime s[{64+2*idx}:{65+2*idx}]")
def stamp_rt(a, idx):
    if not globals()["PROF"]: return
    a.e(f"s_memrealtime s[{64+2*idx}:{65+2*idx}]")
    a.e("s_waitcnt lgkmcnt(0)")
def stamp_store(a, sWS, sW, nst, kidx, vtmp):
    if not globals()["PROF"]: return
    a.e(f"s_lshl_b32 s60, s2, 4")
    a.e(f"s_add_u32 s60, s60, s{sW}")
    a.e(f"s_lshl_b32 s60, s60, 6")
    a.e(f"s_add_u32 s60, s60, {WS_T + (kidx << 20)}")
    a.e(f"s_add_u32 s62, s{sWS}, s60")
    a.e(f"s_addc_u32 s63, s{sWS+1}, 0")
    a.e(f"v_mov_b32 v{vtmp}, 0")
    for i in range(nst):
        a.e(f"v_mov_b32 v{vtmp+1}, s{64+2*i}")
        a.e(f"global_store_dword v{vtmp}, v{vtmp+1}, s[62:63] offset:{4*i}")
    a.e("s_waitcnt vmcnt(0)")
```

```python
from dsl import *
import common as C
from common import srd, stamp, stamp_nw, stamp_rt, stamp_store, f2u, QSCALE

OPT = dict(QNT=False, ROT=2, LAT=4, PRIO=(None, None, None),
           QW=([], [3, 4], [5, 6, 7], [0, 1, 2]), QX=([], [], [], [0, 1, 2, 3, 4]))

def gen_k1(name):
    a = Asm()
    QNT = OPT["QNT"]; LAT = OPT["LAT"]; NQ = 3
    QW, QX = OPT["QW"], OPT["QX"]
    QN = [len(QW[c]) + len(QX[c]) for c in range(4)]
    sKc = 3
    sX, sWQ, sK, sV, sO = 8, 12, 16, 20, 24
    sW, sHS, sQB, sHsW = 28, 29, 30, 31
    sL1024 = 32
    sReg, sRegD = 33, 34
    sT0, sT1, sT2, sT3 = 35, 36, 37, 38
    sCnt = 39
    sHs8k, sTile, sHsX, sHsXl = 40, 41, 42, 43
    sH0, sBeta, sB, sRegN = 44, 45, 46, 47
    sPtr = 48
    sWS = 56
    sCls, sBufA, sBufB = 58, 59, 61
    sKVs, sKVl = 4, 5
    vO, vQ, vS, vNM, vF = 0, 64, 96, 112, 128
    vA = 144
    vA0K, vA0V, vL0, vL1, vMX, vMX2 = 148, 149, 150, 151, 152, 153
    vT0, vT1 = 154, 155
    vDK, vDV, vDX, vDW, vXB, vOst = 156, 157, 158, 159, 160, 161
    vLane = 162
    NV = 168
    R = 32768
    L = vLane
    uid = [0]
    def newlab(p):
        uid[0] += 1
        return f"{name}_{p}{uid[0]}"

    a.raw(f".globl {name}\n.p2align 8\n.type {name},@function\n{name}:")
    a.e("s_cmp_ge_u32 s2, 256")
    a.e(f"s_cbranch_scc1 {name}_end")
    stamp_rt(a, 0); stamp(a, 1)
    a.e(f"s_load_dwordx2 s[{sWS}:{sWS+1}], s[0:1], 96")
    a.e(f"s_and_b32 s{sT0}, s2, 7")
    a.e(f"s_lshr_b32 s{sT1}, s2, 3")
    a.e(f"s_lshr_b32 s{sBeta}, s{sT0}, 2")
    a.e(f"s_mul_i32 s{sT2}, s{sBeta}, 40")
    a.e(f"s_add_u32 s0, s0, s{sT2}")
    a.e(f"s_addc_u32 s1, s1, 0")
    a.e(f"s_load_dwordx8 s[{sPtr}:{sPtr+7}], s[0:1], 0")
    a.e(f"s_and_b32 s{sT0}, s{sT0}, 3")
    a.e(f"s_lshr_b32 s{sB}, s{sT1}, 2")
    a.e(f"s_and_b32 s{sT1}, s{sT1}, 3")
    a.e(f"s_lshl_b32 s{sT0}, s{sT0}, 2")
    a.e(f"s_add_u32 s{sH0}, s{sT0}, s{sT1}")
    a.e(f"s_lshl_b32 s{sH0}, s{sH0}, 1")
    a.e(f"v_lshrrev_b32 v1, 6, v0")
    a.e(f"v_and_b32 v{L}, 63, v0")
    a.e(f"v_readfirstlane_b32 s{sW}, v1")
    a.e(f"s_and_b32 s{sHS}, s{sW}, 1")
    a.e(f"s_lshr_b32 s{sQB}, s{sW}, 1")
    a.e(f"s_sub_u32 s{sCls}, s{sQB}, 1")
    a.e(f"s_cmp_lt_u32 s{sW}, 4")
    a.e(f"s_cselect_b32 s{sCls}, 0, s{sCls}")
    a.e(f"s_and_b32 s{sT0}, s{sW}, 3")
    a.e(f"s_lshl_b32 s{sL1024}, s{sT0}, 10")
    a.e(f"""
    v_lshrrev_b32 v2, 4, v{L}            ; i>>4
    v_lshlrev_b32 v3, 2, v2
    v_and_b32 v4, 15, v{L}
    v_xor_b32 v3, v3, v4
    v_lshlrev_b32 v3, 4, v3
    v_lshl_add_u32 v{vDV}, v2, 8, v3     ; V: (i>>4)*256 + swz*16
    v_lshl_add_u32 v{vDW}, v2, 13, v3
    v_and_b32 v2, 3, v2                  ; (i>>4)&3
    v_and_b32 v4, 3, v{L}
    v_xor_b32 v2, v2, v4
    v_lshlrev_b32 v2, 4, v2
    v_lshrrev_b32 v3, 2, v{L}
    v_lshl_add_u32 v{vDX}, v3, 10, v2    ; x: (i>>2)*1024 + swz*16
    s_lshl_b32 s{sT1}, s{sT0}, 3
    v_lshrrev_b32 v2, 3, v{L}            ; i>>3
    v_add_u32 v2, s{sT1}, v2             ; row = 8l + (i>>3)
    v_bfe_u32 v3, v2, 1, 3
    v_and_b32 v4, 7, v{L}
    v_xor_b32 v3, v3, v4
    v_lshlrev_b32 v3, 4, v3
    v_lshl_add_u32 v{vDK}, v2, 8, v3
    s_lshl_b32 s{sHs8k}, s{sHS}, 13
    s_lshl_b32 s{sHsW}, s{sHS}, 8
    s_mul_i32 s{sHsX}, s{sHS}, 81920
    s_mul_i32 s{sHsXl}, s{sHS}, 5120
    s_mul_i32 s{sKc}, s{sB}, {OPT["ROT"]}
    s_and_b32 s{sKc}, s{sKc}, 15
    """)
    a.e("s_waitcnt lgkmcnt(0)")
    a.e(f"s_mul_i32 s{sT0}, s{sB}, 163840")
    srd(a, sX, sPtr+0, 163840, sT0)
    a.e(f"s_lshl_b32 s{sT0}, s{sH0}, 8")
    srd(a, sWQ, sPtr+6, 0, sT0)
    a.e(f"s_sub_u32 s{sWQ+2}, 4194304, s{sT0}")
    a.e(f"s_lshl_b32 s{sT0}, s{sB}, 5")
    a.e(f"s_add_u32 s{sT0}, s{sT0}, s{sH0}")
    a.e(f"s_lshl_b32 s{sT0}, s{sT0}, 17")
    srd(a, sK, sPtr+2, 262144, sT0)
    srd(a, sV, sPtr+4, 262144, sT0)
    a.e(f"s_lshl_b32 s{sT0}, s{sBeta}, 3")
    a.e(f"s_add_u32 s{sT0}, s{sT0}, s{sB}")
    a.e(f"s_mul_i32 s{sT0}, s{sT0}, 1310720")
    srd(a, sO, sWS, 1310720, sT0)

    def sadd(dst, base, imm):
        if isinstance(base, tuple): a.e(f"s_add_u32 {dst}, s{base[1]}, {imm}")
        else: a.e(f"s_mov_b32 {dst}, {base + imm}")
    def sadds(dst, base, sreg):
        if isinstance(base, tuple): a.e(f"s_add_u32 {dst}, s{base[1]}, s{sreg}")
        else: a.e(f"s_add_u32 {dst}, s{sreg}, {base}")
    def vadd(dst, base, imm, vreg):
        if isinstance(base, tuple):
            if imm:
                a.e(f"s_add_u32 s{sT2}, s{base[1]}, {imm & 0xffffffff}")
                a.e(f"v_add_u32 v{dst}, s{sT2}, v{vreg}")
            else: a.e(f"v_add_u32 v{dst}, s{base[1]}, v{vreg}")
        else: a.e(f"v_add_u32 v{dst}, {base + imm}, v{vreg}")
    def dma(voff, sr, m0base, m0imm, sbase, simm, nt):
        a.e(f"s_add_u32 m0, s{m0base}, {m0imm}")
        a.e(f"s_add_u32 s{sT3}, s{sbase}, {simm}")
        a.e(f"buffer_load_dwordx4 v{voff}, s[{sr}:{sr+3}], s{sT3} offen {'nt ' if nt else ''}lds")
    def cls_block(c, body):
        lab = newlab(f"c{c}_")
        a.e(f"s_cmp_eq_u32 s{sCls}, {c}")
        a.e(f"s_cbranch_scc0 {lab}")
        body()
        a.lab(lab)

    def kv_pieces(region, tile_off, parts):
        sadds(f"s{sT0}", region, sL1024)
        sadds(f"s{sT1}", tile_off, sL1024)
        sadd(f"s{sT2}", tile_off, 0)
        for p in parts:
            hs2 = p & 1
            if p < 2:
                for half in (0, 1):
                    dma(vDK, sK, sT0, hs2*8192 + half*4096, sT2, hs2*131072 + half*128, True)
            else:
                for nn in (0, 4):
                    dma(vDV, sV, sT0, 16384 + hs2*8192 + nn*1024, sT1, hs2*131072 + nn*1024, True)
    def q_pieces(c, buf):
        if QW[c]:
            a.e(f"s_lshl_b32 s{sT0}, s{sKc}, 18")
            a.e(f"s_add_u32 s{sT0}, s{sT0}, s{sHsW}")
            sadds(f"s{sT1}", buf, sHs8k)
            for n in QW[c]:
                dma(vDW, sWQ, sT1, 10240 + n*1024, sT0, n*32768, QNT)
        if QX[c]:
            a.e(f"s_lshl_b32 s{sT0}, s{sKc}, 6")
            a.e(f"s_add_u32 s{sT0}, s{sT0}, s{sHsX}")
            sadds(f"s{sT1}", buf, sHsXl)
            for m in QX[c]:
                dma(vDX, sX, sT1, m*1024, sT0, m*16384, QNT)
    def kc_next():
        a.e(f"s_add_u32 s{sKc}, s{sKc}, 1")
        a.e(f"s_and_b32 s{sKc}, s{sKc}, 15")

    QB = [2*R, 3*R, 4*R]
    qbuf = lambda sg: QB[(sg + 2) % 3]
    QSET = [dict(B=(96, 100), A=104), dict(B=(136, 140), A=64)]
    def q_reads(par, buf):
        st = QSET[par]
        vadd(vA, buf, -6144, vA0V)
        vadd(vT0, buf, 0, vXB)
        a.e(f"v_xor_b32 v{vA+1}, 64, v{vA}")
        a.e(f"v_xor_b32 v{vA+2}, 128, v{vA}")
        a.e(f"v_xor_b32 v{vA+3}, 192, v{vA}")
        a.e(f"v_xor_b32 v{vT1}, 32, v{vT0}")
        L_ = []
        for sx in range(2):
            b = st["B"][sx]
            L_.append(f"ds_read_b128 v[{b}:{b+3}], v{vT0 if sx == 0 else vT1}")
            for t in range(4):
                d = st["A"] + (sx*4 + t)*4
                L_.append(f"ds_read_b64_tr_b16 v[{d}:{d+1}], v{vA+t} offset:{sx*4096}")
                L_.append(f"ds_read_b64_tr_b16 v[{d+2}:{d+3}], v{vA+t} offset:{sx*4096+1024}")
        return L_
    def q_mfmas(par, rd, fq=False):
        st = QSET[par]; nrd = 0
        for i in range(8):
            sx, t = i >> 2, i & 3
            d = st["A"] + (sx*4 + t)*4
            b = st["B"][sx]
            a.e(f"v_mfma_f32_32x32x16_bf16 v[{vO+16*t}:{vO+16*t+15}], v[{d}:{d+3}], v[{b}:{b+3}], v[{vO+16*t}:{vO+16*t+15}]")
            if rd:
                if nrd >= 12: a.e("s_waitcnt lgkmcnt(9)")
                for _ in range(3):
                    if rd: a.e(rd.pop(0)); nrd += 1
            if fq and (i & 1): stamp_nw(a, 11 + (i >> 1))

    def lane_addresses():
        a.e(f"""
        v_lshrrev_b32 v1, 5, v{L}            ; h
        v_bfe_u32 v2, v{L}, 2, 2             ; r
        v_lshl_add_u32 v3, v1, 3, v2         ; 8h+r
        v_lshlrev_b32 v3, 8, v3
        v_lshl_add_u32 v3, v2, 6, v3         ; + r*64
        v_bfe_u32 v4, v{L}, 4, 1
        v_lshl_add_u32 v3, v4, 5, v3         ; + g*32
        v_and_b32 v4, 1, v{L}
        v_lshl_add_u32 v3, v4, 4, v3         ; + c0*16
        v_bfe_u32 v4, v{L}, 1, 1
        v_lshl_add_u32 v3, v4, 3, v3         ; + c1*8
        s_add_u32 s{sT1}, s{sHs8k}, 16384
        v_add_u32 v{vA0V}, s{sT1}, v3
        v_and_b32 v2, 0x13, v{L}
        v_and_b32 v3, 4, v{L}
        v_lshl_or_b32 v2, v3, 1, v2
        v_and_b32 v3, 8, v{L}
        v_lshrrev_b32 v3, 1, v3
        v_or_b32 v2, v2, v3                  ; rho
        v_bfe_u32 v3, v2, 1, 3
        v_xor_b32 v3, v3, v1
        v_lshlrev_b32 v3, 4, v3
        v_lshl_add_u32 v3, v2, 7, v3
        v_add_u32 v{vA0K}, s{sHs8k}, v3
        v_and_b32 v2, 31, v{L}
        v_bfe_u32 v3, v{L}, 2, 2
        v_xor_b32 v3, v3, v1
        v_lshlrev_b32 v3, 4, v3
        v_lshl_add_u32 v3, v2, 6, v3
        s_lshl_b32 s{sT0}, s{sQB}, 11
        v_add_u32 v{vXB}, s{sT0}, v3
        v_lshlrev_b32 v{vOst}, 4, v{L}
        """)

    seq = []
    def push(key, n4): seq.append((key, list(n4)))
    def wait_for(key):
        idx = max(i for i, e in enumerate(seq) if e[0] == key)
        for c in range(4):
            if not any(e[0] == key and e[1][c] for e in seq): continue
            n = min(63, sum(e[1][c] for e in seq[idx+1:]))
            cls_block(c, lambda n=n: a.e(f"s_waitcnt vmcnt({n})"))

    for c in range(1, 4):
        a.e(f"s_cmp_eq_u32 s{sCls}, {c}")
        a.e(f"s_cbranch_scc1 {name}_cls{c}")
    for c in range(4):
        a.lab(f"{name}_cls{c}")
        for sg in range(NQ):
            q_pieces(c, qbuf(sg)); kc_next()
        if c == 0: stamp(a, 2)
        else: stamp(a, 2)
        lane_addresses()
        for r in range(64): a.e(f"v_mov_b32 v{vO+r}, 0")
        if QN[c]: a.e(f"s_waitcnt vmcnt({2*QN[c]})")
        a.e("s_barrier")
        rd = q_reads(0, qbuf(0))
        for i, r_ in enumerate(rd):
            if i == 14: a.e("s_waitcnt lgkmcnt(8)")
            a.e(r_)
        a.e("s_waitcnt lgkmcnt(0)")
        stamp(a, 3)
        a.e(f"s_mov_b32 s{sBufA}, {qbuf(0)}")
        a.e(f"s_mov_b32 s{sBufB}, {qbuf(1)}")
        a.e(f"s_mov_b32 s{sCnt}, 0")
        a.e(f"s_mov_b32 s{sKVs}, 0")
        a.e(f"s_mov_b32 s{sKVl}, 0")
        a.lab(f"{name}_ql{c}")
        for par in range(2):
            if QN[c]: a.e(f"s_waitcnt vmcnt({QN[c]})")
            a.e("s_barrier")
            fq = OPT.get("FINEQ") and par == 0
            if fq: stamp_nw(a, 10)
            if OPT.get("FINEQ") and par == 1: stamp_nw(a, 15)
            rd = q_reads(1 - par, ("s", sBufB))
            if QN[c]: q_pieces(c, ("s", sBufA))
            kc_next()
            q_mfmas(par, rd, fq)
            a.e(f"s_mov_b32 s{sBufA}, s{sBufB}")
            a.e(f"s_add_u32 s{sBufB}, s{sBufB}, {R}")
            a.e(f"s_cmp_eq_u32 s{sBufB}, {5*R}")
            a.e(f"s_cselect_b32 s{sBufB}, {2*R}, s{sBufB}")
            if c == 0:
                lab = newlab("nokv")
                a.e(f"s_cmp_lt_u32 s{sCnt}, 4")
                a.e(f"s_cbranch_scc0 {lab}")
                a.e(f"s_add_u32 s{sT0}, s{sKVl}, s{sL1024}")
                if par == 0:
                    for half in (0, 1):
                        dma(vDK, sK, sT0, half*4096, sKVs, half*128, True)
                else:
                    a.e(f"s_add_u32 s{sT1}, s{sKVs}, s{sL1024}")
                    for nn in (0, 4):
                        dma(vDV, sV, sT0, 16384 + nn*1024, sT1, nn*1024, True)
                    a.e(f"s_add_u32 s{sT0}, s{sCnt}, 1")
                    a.e(f"s_lshr_b32 s{sT1}, s{sT0}, 1")
                    a.e(f"s_and_b32 s{sT0}, s{sT0}, 1")
                    a.e(f"s_lshl_b32 s{sKVs}, s{sT1}, 13")
                    a.e(f"s_lshl_b32 s{sT2}, s{sT0}, 17")
                    a.e(f"s_add_u32 s{sKVs}, s{sKVs}, s{sT2}")
                    a.e(f"s_lshl_b32 s{sKVl}, s{sT1}, 15")
                    a.e(f"s_lshl_b32 s{sT2}, s{sT0}, 13")
                    a.e(f"s_add_u32 s{sKVl}, s{sKVl}, s{sT2}")
                a.lab(lab)
            a.e("s_waitcnt lgkmcnt(0)")
        a.e(f"s_add_u32 s{sCnt}, s{sCnt}, 1")
        a.e(f"s_cmp_lt_u32 s{sCnt}, 6")
        a.e(f"s_cbranch_scc1 {name}_ql{c}")
        if c < 3: a.e(f"s_branch {name}_qtail")
    a.lab(f"{name}_qtail")
    stamp(a, 9)
    for i in range(4): push(("kv", i >> 1), [4, 0, 0, 0])
    for sg in (13, 14): push(("q", sg), QN)
    def q_iter(sg, kv):
        rd = []
        if sg < 15: wait_for(("q", sg + 1))
        a.e("s_barrier")
        if sg < 15: rd = q_reads((sg + 1) & 1, qbuf(sg + 1))
        if sg + NQ < 16:
            for c in range(4):
                if QN[c]: cls_block(c, lambda c=c: q_pieces(c, qbuf(sg + NQ)))
            push(("q", sg + NQ), QN)
        q_mfmas(sg & 1, rd)
        if kv:
            tile, parts = kv
            cls_block(0, lambda: kv_pieces((tile % 5)*R, tile*8192, parts))
            push(("kv", tile), [2*len(parts), 0, 0, 0])
        a.e("s_waitcnt lgkmcnt(0)")
    q_iter(12, None); q_iter(13, (2, [0, 1])); q_iter(14, (2, [2, 3])); q_iter(15, None)
    stamp(a, 4)
    a.nop(12)
    a.e(f"s_mov_b32 s{sT0}, {hex(f2u(QSCALE))}")
    for r in range(64):
        a.e(f"v_mul_f32 v{vO+r}, s{sT0}, v{vO+r}")
    for r in range(32):
        a.e(f"v_cvt_pk_bf16_f32 v{vQ+r}, v{vO+2*r}, v{vO+2*r+1}")

    def k_addr(reg):
        vadd(vA, reg, 0, vA0K)
        a.e(f"v_xor_b32 v{vA+1}, 32, v{vA}")
        a.e(f"v_xor_b32 v{vA+2}, 64, v{vA}")
        a.e(f"v_xor_b32 v{vA+3}, 96, v{vA}")
    def rdK(j):
        f = vF + (j & 3)*4
        a.ds(f"ds_read_b128 v[{f}:{f+3}], v{vA+(j&3)} offset:{(j>>2)*4096}", ("K", j))
    def setprio(p):
        if p is not None: a.e(f"s_setprio {p}")
    S = lambda r: f"v{vS+r}"
    def att_body(tag, first, reg, regn):
        PQ, PS, PP = OPT["PRIO"]
        fine = False
        def rdV(sx, t):
            f = vF + t*4
            a.ds(f"ds_read_b64_tr_b16 v[{f}:{f+1}], v{vA+t} offset:{sx*4096}", ("V", sx, t, 0))
            a.ds(f"ds_read_b64_tr_b16 v[{f+2}:{f+3}], v{vA+t} offset:{sx*4096+1024}", ("V", sx, t, 1))
        setprio(PQ)
        for j in range(8):
            a.need(("K", j))
            f = vF + (j & 3)*4
            cop = f"v[{vS}:{vS+15}]" if j else ("0" if first else f"v[{vNM}:{vNM+15}]")
            a.e(f"v_mfma_f32_32x32x16_bf16 v[{vS}:{vS+15}], v[{f}:{f+3}], v[{vQ+4*j}:{vQ+4*j+3}], {cop}")
            if j < 4: rdK(j+4)
            if j == 3:
                vadd(vA, reg, 0, vA0V)
                a.e(f"v_xor_b32 v{vA+1}, 64, v{vA}")
                a.e(f"v_xor_b32 v{vA+2}, 128, v{vA}")
                a.e(f"v_xor_b32 v{vA+3}, 192, v{vA}")
            if j >= 4: rdV(0, j - 4)
        setprio(PS)
        a.nop(10)
        a.e(f"v_max3_f32 v{vMX}, {S(0)}, {S(1)}, {S(2)}")
        a.e(f"v_max3_f32 v{vMX2}, {S(3)}, {S(4)}, {S(5)}")
        a.e(f"v_max3_f32 v{vMX}, v{vMX}, {S(6)}, {S(7)}")
        a.e(f"v_max3_f32 v{vMX2}, v{vMX2}, {S(8)}, {S(9)}")
        a.e(f"v_max3_f32 v{vMX}, v{vMX}, {S(10)}, {S(11)}")
        a.e(f"v_max3_f32 v{vMX2}, v{vMX2}, {S(12)}, {S(13)}")
        a.e(f"v_max3_f32 v{vMX}, v{vMX}, {S(14)}, {S(15)}")
        a.e(f"v_max_f32 v{vMX}, v{vMX}, v{vMX2}")
        if first:
            a.e(f"v_mov_b32 v{vMX2}, v{vMX}")
            a.nop(2)
            a.e(f"v_permlane32_swap_b32 v{vMX}, v{vMX2}")
            a.nop(1)
            a.e(f"v_max_f32 v{vMX}, v{vMX}, v{vMX2}")
            for r in range(16):
                a.e(f"v_sub_f32 {S(r)}, {S(r)}, v{vMX}")
            for r in range(16):
                a.e(f"v_sub_f32 v{vNM+r}, 0, v{vMX}")
            a.e(f"v_mov_b32 v{vL0}, 0")
            a.e(f"v_mov_b32 v{vL1}, 0")
        else:
            a.e(f"v_cmp_lt_f32 vcc, 0x41200000, v{vMX}")
            a.e(f"s_cbranch_vccnz {name}_rare_{tag}")
            a.lab(f"{name}_back_{tag}")
        ex = lambda r: a.e(f"v_exp_f32 {S(r)}, {S(r)}")
        ad = lambda r: a.e(f"v_add_f32 v{vL0 + (r&1)}, v{vL0 + (r&1)}, {S(r)}")
        pk = lambda d: a.e(f"v_cvt_pk_bf16_f32 {S(d)}, {S(2*d)}, {S(2*d+1)}")
        ex(0)
        for r in range(1, 8): ex(r); ad(r-1)
        pk(0); ad(7); pk(1); pk(2); pk(3)
        setprio(PP)
        a.nop(2)
        def pv(sx, t):
            a.need(("V", sx, t, 0), ("V", sx, t, 1))
            f = vF + t*4
            cop = "0" if (first and sx == 0) else f"v[{vO+16*t}:{vO+16*t+15}]"
            a.e(f"v_mfma_f32_32x32x16_bf16 v[{vO+16*t}:{vO+16*t+15}], v[{f}:{f+3}], v[{vS+4*sx}:{vS+4*sx+3}], {cop}")
        for t in range(4):
            pv(0, t); rdV(1, t)
            if t: ad(7 + 2*t)
            ex(8 + 2*t); ex(9 + 2*t); ad(8 + 2*t)
            if t: pk(3 + t)
        ad(15); pk(7)
        if regn is not None: k_addr(regn)
        else: a.nop(2)
        for t in range(4):
            pv(1, t)
            if regn is not None: rdK(t)
        if regn is None: a.drain()

    def rare(tag):
        a.lab(f"{name}_rare_{tag}")
        a.c("raise the subtracted max to the running row max and rescale what was accumulated")
        a.e(f"v_mov_b32 v{vMX2}, v{vMX}")
        a.nop(2)
        a.e(f"v_permlane32_swap_b32 v{vMX}, v{vMX2}")
        a.nop(1)
        a.e(f"v_max_f32 v{vMX}, v{vMX}, v{vMX2}")
        a.e(f"v_max_f32 v{vMX}, 0, v{vMX}")
        a.e(f"v_sub_f32 v{vMX2}, 0, v{vMX}")
        a.e(f"v_exp_f32 v{vMX2}, v{vMX2}")
        for r in range(16):
            a.e(f"v_sub_f32 v{vS+r}, v{vS+r}, v{vMX}")
        for r in range(16):
            a.e(f"v_sub_f32 v{vNM+r}, v{vNM+r}, v{vMX}")
        for r in range(64):
            a.e(f"v_mul_f32 v{vO+r}, v{vO+r}, v{vMX2}")
        a.e(f"v_mul_f32 v{vL0}, v{vL0}, v{vMX2}")
        a.e(f"v_mul_f32 v{vL1}, v{vL1}, v{vMX2}")
        a.e(f"s_branch {name}_back_{tag}")

    wait_for(("kv", 0))
    a.e("s_barrier")
    k_addr(0)
    for j in range(4): rdK(j)
    wait_for(("kv", 1))
    a.e("s_barrier")
    att_body("t0", True, 0, R)
    first_fill = list(range(3, LAT + 1))
    def fill0():
        for t in first_fill: kv_pieces((t % 5)*R, t*8192, [0, 1, 2, 3])
    cls_block(0, fill0)
    if C.PROF: a.e("s_waitcnt lgkmcnt(0)")
    stamp(a, 5)
    entry_state = list(a.lg)
    a.e(f"s_mov_b32 s{sCnt}, 1")
    a.e(f"s_mov_b32 s{sTile}, {LAT*8192}")
    a.e(f"s_mov_b32 s{sRegD}, {(LAT % 5)*R}")
    a.e(f"s_mov_b32 s{sReg}, 0")
    a.e(f"s_mov_b32 s{sRegN}, {R}")
    a.e(f"s_cmp_eq_u32 s{sCls}, 0")
    a.e(f"s_cbranch_scc0 {name}_aloop1")
    for var in range(2):
        a.lg = list(entry_state)
        a.lab(f"{name}_aloop{var}")
        if var == 0:
            a.e(f"s_cmp_le_u32 s{sCnt}, {16 - LAT}")
            a.e(f"s_cbranch_scc0 {name}_atailw")
            a.e(f"s_waitcnt vmcnt({8*(LAT-2)})")
            a.lab(f"{name}_atailb")
        a.e("s_barrier")
        regs = (sReg, sRegN) + ((sRegD,) if var == 0 else ())
        for sr in regs:
            a.e(f"s_add_u32 s{sr}, s{sr}, {R}")
            a.e(f"s_cmp_eq_u32 s{sr}, {5*R}")
            a.e(f"s_cselect_b32 s{sr}, 0, s{sr}")
        att_body(f"lp{var}", False, ("s", sReg), ("s", sRegN))
        if var == 0:
            a.e(f"s_add_u32 s{sTile}, s{sTile}, 8192")
            a.e(f"s_cmp_le_u32 s{sCnt}, {15 - LAT}")
            a.e(f"s_cbranch_scc0 {name}_anofill")
            kv_pieces(("s", sRegD), ("s", sTile), [0, 1, 2, 3])
            a.lab(f"{name}_anofill")
        assert a.lg == entry_state
        a.e(f"s_add_u32 s{sCnt}, s{sCnt}, 1")
        a.e(f"s_cmp_lt_u32 s{sCnt}, 15")
        a.e(f"s_cbranch_scc1 {name}_aloop{var}")
        if var == 0: a.e(f"s_branch {name}_alast")
    a.lab(f"{name}_alast")
    a.e("s_barrier")
    att_body("t15", False, (15 % 5)*R, None)
    stamp(a, 6)
    a.e(f"v_add_f32 v{vL0}, v{vL0}, v{vL1}")
    a.nop(1)
    a.e(f"v_mov_b32 v{vL1}, v{vL0}")
    a.nop(2)
    a.e(f"v_permlane32_swap_b32 v{vL0}, v{vL1}")
    a.nop(1)
    a.e(f"v_add_f32 v{vL0}, v{vL0}, v{vL1}")
    a.nop(1)
    a.e(f"v_rcp_f32 v{vL0}, v{vL0}")
    a.nop(12)
    a.e(f"s_lshl_b32 s{sT0}, s{sQB}, 18")
    a.e(f"s_add_u32 s{sT1}, s{sH0}, s{sHS}")
    a.e(f"s_lshl_b32 s{sT1}, s{sT1}, 13")
    a.e(f"s_add_u32 s{sT0}, s{sT0}, s{sT1}")
    for fr in range(8):
        for r in range(8):
            a.e(f"v_mul_f32 v{vO+8*fr+r}, v{vO+8*fr+r}, v{vL0}")
        for r in range(4):
            a.e(f"v_cvt_pk_bf16_f32 v{vQ+4*fr+r}, v{vO+8*fr+2*r}, v{vO+8*fr+2*r+1}")
        a.e(f"s_add_u32 s{sT1}, s{sT0}, {fr*1024}")
        a.e(f"buffer_store_dwordx4 v[{vQ+4*fr}:{vQ+4*fr+3}], v{vOst}, s[{sO}:{sO+3}], s{sT1} offen")
    a.e("s_waitcnt vmcnt(0)")
    stamp(a, 7); stamp_rt(a, 8)
    stamp_store(a, sWS, sW, 16, 0, vT0)
    a.e(f"s_branch {name}_end")
    a.lab(f"{name}_atailw")
    for k in range(LAT - 2):
        t = 17 - LAT + k
        if k < LAT - 3:
            lab = newlab("tw")
            a.e(f"s_cmp_eq_u32 s{sCnt}, {t}")
            a.e(f"s_cbranch_scc0 {lab}")
        a.e(f"s_waitcnt vmcnt({8*(15 - (t + 1))})")
        a.e(f"s_branch {name}_atailb")
        if k < LAT - 3: a.lab(lab)
    for tag in ["lp0", "lp1", "t15"]:
        rare(tag)
    a.lab(f"{name}_end")
    a.e("s_endpgm")
    return a.text(), NV
```

```python
from dsl import *
import common as C
from common import *
def gen_k2(name):
    a = Asm()
    sOW, sWO, sP = 8, 12, 16
    sW, sNT, sKH = 20, 21, 22
    sReg, sRegD, sCnt = 23, 24, 25
    sT0, sT1, sT2, sT3 = 26, 27, 28, 29
    sBeta, sB, sKQ, sNQ = 30, 31, 32, 33
    sOo, sWo = 34, 35
    sWS, sPW = 36, 38
    sLdsO, sLdsW = 40, 41
    vAcc, vB, vAF, vA0, vA, vLin, vDW, vLane = 0, 80, 120, 128, 129, 130, 131, 132
    NV = 136
    ST = 36864
    a.raw(f".globl {name}\n.p2align 8\n.type {name},@function\n{name}:")
    a.e("s_cmp_ge_u32 s2, 256")
    a.e(f"s_cbranch_scc1 {name}_end")
    stamp_rt(a, 0); stamp(a, 1)
    a.e(f"s_load_dwordx2 s[{sWS}:{sWS+1}], s[0:1], 96")
    a.e(f"s_and_b32 s{sT0}, s2, 7")
    a.e(f"s_lshr_b32 s{sT1}, s2, 3")
    a.e(f"s_lshr_b32 s{sBeta}, s{sT0}, 2")
    a.e(f"s_and_b32 s{sKQ}, s{sT0}, 3")
    a.e(f"s_lshr_b32 s{sB}, s{sT1}, 2")
    a.e(f"s_and_b32 s{sNQ}, s{sT1}, 3")
    a.e(f"s_mul_i32 s{sT2}, s{sBeta}, 40")
    a.e(f"s_add_u32 s0, s0, s{sT2}")
    a.e(f"s_addc_u32 s1, s1, 0")
    a.e(f"s_load_dwordx2 s[{sPW}:{sPW+1}], s[0:1], 32")
    a.e(f"v_lshrrev_b32 v1, 6, v0")
    a.e(f"v_and_b32 v{vLane}, 63, v0")
    a.e(f"v_readfirstlane_b32 s{sW}, v1")
    a.e(f"s_and_b32 s{sNT}, s{sW}, 3")
    a.e(f"s_lshr_b32 s{sKH}, s{sW}, 2")
    L = vLane
    a.e(f"""
    v_lshrrev_b32 v1, 5, v{L}            ; h
    v_bfe_u32 v2, v{L}, 2, 2             ; r
    v_lshl_add_u32 v3, v1, 3, v2         ; 8h+r
    v_lshlrev_b32 v3, 8, v3
    v_xor_b32 v2, s{sNT}, v2             ; r ^ nt
    v_lshl_add_u32 v3, v2, 6, v3
    v_bfe_u32 v4, v{L}, 4, 1
    v_lshl_add_u32 v3, v4, 5, v3
    v_and_b32 v4, 1, v{L}
    v_lshl_add_u32 v3, v4, 4, v3
    v_bfe_u32 v4, v{L}, 1, 1
    v_lshl_add_u32 v3, v4, 3, v3
    s_lshl_b32 s{sT0}, s{sKH}, 13
    s_add_u32 s{sT0}, s{sT0}, 20480
    v_add_u32 v{vA0}, s{sT0}, v3
    v_lshlrev_b32 v{vLin}, 4, v{L}
    v_lshrrev_b32 v2, 4, v{L}
    v_lshlrev_b32 v3, 2, v2
    v_and_b32 v4, 15, v{L}
    v_xor_b32 v3, v3, v4
    v_lshlrev_b32 v3, 4, v3
    v_lshl_add_u32 v{vDW}, v2, 10, v3
    """)
    a.e("s_waitcnt lgkmcnt(0)")
    a.e(f"s_lshl_b32 s{sT0}, s{sBeta}, 3")
    a.e(f"s_add_u32 s{sT0}, s{sT0}, s{sB}")
    a.e(f"s_mul_i32 s{sT1}, s{sT0}, 1310720")
    srd(a, sOW, sWS, 1310720, sT1)
    a.e(f"s_lshl_b32 s{sT1}, s{sKQ}, 20")
    a.e(f"s_lshl_b32 s{sT2}, s{sNQ}, 8")
    a.e(f"s_add_u32 s{sT1}, s{sT1}, s{sT2}")
    srd(a, sWO, sPW, 0, sT1)
    a.e(f"s_sub_u32 s{sWO+2}, 4194304, s{sT1}")
    a.e(f"s_lshl_b32 s{sT1}, s{sKQ}, 4")
    a.e(f"s_add_u32 s{sT1}, s{sT1}, s{sT0}")
    a.e(f"s_lshl_b32 s{sT1}, s{sT1}, 2")
    a.e(f"s_add_u32 s{sT1}, s{sT1}, s{sNQ}")
    a.e(f"s_mul_i32 s{sT1}, s{sT1}, 81920")
    a.e(f"s_add_u32 s{sT1}, s{sT1}, {WS_P}")
    srd(a, sP, sWS, 81920, sT1)
    a.e(f"s_lshl_b32 s{sWo}, s{sKH}, 19")
    a.e(f"s_lshl_b32 s{sT1}, s{sNT}, 13")
    a.e(f"s_add_u32 s{sWo}, s{sWo}, s{sT1}")
    a.e(f"s_lshl_b32 s{sLdsW}, s{sKH}, 13")
    a.e(f"s_lshl_b32 s{sT1}, s{sNT}, 11")
    a.e(f"s_add_u32 s{sLdsW}, s{sLdsW}, s{sT1}")
    a.e(f"s_add_u32 s{sLdsW}, s{sLdsW}, 20480")
    a.e(f"s_lshl_b32 s{sLdsO}, s{sW}, 10")
    for m in range(3):
        a.e(f"s_add_u32 s{sT0}, s{sW}, {8*m}")
        a.e(f"s_cmp_ge_u32 s{sT0}, 10")
        a.e(f"s_cselect_b32 s{sT1}, 1, 0")
        a.e(f"s_mul_i32 s{sT2}, s{sT1}, 10")
        a.e(f"s_sub_u32 s{sT2}, s{sT0}, s{sT2}")
        a.e(f"s_lshr_b32 s{sT3}, s{sT2}, 1")
        a.e(f"s_lshl_b32 s{sT3}, s{sT3}, 8")
        a.e(f"s_and_b32 s{sT2}, s{sT2}, 1")
        a.e(f"s_add_u32 s{sT3}, s{sT3}, s{sT2}")
        a.e(f"s_lshl_b32 s{sT1}, s{sT1}, 5")
        a.e(f"s_add_u32 s{sT3}, s{sT3}, s{sT1}")
        a.e(f"s_lshl_b32 s{sT1}, s{sKQ}, 6")
        a.e(f"s_add_u32 s{sT3}, s{sT3}, s{sT1}")
        a.e(f"s_lshl_b32 s{44+m}, s{sT3}, 10")
    def issue(tag):
        for m in range(2):
            a.e(f"s_add_u32 s{sT0}, s{sRegD}, s{sLdsW}")
            a.e(f"s_add_u32 m0, s{sT0}, {m*1024}")
            a.e(f"s_add_u32 s{sT3}, s{sWo}, {m*4096}")
            a.e(f"buffer_load_dwordx4 v{vDW}, s[{sWO}:{sWO+3}], s{sT3} offen lds")
        for m in range(3):
            if m == 2:
                a.e(f"s_cmp_ge_u32 s{sW}, 4")
                a.e(f"s_cbranch_scc1 {name}_os_{tag}")
            a.e(f"s_add_u32 s{sT0}, s{sRegD}, s{sLdsO}")
            a.e(f"s_add_u32 m0, s{sT0}, {m*8192}")
            a.e(f"s_nop 0")
            a.e(f"buffer_load_dwordx4 v{vLin}, s[{sOW}:{sOW+3}], s{44+m} offen lds")
        a.lab(f"{name}_os_{tag}")
        a.e(f"s_add_u32 s{sWo}, s{sWo}, 32768")
        for m in range(3):
            a.e(f"s_add_u32 s{44+m}, s{44+m}, 2048")
    for p in range(3):
        a.e(f"s_mov_b32 s{sRegD}, {p*ST}")
        issue(f"p{p}")
    def stage(tag, first, wait_n, do_issue):
        a.e(f"s_waitcnt vmcnt({wait_n})")
        a.e("s_barrier")
        a.e(f"v_add_u32 v{vA}, s{sReg}, v{vA0}")
        a.e(f"s_mul_i32 s{sT0}, s{sKH}, 10240")
        a.e(f"s_add_u32 s{sT0}, s{sT0}, s{sReg}")
        a.e(f"v_add_u32 v{vLane}, s{sT0}, v{vLin}")
        def rdA(sx):
            d = vAF + 4*sx
            a.ds(f"ds_read_b64_tr_b16 v[{d}:{d+1}], v{vA} offset:{sx*4096}", ("A", sx, 0))
            a.ds(f"ds_read_b64_tr_b16 v[{d+2}:{d+3}], v{vA} offset:{sx*4096+1024}", ("A", sx, 1))
        def rdB(sx, qb):
            d = vB + (sx*5 + qb)*4
            a.ds(f"ds_read_b128 v[{d}:{d+3}], v{vLane} offset:{(qb*2+sx)*1024}", ("B", sx, qb))
        rdA(0)
        for qb in range(5): rdB(0, qb)
        rdA(1)
        for qb in range(5): rdB(1, qb)
        if do_issue: issue(tag)
        for sx in range(2):
            for qb in range(5):
                a.need(("A", sx, 0), ("A", sx, 1), ("B", sx, qb))
                d = vB + (sx*5 + qb)*4
                cop = "0" if (first and sx == 0) else f"v[{vAcc+16*qb}:{vAcc+16*qb+15}]"
                a.e(f"v_mfma_f32_32x32x16_bf16 v[{vAcc+16*qb}:{vAcc+16*qb+15}], v[{vAF+4*sx}:{vAF+4*sx+3}], v[{d}:{d+3}], {cop}")
        a.drain()
    a.e(f"s_mov_b32 s{sReg}, 0")
    a.e(f"s_mov_b32 s{sRegD}, {3*ST}")
    stamp(a, 2)
    stage("s0", True, 8, True)
    stamp(a, 3)
    a.e(f"s_mov_b32 s{sCnt}, 1")
    a.lab(f"{name}_loop")
    a.e(f"s_mov_b32 s{sRegD}, s{sReg}")
    a.e(f"s_add_u32 s{sReg}, s{sReg}, {ST}")
    a.e(f"s_cmp_eq_u32 s{sReg}, {4*ST}")
    a.e(f"s_cselect_b32 s{sReg}, 0, s{sReg}")
    stage("lp", False, 8, True)
    a.e(f"s_add_u32 s{sCnt}, s{sCnt}, 1")
    a.e(f"s_cmp_lt_u32 s{sCnt}, 13")
    a.e(f"s_cbranch_scc1 {name}_loop")
    for sg, wn in ((13, 8), (14, 4), (15, 0)):
        a.e(f"s_mov_b32 s{sReg}, {(sg % 4)*ST}")
        stage(f"s{sg}", False, wn, False)
    stamp(a, 4)
    a.e("s_barrier")
    a.nop(12)
    a.e(f"s_mul_i32 s{sT0}, s{sNT}, 20480")
    a.e(f"v_add_u32 v{vA}, s{sT0}, v{vLin}")
    a.e(f"s_cmp_eq_u32 s{sKH}, 1")
    a.e(f"s_cbranch_scc0 {name}_r0")
    for qb in range(5):
        for c in range(4):
            r = vAcc + 16*qb + 4*c
            a.e(f"ds_write_b128 v{vA}, v[{r}:{r+3}] offset:{(qb*4+c)*1024}")
    a.e("s_waitcnt lgkmcnt(0)")
    a.e("s_barrier")
    a.e(f"s_branch {name}_fin")
    a.lab(f"{name}_r0")
    a.e("s_barrier")
    for qb in range(5):
        for c in range(4):
            d = vB + 4*c
            a.e(f"ds_read_b128 v[{d}:{d+3}], v{vA} offset:{(qb*4+c)*1024}")
        a.e("s_waitcnt lgkmcnt(0)")
        for r in range(16):
            a.e(f"v_add_f32 v{vAcc+16*qb+r}, v{vAcc+16*qb+r}, v{vB+r}")
        for c in range(4):
            r = vAcc + 16*qb + 4*c
            a.e(f"s_add_u32 s{sT1}, s{sT0}, {(qb*4+c)*1024}")
            a.e(f"buffer_store_dwordx4 v[{r}:{r+3}], v{vLin}, s[{sP}:{sP+3}], s{sT1} offen")
    a.e("s_waitcnt vmcnt(0)")
    a.lab(f"{name}_fin")
    stamp(a, 5); stamp_rt(a, 6)
    stamp_store(a, sWS, sW, 7, 1, vB)
    a.lab(f"{name}_end")
    a.e("s_endpgm")
    return a.text(), NV

def gen_k3(name):
    a = Asm()
    sP, sO = 8, 12
    sWS, sOut = 16, 18
    NV = 80
    a.raw(f".globl {name}\n.p2align 8\n.type {name},@function\n{name}:")
    a.e("s_cmp_ge_u32 s2, 320")
    a.e(f"s_cbranch_scc1 {name}_end")
    a.e(f"s_load_dwordx2 s[{sWS}:{sWS+1}], s[0:1], 96")
    a.e(f"s_load_dwordx2 s[{sOut}:{sOut+1}], s[0:1], 80")
    a.e("v_lshrrev_b32 v1, 6, v0")
    a.e("v_and_b32 v2, 63, v0")
    a.e("v_readfirstlane_b32 s20, v1")
    a.e("s_lshl_b32 s21, s2, 2")
    a.e("s_add_u32 s21, s21, s20")
    a.e("s_mul_hi_u32 s22, s21, 0x33333334")
    a.e("s_mul_i32 s23, s22, 5")
    a.e("s_sub_u32 s23, s21, s23")
    a.e("s_and_b32 s24, s22, 15")
    a.e("s_lshr_b32 s25, s22, 4")
    a.e("s_lshr_b32 s26, s25, 3")
    a.e("s_and_b32 s27, s25, 7")
    a.e("v_lshlrev_b32 v3, 4, v2")
    a.e("s_mul_i32 s28, s27, 160")
    a.e("s_lshl_b32 s29, s23, 5")
    a.e("s_add_u32 s28, s28, s29")
    a.e("s_lshl_b32 s28, s28, 11")
    a.e("s_lshl_b32 s29, s26, 10")
    a.e("s_add_u32 s28, s28, s29")
    a.e("s_lshl_b32 s29, s24, 6")
    a.e("s_add_u32 s28, s28, s29")
    a.e("v_and_b32 v4, 31, v2")
    a.e("v_lshlrev_b32 v4, 11, v4")
    a.e("v_lshrrev_b32 v5, 5, v2")
    a.e("v_lshl_add_u32 v4, v5, 4, v4")
    a.e("s_waitcnt lgkmcnt(0)")
    a.e(f"s_add_u32 s8, s{sWS}, {WS_P}")
    a.e(f"s_addc_u32 s9, s{sWS+1}, 0")
    a.e(f"s_mov_b32 s10, {4*16*4*81920}")
    a.e("s_mov_b32 s11, 0x00020000")
    srd(a, sO, sOut, 8*160*1024*2)
    a.e("s_lshl_b32 s30, s21, 12")
    for kq in range(4):
        for c in range(4):
            d = 8 + (kq*4 + c)*4
            a.e(f"s_add_u32 s31, s30, {kq*64*81920 + c*1024}")
            a.e(f"buffer_load_dwordx4 v[{d}:{d+3}], v3, s[8:11], s31 offen")
    a.e("s_waitcnt vmcnt(8)")
    for r in range(16):
        a.e(f"v_add_f32 v{8+r}, v{8+r}, v{24+r}")
    a.e("s_waitcnt vmcnt(0)")
    for r in range(16):
        a.e(f"v_add_f32 v{40+r}, v{40+r}, v{56+r}")
    for r in range(16):
        a.e(f"v_add_f32 v{8+r}, v{8+r}, v{40+r}")
    for r in range(8):
        a.e(f"v_cvt_pk_bf16_f32 v{24+r}, v{8+2*r}, v{8+2*r+1}")
    a.e(f"buffer_store_dwordx4 v[24:27], v4, s[{sO}:{sO+3}], s28 offen")
    a.e(f"buffer_store_dwordx4 v[28:31], v4, s[{sO}:{sO+3}], s28 offen offset:32")
    a.e("s_waitcnt vmcnt(0)")
    a.lab(f"{name}_end")
    a.e("s_endpgm")
    return a.text(), NV
```

```python
import sys, os, ast
import common as C
from dsl import *
import k1, k23
NAME = C.NAME
HEADER = open("cdna_kernels/" + NAME + ".s.ref").read().split("; Override launch")[0]
def build(path):
    n1, n2, n3 = "attn_kernel", "oproj_kernel", "oreduce_kernel"
    t1, v1 = k1.gen_k1(n1)
    t2, v2 = k23.gen_k2(n2)
    t3, v3 = k23.gen_k3(n3)
    out = HEADER
    out += f"; @launch kernel={n1} grid=(256,1,1) block=(640,1,1) lds=163840\n"
    out += f"; @launch kernel={n2} grid=(256,1,1) block=(512,1,1) lds=147456\n"
    out += f"; @launch kernel={n3} grid=(320,1,1) block=(256,1,1) lds=0\n"
    out += '.amdgcn_target "amdgcn-amd-amdhsa--gfx950"\n.text\n'
    out += t1 + kdesc(n1, v1) + t2 + kdesc(n2, v2) + t3 + kdesc(n3, v3)
    open(path, "w").write(out)
if __name__ == "__main__":
    if "--prof" in sys.argv:
        C.PROF = True; sys.argv.remove("--prof")
    if os.environ.get("OPT"):
        k1.OPT.update(ast.literal_eval(os.environ["OPT"]))
    build(sys.argv[1] if len(sys.argv) > 1 else "cdna_kernels/" + NAME + ".s")
```

```python
from dsl import *
import common as C
from common import srd, stamp, stamp_nw, stamp_rt, stamp_store, f2u, QSCALE

OPT = dict(QNT=False, ROT=2, LAT=4, PRIO=(None, None, None), FUSE=True, WNT=False, SPIN=1 << 16,
           QW=([], [3, 4], [5, 6, 7], [0, 1, 2]), QX=([], [], [], [0, 1, 2, 3, 4]))

def gen_k1(name):
    a = Asm()
    QNT = OPT["QNT"]; LAT = OPT["LAT"]; NQ = 3
    QW, QX = OPT["QW"], OPT["QX"]
    QN = [len(QW[c]) + len(QX[c]) for c in range(4)]
    sKc = 3
    sX, sWQ, sK, sV, sO = 8, 12, 16, 20, 24
    sW, sHS, sQB, sHsW = 28, 29, 30, 31
    sL1024 = 32
    sReg, sRegD = 33, 34
    sT0, sT1, sT2, sT3 = 35, 36, 37, 38
    sCnt = 39
    sHs8k, sTile, sHsX, sHsXl = 40, 41, 42, 43
    sH0, sBeta, sB, sRegN = 44, 45, 46, 47
    sPtr = 48
    sWS = 56
    sCls, sBufA, sBufB = 58, 59, 61
    sKVs, sKVl = 4, 5
    FUSE = OPT["FUSE"]
    sPOut, sPWo, sDbg, sHpl = 6, 62, 96, 100
    WS_F = 64 << 20
    WSLOT = [32768, 49152, 65536, 0]
    OSLOT0 = 81920
    vO, vQ, vS, vNM, vF = 0, 64, 96, 112, 128
    vA = 144
    vA0K, vA0V, vL0, vL1, vMX, vMX2 = 148, 149, 150, 151, 152, 153
    vT0, vT1 = 154, 155
    vDK, vDV, vDX, vDW, vXB, vOst = 156, 157, 158, 159, 160, 161
    vLane = 162
    NV = 168
    R = 32768
    L = vLane
    uid = [0]
    def newlab(p):
        uid[0] += 1
        return f"{name}_{p}{uid[0]}"

    a.raw(f".globl {name}\n.p2align 8\n.type {name},@function\n{name}:")
    a.e("s_cmp_ge_u32 s2, 256")
    a.e(f"s_cbranch_scc1 {name}_end")
    stamp_rt(a, 0); stamp(a, 1)
    a.e(f"s_load_dwordx2 s[{sWS}:{sWS+1}], s[0:1], 96")
    if FUSE:
        a.e(f"s_load_dwordx2 s[{sPOut}:{sPOut+1}], s[0:1], 80")
        a.e(f"s_load_dwordx2 s[{sDbg}:{sDbg+1}], s[0:1], 88")
    a.e(f"s_and_b32 s{sT0}, s2, 7")
    a.e(f"s_lshr_b32 s{sT1}, s2, 3")
    a.e(f"s_lshr_b32 s{sBeta}, s{sT0}, 2")
    a.e(f"s_mul_i32 s{sT2}, s{sBeta}, 40")
    a.e(f"s_add_u32 s0, s0, s{sT2}")
    a.e(f"s_addc_u32 s1, s1, 0")
    a.e(f"s_load_dwordx8 s[{sPtr}:{sPtr+7}], s[0:1], 0")
    if FUSE: a.e(f"s_load_dwordx2 s[{sPWo}:{sPWo+1}], s[0:1], 32")
    a.e(f"s_and_b32 s{sT0}, s{sT0}, 3")
    a.e(f"s_lshr_b32 s{sB}, s{sT1}, 2")
    a.e(f"s_and_b32 s{sT1}, s{sT1}, 3")
    a.e(f"s_mov_b32 s{sHpl}, s{sT1}")
    a.e(f"s_lshl_b32 s{sT0}, s{sT0}, 2")
    a.e(f"s_add_u32 s{sH0}, s{sT0}, s{sT1}")
    a.e(f"s_lshl_b32 s{sH0}, s{sH0}, 1")
    a.e(f"v_lshrrev_b32 v1, 6, v0")
    a.e(f"v_and_b32 v{L}, 63, v0")
    a.e(f"v_readfirstlane_b32 s{sW}, v1")
    a.e(f"s_and_b32 s{sHS}, s{sW}, 1")
    a.e(f"s_lshr_b32 s{sQB}, s{sW}, 1")
    a.e(f"s_sub_u32 s{sCls}, s{sQB}, 1")
    a.e(f"s_cmp_lt_u32 s{sW}, 4")
    a.e(f"s_cselect_b32 s{sCls}, 0, s{sCls}")
    a.e(f"s_and_b32 s{sT0}, s{sW}, 3")
    a.e(f"s_lshl_b32 s{sL1024}, s{sT0}, 10")
    a.e(f"""
    v_lshrrev_b32 v2, 4, v{L}            ; i>>4
    v_lshlrev_b32 v3, 2, v2
    v_and_b32 v4, 15, v{L}
    v_xor_b32 v3, v3, v4
    v_lshlrev_b32 v3, 4, v3
    v_lshl_add_u32 v{vDV}, v2, 8, v3     ; V: (i>>4)*256 + swz*16
    v_lshl_add_u32 v{vDW}, v2, 13, v3
    v_and_b32 v2, 3, v2                  ; (i>>4)&3
    v_and_b32 v4, 3, v{L}
    v_xor_b32 v2, v2, v4
    v_lshlrev_b32 v2, 4, v2
    v_lshrrev_b32 v3, 2, v{L}
    v_lshl_add_u32 v{vDX}, v3, 10, v2    ; x: (i>>2)*1024 + swz*16
    s_lshl_b32 s{sT1}, s{sT0}, 3
    v_lshrrev_b32 v2, 3, v{L}            ; i>>3
    v_add_u32 v2, s{sT1}, v2             ; row = 8l + (i>>3)
    v_bfe_u32 v3, v2, 1, 3
    v_and_b32 v4, 7, v{L}
    v_xor_b32 v3, v3, v4
    v_lshlrev_b32 v3, 4, v3
    v_lshl_add_u32 v{vDK}, v2, 8, v3
    s_lshl_b32 s{sHs8k}, s{sHS}, 13
    s_lshl_b32 s{sHsW}, s{sHS}, 8
    s_mul_i32 s{sHsX}, s{sHS}, 81920
    s_mul_i32 s{sHsXl}, s{sHS}, 5120
    s_mul_i32 s{sKc}, s{sB}, {OPT["ROT"]}
    s_and_b32 s{sKc}, s{sKc}, 15
    """)
    a.e("s_waitcnt lgkmcnt(0)")
    if FUSE:
        a.e(f"s_mov_b32 s{sDbg+2}, 256")
        a.e(f"s_mov_b32 s{sDbg+3}, 0x00020000")
        a.e(f"s_cmp_eq_u32 s{sW}, 0")
        a.e(f"s_cbranch_scc0 {name}_noinit")
        a.c("wave 0 clears this workgroup's two hand-off words, then counts the workgroup into its group")
        a.e(f"s_mov_b32 s{sT0}, {WS_F}")
        srd(a, sX, sWS, 65536, sT0)
        a.e(f"s_lshl_b32 s{sT0}, s2, 8")
        a.e(f"v_lshlrev_b32 v2, 7, v{L}")
        a.e(f"v_add_u32 v2, s{sT0}, v2")
        a.e(f"v_mov_b32 v3, 0")
        a.e(f"s_mov_b64 exec, 3")
        a.e(f"buffer_store_dword v3, v2, s[{sX}:{sX+3}], 0 offen sc1")
        a.e(f"s_waitcnt vmcnt(0)")
        a.e(f"s_lshl_b32 s{sT0}, s{sBeta}, 3")
        a.e(f"s_add_u32 s{sT0}, s{sT0}, s{sB}")
        a.e(f"s_lshl_b32 s{sT0}, s{sT0}, 2")
        a.e(f"s_mov_b64 exec, 1")
        a.e(f"v_mov_b32 v2, s{sT0}")
        a.e(f"v_mov_b32 v3, 1")
        a.e(f"buffer_atomic_add v3, v2, s[{sDbg}:{sDbg+3}], 0 offen sc1")
        a.e(f"s_mov_b64 exec, -1")
        a.lab(f"{name}_noinit")
    a.e(f"s_mul_i32 s{sT0}, s{sB}, 163840")
    srd(a, sX, sPtr+0, 163840, sT0)
    a.e(f"s_lshl_b32 s{sT0}, s{sH0}, 8")
    srd(a, sWQ, sPtr+6, 0, sT0)
    a.e(f"s_sub_u32 s{sWQ+2}, 4194304, s{sT0}")
    a.e(f"s_lshl_b32 s{sT0}, s{sB}, 5")
    a.e(f"s_add_u32 s{sT0}, s{sT0}, s{sH0}")
    a.e(f"s_lshl_b32 s{sT0}, s{sT0}, 17")
    srd(a, sK, sPtr+2, 262144, sT0)
    srd(a, sV, sPtr+4, 262144, sT0)
    a.e(f"s_lshl_b32 s{sT0}, s{sBeta}, 3")
    a.e(f"s_add_u32 s{sT0}, s{sT0}, s{sB}")
    a.e(f"s_mul_i32 s{sT0}, s{sT0}, 1310720")
    srd(a, sO, sWS, 1310720, sT0)

    def sadd(dst, base, imm):
        if isinstance(base, tuple): a.e(f"s_add_u32 {dst}, s{base[1]}, {imm}")
        else: a.e(f"s_mov_b32 {dst}, {base + imm}")
    def sadds(dst, base, sreg):
        if isinstance(base, tuple): a.e(f"s_add_u32 {dst}, s{base[1]}, s{sreg}")
        else: a.e(f"s_add_u32 {dst}, s{sreg}, {base}")
    def vadd(dst, base, imm, vreg):
        if isinstance(base, tuple):
            if imm:
                a.e(f"s_add_u32 s{sT2}, s{base[1]}, {imm & 0xffffffff}")
                a.e(f"v_add_u32 v{dst}, s{sT2}, v{vreg}")
            else: a.e(f"v_add_u32 v{dst}, s{base[1]}, v{vreg}")
        else: a.e(f"v_add_u32 v{dst}, {base + imm}, v{vreg}")
    def dma(voff, sr, m0base, m0imm, sbase, simm, nt):
        a.e(f"s_add_u32 m0, s{m0base}, {m0imm}")
        a.e(f"s_add_u32 s{sT3}, s{sbase}, {simm}")
        a.e(f"buffer_load_dwordx4 v{voff}, s[{sr}:{sr+3}], s{sT3} offen {'nt ' if nt else ''}lds")
    def cls_block(c, body):
        lab = newlab(f"c{c}_")
        a.e(f"s_cmp_eq_u32 s{sCls}, {c}")
        a.e(f"s_cbranch_scc0 {lab}")
        body()
        a.lab(lab)

    def kv_pieces(region, tile_off, parts):
        sadds(f"s{sT0}", region, sL1024)
        sadds(f"s{sT1}", tile_off, sL1024)
        sadd(f"s{sT2}", tile_off, 0)
        for p in parts:
            hs2 = p & 1
            if p < 2:
                for half in (0, 1):
                    dma(vDK, sK, sT0, hs2*8192 + half*4096, sT2, hs2*131072 + half*128, True)
            else:
                for nn in (0, 4):
                    dma(vDV, sV, sT0, 16384 + hs2*8192 + nn*1024, sT1, hs2*131072 + nn*1024, True)
    def q_pieces(c, buf):
        if QW[c]:
            a.e(f"s_lshl_b32 s{sT0}, s{sKc}, 18")
            a.e(f"s_add_u32 s{sT0}, s{sT0}, s{sHsW}")
            sadds(f"s{sT1}", buf, sHs8k)
            for n in QW[c]:
                dma(vDW, sWQ, sT1, 10240 + n*1024, sT0, n*32768, QNT)
        if QX[c]:
            a.e(f"s_lshl_b32 s{sT0}, s{sKc}, 6")
            a.e(f"s_add_u32 s{sT0}, s{sT0}, s{sHsX}")
            sadds(f"s{sT1}", buf, sHsXl)
            for m in QX[c]:
                dma(vDX, sX, sT1, m*1024, sT0, m*16384, QNT)
    def kc_next():
        a.e(f"s_add_u32 s{sKc}, s{sKc}, 1")
        a.e(f"s_and_b32 s{sKc}, s{sKc}, 15")

    QB = [2*R, 3*R, 4*R]
    qbuf = lambda sg: QB[(sg + 2) % 3]
    QSET = [dict(B=(96, 100), A=104), dict(B=(136, 140), A=64)]
    def q_reads(par, buf):
        st = QSET[par]
        vadd(vA, buf, -6144, vA0V)
        vadd(vT0, buf, 0, vXB)
        a.e(f"v_xor_b32 v{vA+1}, 64, v{vA}")
        a.e(f"v_xor_b32 v{vA+2}, 128, v{vA}")
        a.e(f"v_xor_b32 v{vA+3}, 192, v{vA}")
        a.e(f"v_xor_b32 v{vT1}, 32, v{vT0}")
        L_ = []
        for sx in range(2):
            b = st["B"][sx]
            L_.append(f"ds_read_b128 v[{b}:{b+3}], v{vT0 if sx == 0 else vT1}")
            for t in range(4):
                d = st["A"] + (sx*4 + t)*4
                L_.append(f"ds_read_b64_tr_b16 v[{d}:{d+1}], v{vA+t} offset:{sx*4096}")
                L_.append(f"ds_read_b64_tr_b16 v[{d+2}:{d+3}], v{vA+t} offset:{sx*4096+1024}")
        return L_
    def q_mfmas(par, rd, fq=False):
        st = QSET[par]; nrd = 0
        for i in range(8):
            sx, t = i >> 2, i & 3
            d = st["A"] + (sx*4 + t)*4
            b = st["B"][sx]
            a.e(f"v_mfma_f32_32x32x16_bf16 v[{vO+16*t}:{vO+16*t+15}], v[{d}:{d+3}], v[{b}:{b+3}], v[{vO+16*t}:{vO+16*t+15}]")
            if rd:
                if nrd >= 12: a.e("s_waitcnt lgkmcnt(9)")
                for _ in range(3):
                    if rd: a.e(rd.pop(0)); nrd += 1
            if fq and (i & 1): stamp_nw(a, 11 + (i >> 1))

    def lane_addresses():
        a.e(f"""
        v_lshrrev_b32 v1, 5, v{L}            ; h
        v_bfe_u32 v2, v{L}, 2, 2             ; r
        v_lshl_add_u32 v3, v1, 3, v2         ; 8h+r
        v_lshlrev_b32 v3, 8, v3
        v_lshl_add_u32 v3, v2, 6, v3         ; + r*64
        v_bfe_u32 v4, v{L}, 4, 1
        v_lshl_add_u32 v3, v4, 5, v3         ; + g*32
        v_and_b32 v4, 1, v{L}
        v_lshl_add_u32 v3, v4, 4, v3         ; + c0*16
        v_bfe_u32 v4, v{L}, 1, 1
        v_lshl_add_u32 v3, v4, 3, v3         ; + c1*8
        s_add_u32 s{sT1}, s{sHs8k}, 16384
        v_add_u32 v{vA0V}, s{sT1}, v3
        v_and_b32 v2, 0x13, v{L}
        v_and_b32 v3, 4, v{L}
        v_lshl_or_b32 v2, v3, 1, v2
        v_and_b32 v3, 8, v{L}
        v_lshrrev_b32 v3, 1, v3
        v_or_b32 v2, v2, v3                  ; rho
        v_bfe_u32 v3, v2, 1, 3
        v_xor_b32 v3, v3, v1
        v_lshlrev_b32 v3, 4, v3
        v_lshl_add_u32 v3, v2, 7, v3
        v_add_u32 v{vA0K}, s{sHs8k}, v3
        v_and_b32 v2, 31, v{L}
        v_bfe_u32 v3, v{L}, 2, 2
        v_xor_b32 v3, v3, v1
        v_lshlrev_b32 v3, 4, v3
        v_lshl_add_u32 v3, v2, 6, v3
        s_lshl_b32 s{sT0}, s{sQB}, 11
        v_add_u32 v{vXB}, s{sT0}, v3
        v_lshlrev_b32 v{vOst}, 4, v{L}
        """)

    seq = []
    def push(key, n4): seq.append((key, list(n4)))
    def wait_for(key):
        idx = max(i for i, e in enumerate(seq) if e[0] == key)
        for c in range(4):
            if not any(e[0] == key and e[1][c] for e in seq): continue
            n = min(63, sum(e[1][c] for e in seq[idx+1:]))
            cls_block(c, lambda n=n: a.e(f"s_waitcnt vmcnt({n})"))

    for c in range(1, 4):
        a.e(f"s_cmp_eq_u32 s{sCls}, {c}")
        a.e(f"s_cbranch_scc1 {name}_cls{c}")
    for c in range(4):
        a.lab(f"{name}_cls{c}")
        for sg in range(NQ):
            q_pieces(c, qbuf(sg)); kc_next()
        if c == 0: stamp(a, 2)
        else: stamp(a, 2)
        lane_addresses()
        for r in range(64): a.e(f"v_mov_b32 v{vO+r}, 0")
        if QN[c]: a.e(f"s_waitcnt vmcnt({2*QN[c]})")
        a.e("s_barrier")
        rd = q_reads(0, qbuf(0))
        for i, r_ in enumerate(rd):
            if i == 14: a.e("s_waitcnt lgkmcnt(8)")
            a.e(r_)
        a.e("s_waitcnt lgkmcnt(0)")
        stamp(a, 3)
        a.e(f"s_mov_b32 s{sBufA}, {qbuf(0)}")
        a.e(f"s_mov_b32 s{sBufB}, {qbuf(1)}")
        a.e(f"s_mov_b32 s{sCnt}, 0")
        a.e(f"s_mov_b32 s{sKVs}, 0")
        a.e(f"s_mov_b32 s{sKVl}, 0")
        a.lab(f"{name}_ql{c}")
        for par in range(2):
            if QN[c]: a.e(f"s_waitcnt vmcnt({QN[c]})")
            a.e("s_barrier")
            fq = OPT.get("FINEQ") and par == 0
            if fq: stamp_nw(a, 10)
            if OPT.get("FINEQ") and par == 1: stamp_nw(a, 15)
            rd = q_reads(1 - par, ("s", sBufB))
            if QN[c]: q_pieces(c, ("s", sBufA))
            kc_next()
            q_mfmas(par, rd, fq)
            a.e(f"s_mov_b32 s{sBufA}, s{sBufB}")
            a.e(f"s_add_u32 s{sBufB}, s{sBufB}, {R}")
            a.e(f"s_cmp_eq_u32 s{sBufB}, {5*R}")
            a.e(f"s_cselect_b32 s{sBufB}, {2*R}, s{sBufB}")
            if c == 0:
                lab = newlab("nokv")
                a.e(f"s_cmp_lt_u32 s{sCnt}, 4")
                a.e(f"s_cbranch_scc0 {lab}")
                a.e(f"s_add_u32 s{sT0}, s{sKVl}, s{sL1024}")
                if par == 0:
                    for half in (0, 1):
                        dma(vDK, sK, sT0, half*4096, sKVs, half*128, True)
                else:
                    a.e(f"s_add_u32 s{sT1}, s{sKVs}, s{sL1024}")
                    for nn in (0, 4):
                        dma(vDV, sV, sT0, 16384 + nn*1024, sT1, nn*1024, True)
                    a.e(f"s_add_u32 s{sT0}, s{sCnt}, 1")
                    a.e(f"s_lshr_b32 s{sT1}, s{sT0}, 1")
                    a.e(f"s_and_b32 s{sT0}, s{sT0}, 1")
                    a.e(f"s_lshl_b32 s{sKVs}, s{sT1}, 13")
                    a.e(f"s_lshl_b32 s{sT2}, s{sT0}, 17")
                    a.e(f"s_add_u32 s{sKVs}, s{sKVs}, s{sT2}")
                    a.e(f"s_lshl_b32 s{sKVl}, s{sT1}, 15")
                    a.e(f"s_lshl_b32 s{sT2}, s{sT0}, 13")
                    a.e(f"s_add_u32 s{sKVl}, s{sKVl}, s{sT2}")
                a.lab(lab)
            a.e("s_waitcnt lgkmcnt(0)")
        a.e(f"s_add_u32 s{sCnt}, s{sCnt}, 1")
        a.e(f"s_cmp_lt_u32 s{sCnt}, 6")
        a.e(f"s_cbranch_scc1 {name}_ql{c}")
        if c < 3: a.e(f"s_branch {name}_qtail")
    a.lab(f"{name}_qtail")
    stamp(a, 9)
    for i in range(4): push(("kv", i >> 1), [4, 0, 0, 0])
    for sg in (13, 14): push(("q", sg), QN)
    def q_iter(sg, kv):
        rd = []
        if sg < 15: wait_for(("q", sg + 1))
        a.e("s_barrier")
        if sg < 15: rd = q_reads((sg + 1) & 1, qbuf(sg + 1))
        if sg + NQ < 16:
            for c in range(4):
                if QN[c]: cls_block(c, lambda c=c: q_pieces(c, qbuf(sg + NQ)))
            push(("q", sg + NQ), QN)
        q_mfmas(sg & 1, rd)
        if kv:
            tile, parts = kv
            cls_block(0, lambda: kv_pieces((tile % 5)*R, tile*8192, parts))
            push(("kv", tile), [2*len(parts), 0, 0, 0])
        a.e("s_waitcnt lgkmcnt(0)")
    q_iter(12, None); q_iter(13, (2, [0, 1])); q_iter(14, (2, [2, 3])); q_iter(15, None)
    stamp(a, 4)
    if FUSE:
        a.e(f"s_lshl_b32 s{sT0}, s{sHpl}, 8")
        srd(a, sX, sPWo, 0, sT0)
        a.e(f"s_sub_u32 s{sX+2}, 4194304, s{sT0}")
        a.e(f"v_lshrrev_b32 v{vT0}, 4, v{L}")
        a.e(f"v_mul_u32_u24 v{vT0}, 768, v{vT0}")
        a.e(f"v_add_u32 v{vDW}, v{vT0}, v{vDV}")
    a.nop(12)
    a.e(f"s_mov_b32 s{sT0}, {hex(f2u(QSCALE))}")
    for r in range(64):
        a.e(f"v_mul_f32 v{vO+r}, s{sT0}, v{vO+r}")
    for r in range(32):
        a.e(f"v_cvt_pk_bf16_f32 v{vQ+r}, v{vO+2*r}, v{vO+2*r+1}")

    def k_addr(reg):
        vadd(vA, reg, 0, vA0K)
        a.e(f"v_xor_b32 v{vA+1}, 32, v{vA}")
        a.e(f"v_xor_b32 v{vA+2}, 64, v{vA}")
        a.e(f"v_xor_b32 v{vA+3}, 96, v{vA}")
    def rdK(j):
        f = vF + (j & 3)*4
        a.ds(f"ds_read_b128 v[{f}:{f+3}], v{vA+(j&3)} offset:{(j>>2)*4096}", ("K", j))
    def setprio(p):
        if p is not None: a.e(f"s_setprio {p}")
    S = lambda r: f"v{vS+r}"
    def att_body(tag, first, reg, regn):
        PQ, PS, PP = OPT["PRIO"]
        fine = False
        def rdV(sx, t):
            f = vF + t*4
            a.ds(f"ds_read_b64_tr_b16 v[{f}:{f+1}], v{vA+t} offset:{sx*4096}", ("V", sx, t, 0))
            a.ds(f"ds_read_b64_tr_b16 v[{f+2}:{f+3}], v{vA+t} offset:{sx*4096+1024}", ("V", sx, t, 1))
        setprio(PQ)
        for j in range(8):
            a.need(("K", j))
            f = vF + (j & 3)*4
            cop = f"v[{vS}:{vS+15}]" if j else ("0" if first else f"v[{vNM}:{vNM+15}]")
            a.e(f"v_mfma_f32_32x32x16_bf16 v[{vS}:{vS+15}], v[{f}:{f+3}], v[{vQ+4*j}:{vQ+4*j+3}], {cop}")
            if j < 4: rdK(j+4)
            if j == 3:
                vadd(vA, reg, 0, vA0V)
                a.e(f"v_xor_b32 v{vA+1}, 64, v{vA}")
                a.e(f"v_xor_b32 v{vA+2}, 128, v{vA}")
                a.e(f"v_xor_b32 v{vA+3}, 192, v{vA}")
            if j >= 4: rdV(0, j - 4)
        setprio(PS)
        a.nop(10)
        a.e(f"v_max3_f32 v{vMX}, {S(0)}, {S(1)}, {S(2)}")
        a.e(f"v_max3_f32 v{vMX2}, {S(3)}, {S(4)}, {S(5)}")
        a.e(f"v_max3_f32 v{vMX}, v{vMX}, {S(6)}, {S(7)}")
        a.e(f"v_max3_f32 v{vMX2}, v{vMX2}, {S(8)}, {S(9)}")
        a.e(f"v_max3_f32 v{vMX}, v{vMX}, {S(10)}, {S(11)}")
        a.e(f"v_max3_f32 v{vMX2}, v{vMX2}, {S(12)}, {S(13)}")
        a.e(f"v_max3_f32 v{vMX}, v{vMX}, {S(14)}, {S(15)}")
        a.e(f"v_max_f32 v{vMX}, v{vMX}, v{vMX2}")
        if first:
            a.e(f"v_mov_b32 v{vMX2}, v{vMX}")
            a.nop(2)
            a.e(f"v_permlane32_swap_b32 v{vMX}, v{vMX2}")
            a.nop(1)
            a.e(f"v_max_f32 v{vMX}, v{vMX}, v{vMX2}")
            for r in range(16):
                a.e(f"v_sub_f32 {S(r)}, {S(r)}, v{vMX}")
            for r in range(16):
                a.e(f"v_sub_f32 v{vNM+r}, 0, v{vMX}")
            a.e(f"v_mov_b32 v{vL0}, 0")
            a.e(f"v_mov_b32 v{vL1}, 0")
        else:
            a.e(f"v_cmp_lt_f32 vcc, 0x41200000, v{vMX}")
            a.e(f"s_cbranch_vccnz {name}_rare_{tag}")
            a.lab(f"{name}_back_{tag}")
        ex = lambda r: a.e(f"v_exp_f32 {S(r)}, {S(r)}")
        ad = lambda r: a.e(f"v_add_f32 v{vL0 + (r&1)}, v{vL0 + (r&1)}, {S(r)}")
        pk = lambda d: a.e(f"v_cvt_pk_bf16_f32 {S(d)}, {S(2*d)}, {S(2*d+1)}")
        ex(0)
        for r in range(1, 8): ex(r); ad(r-1)
        pk(0); ad(7); pk(1); pk(2); pk(3)
        setprio(PP)
        a.nop(2)
        def pv(sx, t):
            a.need(("V", sx, t, 0), ("V", sx, t, 1))
            f = vF + t*4
            cop = "0" if (first and sx == 0) else f"v[{vO+16*t}:{vO+16*t+15}]"
            a.e(f"v_mfma_f32_32x32x16_bf16 v[{vO+16*t}:{vO+16*t+15}], v[{f}:{f+3}], v[{vS+4*sx}:{vS+4*sx+3}], {cop}")
        for t in range(4):
            pv(0, t); rdV(1, t)
            if t: ad(7 + 2*t)
            ex(8 + 2*t); ex(9 + 2*t); ad(8 + 2*t)
            if t: pk(3 + t)
        ad(15); pk(7)
        if regn is not None: k_addr(regn)
        else: a.nop(2)
        for t in range(4):
            pv(1, t)
            if regn is not None: rdK(t)
        if regn is None: a.drain()

    def rare(tag):
        a.lab(f"{name}_rare_{tag}")
        a.c("raise the subtracted max to the running row max and rescale what was accumulated")
        a.e(f"v_mov_b32 v{vMX2}, v{vMX}")
        a.nop(2)
        a.e(f"v_permlane32_swap_b32 v{vMX}, v{vMX2}")
        a.nop(1)
        a.e(f"v_max_f32 v{vMX}, v{vMX}, v{vMX2}")
        a.e(f"v_max_f32 v{vMX}, 0, v{vMX}")
        a.e(f"v_sub_f32 v{vMX2}, 0, v{vMX}")
        a.e(f"v_exp_f32 v{vMX2}, v{vMX2}")
        for r in range(16):
            a.e(f"v_sub_f32 v{vS+r}, v{vS+r}, v{vMX}")
        for r in range(16):
            a.e(f"v_sub_f32 v{vNM+r}, v{vNM+r}, v{vMX}")
        for r in range(64):
            a.e(f"v_mul_f32 v{vO+r}, v{vO+r}, v{vMX2}")
        a.e(f"v_mul_f32 v{vL0}, v{vL0}, v{vMX2}")
        a.e(f"v_mul_f32 v{vL1}, v{vL1}, v{vMX2}")
        a.e(f"s_branch {name}_back_{tag}")

    wait_for(("kv", 0))
    a.e("s_barrier")
    k_addr(0)
    for j in range(4): rdK(j)
    wait_for(("kv", 1))
    a.e("s_barrier")
    att_body("t0", True, 0, R)
    first_fill = list(range(3, LAT + 1))
    def fill0():
        for t in first_fill: kv_pieces((t % 5)*R, t*8192, [0, 1, 2, 3])
    cls_block(0, fill0)
    if C.PROF: a.e("s_waitcnt lgkmcnt(0)")
    stamp(a, 5)
    entry_state = list(a.lg)
    a.e(f"s_mov_b32 s{sCnt}, 1")
    a.e(f"s_mov_b32 s{sTile}, {LAT*8192}")
    a.e(f"s_mov_b32 s{sRegD}, {(LAT % 5)*R}")
    a.e(f"s_mov_b32 s{sReg}, 0")
    a.e(f"s_mov_b32 s{sRegN}, {R}")
    a.e(f"s_cmp_eq_u32 s{sCls}, 0")
    a.e(f"s_cbranch_scc0 {name}_aloop1")
    for var in range(2):
        a.lg = list(entry_state)
        a.lab(f"{name}_aloop{var}")
        if var == 0:
            a.e(f"s_cmp_le_u32 s{sCnt}, {16 - LAT}")
            a.e(f"s_cbranch_scc0 {name}_atailw")
            a.e(f"s_waitcnt vmcnt({8*(LAT-2)})")
            a.lab(f"{name}_atailb")
        a.e("s_barrier")
        regs = (sReg, sRegN) + ((sRegD,) if var == 0 else ())
        for sr in regs:
            a.e(f"s_add_u32 s{sr}, s{sr}, {R}")
            a.e(f"s_cmp_eq_u32 s{sr}, {5*R}")
            a.e(f"s_cselect_b32 s{sr}, 0, s{sr}")
        att_body(f"lp{var}", False, ("s", sReg), ("s", sRegN))
        if var == 0:
            a.e(f"s_add_u32 s{sTile}, s{sTile}, 8192")
            a.e(f"s_cmp_le_u32 s{sCnt}, {15 - LAT}")
            a.e(f"s_cbranch_scc0 {name}_anofill")
            kv_pieces(("s", sRegD), ("s", sTile), [0, 1, 2, 3])
            if FUSE:
                a.e(f"s_branch {name}_afilled")
                a.lab(f"{name}_anofill")
                a.e(f"s_cmp_eq_u32 s{sCnt}, 14")
                a.e(f"s_cbranch_scc1 {name}_afilled")
                a.e(f"s_branch {name}_awo")
                a.lab(f"{name}_afilled")
            else:
                a.lab(f"{name}_anofill")
        assert a.lg == entry_state
        a.e(f"s_add_u32 s{sCnt}, s{sCnt}, 1")
        a.e(f"s_cmp_lt_u32 s{sCnt}, 15")
        a.e(f"s_cbranch_scc1 {name}_aloop{var}")
        if var == 0: a.e(f"s_branch {name}_alast")
    a.lab(f"{name}_alast")
    a.e("s_barrier")
    att_body("t15", False, (15 % 5)*R, None)
    stamp(a, 6)
    a.e(f"v_add_f32 v{vL0}, v{vL0}, v{vL1}")
    a.nop(1)
    a.e(f"v_mov_b32 v{vL1}, v{vL0}")
    a.nop(2)
    a.e(f"v_permlane32_swap_b32 v{vL0}, v{vL1}")
    a.nop(1)
    a.e(f"v_add_f32 v{vL0}, v{vL0}, v{vL1}")
    a.nop(1)
    a.e(f"v_rcp_f32 v{vL0}, v{vL0}")
    a.nop(12)
    a.e(f"s_lshl_b32 s{sT0}, s{sQB}, 18")
    a.e(f"s_add_u32 s{sT1}, s{sH0}, s{sHS}")
    a.e(f"s_lshl_b32 s{sT1}, s{sT1}, 13")
    a.e(f"s_add_u32 s{sT0}, s{sT0}, s{sT1}")
    if FUSE:
        a.e(f"s_mul_i32 s{sT2}, s{sHS}, 10240")
        a.e(f"s_lshl_b32 s{sT3}, s{sQB}, 11")
        a.e(f"s_add_u32 s{sT2}, s{sT2}, s{sT3}")
        a.e(f"s_add_u32 s{sT2}, s{sT2}, {OSLOT0}")
        a.e(f"v_add_u32 v{vT0}, s{sT2}, v{vOst}")
    for fr in range(8):
        for r in range(8):
            a.e(f"v_mul_f32 v{vO+8*fr+r}, v{vO+8*fr+r}, v{vL0}")
        for r in range(4):
            a.e(f"v_cvt_pk_bf16_f32 v{vQ+4*fr+r}, v{vO+8*fr+2*r}, v{vO+8*fr+2*r+1}")
        a.e(f"s_add_u32 s{sT1}, s{sT0}, {fr*1024}")
        a.e(f"buffer_store_dwordx4 v[{vQ+4*fr}:{vQ+4*fr+3}], v{vOst}, s[{sO}:{sO+3}], s{sT1} offen{' sc1' if FUSE else ''}")
        if FUSE:
            a.e(f"ds_write_b128 v{vT0}, v[{vQ+4*fr}:{vQ+4*fr+3}] offset:{(fr >> 1)*20480 + (fr & 1)*1024}")
    if FUSE:
        import tail
        tail.gen_tail(a, name, locals())
    else:
        a.e("s_waitcnt vmcnt(0)")
    stamp(a, 7); stamp_rt(a, 8)
    stamp_store(a, sWS, sW, 16, 0, vT0)
    a.e(f"s_branch {name}_end")
    WNT = "nt " if OPT["WNT"] else ""
    def wo_stage_c0(sg):
        a.e(f"s_lshl_b32 s{sT0}, s{sH0}, 17")
        a.e(f"s_lshl_b32 s{sT1}, s{sL1024}, 2")
        a.e(f"s_add_u32 s{sT0}, s{sT0}, s{sT1}")
        for kh in (0, 1):
            for nn in (0, 4):
                a.e(f"s_add_u32 m0, s{sL1024}, {WSLOT[sg] + kh*8192 + nn*1024}")
                a.e(f"s_add_u32 s{sT3}, s{sT0}, {kh*131072 + sg*32768 + nn*4096}")
                a.e(f"buffer_load_dwordx4 v{vDW}, s[{sX}:{sX+3}], s{sT3} offen {WNT}lds")
    if FUSE:
        assert LAT == 4
        a.lab(f"{name}_awo")
        a.e(f"s_cmp_eq_u32 s{sCnt}, 12")
        a.e(f"s_cbranch_scc0 {name}_awo13")
        wo_stage_c0(0); wo_stage_c0(1)
        a.e(f"s_branch {name}_afilled")
        a.lab(f"{name}_awo13")
        wo_stage_c0(2)
        a.e(f"s_branch {name}_afilled")
    a.lab(f"{name}_atailw")
    for k in range(LAT - 2):
        t = 17 - LAT + k
        if k < LAT - 3:
            lab = newlab("tw")
            a.e(f"s_cmp_eq_u32 s{sCnt}, {t}")
            a.e(f"s_cbranch_scc0 {lab}")
        extra = ({13: 8, 14: 12}[t] if FUSE else 0)
        a.e(f"s_waitcnt vmcnt({8*(15 - (t + 1)) + extra})")
        a.e(f"s_branch {name}_atailb")
        if k < LAT - 3: a.lab(lab)
    for tag in ["lp0", "lp1", "t15"]:
        rare(tag)
    a.lab(f"{name}_end")
    a.e("s_endpgm")
    return a.text(), NV
```

```python
from dsl import *
import common as C
from common import srd, stamp, stamp_nw

def gen_tail(a, name, g):
    OPT = g["OPT"] if "OPT" in g else __import__("k1").OPT
    sW, sHS, sQB, sH0, sHpl, sBeta, sB, sWS = g["sW"], g["sHS"], g["sQB"], g["sH0"], g["sHpl"], g["sBeta"], g["sB"], g["sWS"]
    sT0, sT1, sT2, sT3, sCnt, sCls = g["sT0"], g["sT1"], g["sT2"], g["sT3"], g["sCnt"], g["sCls"]
    sWo, sO, sDbg, sPOut = g["sX"], g["sO"], g["sDbg"], g["sPOut"]
    sP, sOut, sF = g["sWQ"], g["sK"], g["sV"]
    sWsl, sOsl, sNT, sKH = g["sReg"], g["sRegD"], g["sRegN"], g["sTile"]
    sIss, sHb, sWd, sOd = g["sBufA"], g["sBufB"], g["sKVs"], g["sKVl"]
    sSpin = g["sHs8k"]
    vOst, vDW, vA0V, vT0, vT1, L = g["vOst"], g["vDW"], g["vA0V"], g["vT0"], g["vT1"], g["L"]
    WSLOT, OSLOT0, WS_F = g["WSLOT"], g["OSLOT0"], g["WS_F"]
    WNT = "nt " if OPT["WNT"] else ""
    SPIN = OPT["SPIN"]
    vAcc, vB, vAF, vAW, vBW, vA0W, vPo = 0, 80, 120, 128, 129, 130, 131
    nbar = [0]
    def barrier(): a.e("s_barrier")

    a.e(f"s_mov_b32 s{sT0}, {WS_F}")
    srd(a, sF, sWS, 65536, sT0)
    a.e(f"s_lshl_b32 s{sT0}, s{sBeta}, 3")
    a.e(f"s_add_u32 s{sT0}, s{sT0}, s{sB}")
    a.e(f"s_lshl_b32 s{sT0}, s{sT0}, 2")
    a.e(f"s_add_u32 s{sT0}, s{sT0}, s{sHpl}")
    a.e(f"s_mul_i32 s{sT0}, s{sT0}, 81920")
    a.e(f"s_add_u32 s{sT0}, s{sT0}, {C.WS_P}")
    srd(a, sP, sWS, 3*64*81920 + 81920, sT0)
    srd(a, sOut, sPOut, 8*160*1024*2)
    a.e(f"s_cmp_ge_u32 s{sW}, 8")
    a.e(f"s_cbranch_scc1 {name}_oload")

    a.e(f"s_and_b32 s{sNT}, s{sW}, 3")
    a.e(f"s_lshr_b32 s{sKH}, s{sW}, 2")
    a.e(f"s_lshl_b32 s{sT0}, s{sHS}, 13")
    a.e(f"s_add_u32 s{sT0}, s{sT0}, 16384")
    a.e(f"v_subrev_u32 v{vA0W}, s{sT0}, v{vA0V}")
    a.e(f"s_lshl_b32 s{sT0}, s{sNT}, 6")
    a.e(f"v_xor_b32 v{vA0W}, s{sT0}, v{vA0W}")
    a.e(f"s_lshl_b32 s{sT0}, s{sKH}, 13")
    a.e(f"v_add_u32 v{vA0W}, s{sT0}, v{vA0W}")
    a.e(f"s_mul_i32 s{sKH}, s{sKH}, 10240")
    a.e("s_waitcnt vmcnt(8) lgkmcnt(0)")
    barrier()
    stamp_nw(a, 10)
    def addr():
        a.e(f"v_add_u32 v{vAW}, s{sWsl}, v{vA0W}")
        a.e(f"s_add_u32 s{sT0}, s{sOsl}, s{sKH}")
        a.e(f"v_add_u32 v{vBW}, s{sT0}, v{vOst}")
    def reads(sx):
        d = vAF + 4*sx
        R = [(f"ds_read_b64_tr_b16 v[{d}:{d+1}], v{vAW} offset:{sx*4096}", ("A", sx, 0)),
             (f"ds_read_b64_tr_b16 v[{d+2}:{d+3}], v{vAW} offset:{sx*4096+1024}", ("A", sx, 1))]
        for qb in range(5):
            b = vB + (sx*5 + qb)*4
            R.append((f"ds_read_b128 v[{b}:{b+3}], v{vBW} offset:{(qb*2+sx)*1024}", ("B", sx, qb)))
        return R
    def half(cset, rd, zero=False, use_need=True):
        plan = {0: 3, 1: 2, 2: 2}
        for qb in range(5):
            if use_need: a.need(("A", cset, 0), ("A", cset, 1), ("B", cset, qb))
            b = vB + (cset*5 + qb)*4
            cop = "0" if zero else f"v[{vAcc+16*qb}:{vAcc+16*qb+15}]"
            a.e(f"v_mfma_f32_32x32x16_bf16 v[{vAcc+16*qb}:{vAcc+16*qb+15}], v[{vAF+4*cset}:{vAF+4*cset+3}], v[{b}:{b+3}], {cop}")
            for _ in range(plan.get(qb, 0)):
                if rd: a.ds(*rd.pop(0))
        assert not rd
    def next_slots():
        a.e(f"s_add_u32 s{sOsl}, s{sOsl}, 20480")
        a.e(f"s_cmp_eq_u32 s{sOsl}, {OSLOT0 + 4*20480}")
        a.e(f"s_cselect_b32 s{sOsl}, {OSLOT0}, s{sOsl}")
        a.e(f"s_cmp_eq_u32 s{sWsl}, 0")
        a.e(f"s_cselect_b32 s{sT0}, 16384, s{sWsl}")
        a.e(f"s_add_u32 s{sT0}, s{sT0}, 16384")
        a.e(f"s_cmp_eq_u32 s{sT0}, 81920")
        a.e(f"s_cselect_b32 s{sWsl}, 0, s{sT0}")
    a.e(f"s_mov_b32 s{sWsl}, {WSLOT[0]}")
    a.e(f"s_mov_b32 s{sOsl}, {OSLOT0}")
    addr()
    for r_ in reads(0): a.ds(*r_)
    half(0, reads(1), zero=True)
    a.drain()
    a.e(f"s_mov_b32 s{sCnt}, 1")
    a.lab(f"{name}_oloop")
    a.e("s_waitcnt vmcnt(0)")
    barrier()
    next_slots()
    addr()
    half(1, reads(0), use_need=False)
    half(0, reads(1))
    a.drain()
    a.e(f"s_add_u32 s{sCnt}, s{sCnt}, 1")
    a.e(f"s_cmp_lt_u32 s{sCnt}, 16")
    a.e(f"s_cbranch_scc1 {name}_oloop")
    half(1, [], use_need=False)
    stamp_nw(a, 13)
    barrier()
    a.nop(12)
    a.e(f"s_mul_i32 s{sT0}, s{sNT}, 20480")
    a.e(f"v_add_u32 v{vAW}, s{sT0}, v{vOst}")
    a.e(f"s_cmp_eq_u32 s{sKH}, 0")
    a.e(f"s_cbranch_scc0 {name}_pk1")
    for keep, give, tag in (((0, 1, 2), (3, 4), "0"), ((3, 4), (0, 1, 2), "1")):
        a.lab(f"{name}_pk{tag}")
        for qb in give:
            for c in range(4):
                r = vAcc + 16*qb + 4*c
                a.e(f"ds_write_b128 v{vAW}, v[{r}:{r+3}] offset:{(qb*4+c)*1024}")
        a.e("s_waitcnt lgkmcnt(0)")
        barrier()
        a.e(f"s_lshr_b32 s{sT1}, s{sH0}, 3")
        a.e(f"s_mul_i32 s{sT1}, s{sT1}, {64*81920}")
        a.e(f"s_add_u32 s{sT1}, s{sT1}, s{sT0}")
        for qb in keep:
            for c in range(4):
                d = vB + 4*c
                a.e(f"ds_read_b128 v[{d}:{d+3}], v{vAW} offset:{(qb*4+c)*1024}")
            a.e("s_waitcnt lgkmcnt(0)")
            for r in range(16):
                a.e(f"v_add_f32 v{vAcc+16*qb+r}, v{vAcc+16*qb+r}, v{vB+r}")
            for c in range(4):
                r = vAcc + 16*qb + 4*c
                a.e(f"s_add_u32 s{sT2}, s{sT1}, {(qb*4+c)*1024}")
                a.e(f"buffer_store_dwordx4 v[{r}:{r+3}], v{vOst}, s[{sP}:{sP+3}], s{sT2} offen sc1")
        a.e(f"s_branch {name}_pdone")

    a.lab(f"{name}_oload")
    a.e(f"s_sub_u32 s{sKH}, s{sW}, 8")
    a.e(f"s_lshl_b32 s{sT0}, s{sHpl}, 1")
    a.e(f"s_sub_u32 s{sHb}, s{sH0}, s{sT0}")
    a.e(f"s_add_u32 s{sHb}, s{sHb}, s{sKH}")
    a.e("s_waitcnt lgkmcnt(0)")
    barrier()
    stamp_nw(a, 10)
    def w_pieces(slot):
        a.e(f"s_lshl_b32 s{sT1}, s{sKH}, 13")
        if isinstance(slot, tuple): a.e(f"s_add_u32 s{sT1}, s{sT1}, s{slot[1]}")
        else: a.e(f"s_add_u32 s{sT1}, s{sT1}, {slot}")
        for n in range(8):
            a.e(f"s_add_u32 m0, s{sT1}, {n*1024}")
            a.e(f"s_add_u32 s{sT3}, s{sT0}, {n*4096}")
            a.e(f"buffer_load_dwordx4 v{vDW}, s[{sWo}:{sWo+3}], s{sT3} offen {WNT}lds")
    a.e(f"s_add_u32 s{sT0}, s{sH0}, s{sKH}")
    a.e(f"s_lshl_b32 s{sT0}, s{sT0}, 17")
    a.e(f"s_add_u32 s{sT0}, s{sT0}, {3*32768}")
    w_pieces(WSLOT[3])
    a.e("s_waitcnt vmcnt(8)")
    barrier()
    stamp_nw(a, 11)
    a.e(f"s_cmp_eq_u32 s{sW}, 8")
    a.e(f"s_cbranch_scc0 {name}_nopub")
    a.e(f"s_lshl_b32 s{sT0}, s2, 8")
    a.e(f"v_mov_b32 v{vT0}, s{sT0}")
    a.e(f"v_mov_b32 v{vT1}, 1")
    a.e("s_mov_b64 exec, 1")
    a.e(f"buffer_store_dword v{vT1}, v{vT0}, s[{sF}:{sF+3}], 0 offen sc1")
    a.e("s_mov_b64 exec, -1")
    a.lab(f"{name}_nopub")
    def poll(tag, srdreg, voff, nl, want):
        a.e(f"s_mov_b32 s{sSpin}, {SPIN}")
        a.e(f"s_mov_b64 exec, {(1 << nl) - 1}")
        a.lab(f"{name}_poll{tag}")
        a.e(f"buffer_load_dword v{vT1}, v{voff}, s[{srdreg}:{srdreg+3}], 0 offen sc1")
        a.e("s_waitcnt vmcnt(0)")
        a.e(f"v_cmp_ne_u32 vcc, {want}, v{vT1}")
        a.e("s_nop 4")
        a.e(f"s_cbranch_vccz {name}_pollok{tag}")
        a.e("s_sleep 2")
        a.e(f"s_sub_u32 s{sSpin}, s{sSpin}, 1")
        a.e(f"s_cmp_lg_u32 s{sSpin}, 0")
        a.e(f"s_cbranch_scc1 {name}_poll{tag}")
        a.lab(f"{name}_pollok{tag}")
        a.e("s_mov_b64 exec, -1")
    a.e(f"s_lshl_b32 s{sT0}, s{sBeta}, 3")
    a.e(f"s_add_u32 s{sT0}, s{sT0}, s{sB}")
    a.e(f"s_lshl_b32 s{sT0}, s{sT0}, 2")
    a.e(f"v_mov_b32 v{vPo}, s{sT0}")
    poll("i", sDbg, vPo, 1, 16)
    a.e(f"s_andn2_b32 s{sT0}, s2, 0x18")
    a.e(f"v_lshlrev_b32 v{vPo}, 3, v{L}")
    a.e(f"v_or_b32 v{vPo}, s{sT0}, v{vPo}")
    a.e(f"v_lshlrev_b32 v{vPo}, 8, v{vPo}")
    poll("o", sF, vPo, 4, 1)
    stamp_nw(a, 12)
    a.e(f"s_mov_b32 s{sIss}, 4")
    a.e(f"s_mov_b32 s{sWd}, {WSLOT[0]}")
    a.e(f"s_mov_b32 s{sOd}, {OSLOT0}")
    def issue_stage():
        a.e(f"s_lshr_b32 s{sT0}, s{sIss}, 2")
        a.e(f"s_add_u32 s{sT0}, s{sT0}, s{sHpl}")
        a.e(f"s_and_b32 s{sT0}, s{sT0}, 3")
        a.e(f"s_lshl_b32 s{sT0}, s{sT0}, 1")
        a.e(f"s_add_u32 s{sT2}, s{sT0}, s{sHb}")
        a.e(f"s_and_b32 s{sCnt}, s{sIss}, 3")
        a.e(f"s_lshl_b32 s{sT0}, s{sT2}, 13")
        a.e(f"s_lshl_b32 s{sT1}, s{sCnt}, 11")
        a.e(f"s_add_u32 s{sT0}, s{sT0}, s{sT1}")
        a.e(f"s_mul_i32 s{sT1}, s{sKH}, 10240")
        a.e(f"s_add_u32 s{sT1}, s{sT1}, s{sOd}")
        for qb in range(5):
            for sx in range(2):
                a.e(f"s_add_u32 m0, s{sT1}, {(qb*2+sx)*1024}")
                a.e(f"s_add_u32 s{sT3}, s{sT0}, {qb*262144 + sx*1024}")
                a.e(f"buffer_load_dwordx4 v{vOst}, s[{sO}:{sO+3}], s{sT3} offen sc1 lds")
        a.e(f"s_lshl_b32 s{sT0}, s{sT2}, 17")
        a.e(f"s_lshl_b32 s{sT1}, s{sCnt}, 15")
        a.e(f"s_add_u32 s{sT0}, s{sT0}, s{sT1}")
        w_pieces(("s", sWd))
        a.e(f"s_add_u32 s{sIss}, s{sIss}, 1")
        a.e(f"s_add_u32 s{sOd}, s{sOd}, 20480")
        a.e(f"s_cmp_eq_u32 s{sOd}, {OSLOT0 + 4*20480}")
        a.e(f"s_cselect_b32 s{sOd}, {OSLOT0}, s{sOd}")
        a.e(f"s_cmp_eq_u32 s{sWd}, 0")
        a.e(f"s_cselect_b32 s{sT0}, 16384, s{sWd}")
        a.e(f"s_add_u32 s{sT0}, s{sT0}, 16384")
        a.e(f"s_cmp_eq_u32 s{sT0}, 81920")
        a.e(f"s_cselect_b32 s{sWd}, 0, s{sT0}")
    issue_stage()
    barrier()
    issue_stage()
    a.lab(f"{name}_lloop")
    a.e("s_waitcnt vmcnt(36)")
    barrier()
    issue_stage()
    a.e(f"s_cmp_lt_u32 s{sIss}, 16")
    a.e(f"s_cbranch_scc1 {name}_lloop")
    a.e("s_waitcnt vmcnt(36)"); barrier()
    a.e("s_waitcnt vmcnt(18)"); barrier()
    a.e("s_waitcnt vmcnt(0)"); barrier()
    stamp_nw(a, 13)
    barrier()
    barrier()

    a.lab(f"{name}_pdone")
    a.e("s_waitcnt vmcnt(0)")
    barrier()
    stamp_nw(a, 14)
    a.e(f"s_cmp_eq_u32 s{sW}, 8")
    a.e(f"s_cbranch_scc0 {name}_nopoll")
    a.e(f"s_lshl_b32 s{sT0}, s2, 8")
    a.e(f"s_add_u32 s{sT0}, s{sT0}, 128")
    a.e(f"v_mov_b32 v{vT0}, s{sT0}")
    a.e(f"v_mov_b32 v{vT1}, 1")
    a.e("s_mov_b64 exec, 1")
    a.e(f"buffer_store_dword v{vT1}, v{vT0}, s[{sF}:{sF+3}], 0 offen sc1")
    a.e("s_mov_b64 exec, -1")
    a.e(f"s_andn2_b32 s{sT0}, s2, 3")
    a.e(f"v_or_b32 v{vPo}, s{sT0}, v{L}")
    a.e(f"v_lshlrev_b32 v{vPo}, 8, v{vPo}")
    a.e(f"v_add_u32 v{vPo}, 128, v{vPo}")
    poll("p", sF, vPo, 4, 1)
    a.lab(f"{name}_nopoll")
    barrier()
    stamp_nw(a, 15)
    a.e(f"s_lshr_b32 s{sT0}, s{sH0}, 3")
    a.e(f"s_lshl_b32 s{sT1}, s{sQB}, 2")
    a.e(f"s_add_u32 s{sT0}, s{sT0}, s{sT1}")
    a.e(f"s_lshl_b32 s{sT1}, s{sT0}, 12")
    a.e(f"s_lshl_b32 s{sT2}, s{sHS}, 11")
    a.e(f"s_add_u32 s{sT1}, s{sT1}, s{sT2}")
    for kq in range(4):
        for c in range(2):
            d = 8 + (kq*2 + c)*4
            a.e(f"s_add_u32 s{sT3}, s{sT1}, {kq*64*81920 + c*1024}")
            a.e(f"buffer_load_dwordx4 v[{d}:{d+3}], v{vOst}, s[{sP}:{sP+3}], s{sT3} offen sc1")
    a.e(f"s_mul_i32 s{sT1}, s{sT0}, 52")
    a.e(f"s_lshr_b32 s{sT1}, s{sT1}, 8")
    a.e(f"s_mul_i32 s{sT2}, s{sT1}, 5")
    a.e(f"s_sub_u32 s{sT2}, s{sT0}, s{sT2}")
    a.e(f"s_mul_i32 s{sT0}, s{sB}, 160")
    a.e(f"s_lshl_b32 s{sT2}, s{sT2}, 5")
    a.e(f"s_add_u32 s{sT0}, s{sT0}, s{sT2}")
    a.e(f"s_lshl_b32 s{sT0}, s{sT0}, 11")
    a.e(f"s_lshl_b32 s{sT2}, s{sBeta}, 10")
    a.e(f"s_add_u32 s{sT0}, s{sT0}, s{sT2}")
    a.e(f"s_lshl_b32 s{sT2}, s{sHpl}, 8")
    a.e(f"s_add_u32 s{sT0}, s{sT0}, s{sT2}")
    a.e(f"s_lshl_b32 s{sT2}, s{sT1}, 6")
    a.e(f"s_add_u32 s{sT0}, s{sT0}, s{sT2}")
    a.e(f"s_lshl_b32 s{sT2}, s{sHS}, 5")
    a.e(f"s_add_u32 s{sT0}, s{sT0}, s{sT2}")
    a.e(f"v_and_b32 v4, 31, v{L}")
    a.e(f"v_lshlrev_b32 v4, 11, v4")
    a.e(f"v_lshrrev_b32 v5, 5, v{L}")
    a.e(f"v_lshl_add_u32 v4, v5, 4, v4")
    a.e("s_waitcnt vmcnt(4)")
    for r in range(8): a.e(f"v_add_f32 v{8+r}, v{8+r}, v{16+r}")
    a.e("s_waitcnt vmcnt(0)")
    for r in range(8): a.e(f"v_add_f32 v{24+r}, v{24+r}, v{32+r}")
    for r in range(8): a.e(f"v_add_f32 v{8+r}, v{8+r}, v{24+r}")
    for r in range(4): a.e(f"v_cvt_pk_bf16_f32 v{40+r}, v{8+2*r}, v{8+2*r+1}")
    a.e(f"buffer_store_dwordx4 v[40:43], v4, s[{sOut}:{sOut+3}], s{sT0} offen")
    a.e("s_waitcnt vmcnt(0)")
```

```python
import sys, os, ast
import common as C
from dsl import *
import k1, k23
NAME = C.NAME
HEADER = open("cdna_kernels/" + NAME + ".s.ref").read().split("; Override launch")[0]
def build(path):
    n1, n2, n3 = "attn_kernel", "oproj_kernel", "oreduce_kernel"
    if not k1.OPT["FUSE"]: t1, v1 = k1.gen_k1(n1)
    t2, v2 = k23.gen_k2(n2)
    t3, v3 = k23.gen_k3(n3)
    out = HEADER
    if k1.OPT["FUSE"]:
        n1 = NAME + "_kernel"
        t1, v1 = k1.gen_k1(n1)
        out += "; @launch grid=(256,1,1) block=(640,1,1) lds=163840\n"
        out += '.amdgcn_target "amdgcn-amd-amdhsa--gfx950"\n.text\n' + t1 + kdesc(n1, v1)
        open(path, "w").write(out)
        return
    out += f"; @launch kernel={n1} grid=(256,1,1) block=(640,1,1) lds=163840\n"
    out += f"; @launch kernel={n2} grid=(256,1,1) block=(512,1,1) lds=147456\n"
    out += f"; @launch kernel={n3} grid=(320,1,1) block=(256,1,1) lds=0\n"
    out += '.amdgcn_target "amdgcn-amd-amdhsa--gfx950"\n.text\n'
    out += t1 + kdesc(n1, v1) + t2 + kdesc(n2, v2) + t3 + kdesc(n3, v3)
    open(path, "w").write(out)
if __name__ == "__main__":
    if "--prof" in sys.argv:
        C.PROF = True; sys.argv.remove("--prof")
    if os.environ.get("OPT"):
        k1.OPT.update(ast.literal_eval(os.environ["OPT"]))
    build(sys.argv[1] if len(sys.argv) > 1 else "cdna_kernels/" + NAME + ".s")
```

```python
from dsl import *
import common as C
from common import srd, stamp, stamp_nw, stamp_rt, stamp_store, f2u, QSCALE

OPT = dict(QNT=False, ROT=2, LAT=4, PRIO=(None, None, None), FUSE=True, WNT=False, SPIN=1 << 16,
           QW=([], [0, 1, 2, 3], [], [4, 5, 6, 7], []), QX=([], [0, 1], [], [2, 3, 4], []), QLATE=(0, 0, 0, 0, 0))

def gen_k1(name):
    a = Asm()
    QNT = OPT["QNT"]; LAT = OPT["LAT"]; NQ = 3
    QW, QX = OPT["QW"], OPT["QX"]
    NC = 5
    QLATE = OPT["QLATE"]
    QN = [len(QW[c]) + len(QX[c]) for c in range(NC)]
    sKc = 3
    sX, sWQ, sK, sV, sO = 8, 12, 16, 20, 24
    sW, sHS, sQB, sHsW = 28, 29, 30, 31
    sL1024 = 32
    sReg, sRegD = 33, 34
    sT0, sT1, sT2, sT3 = 35, 36, 37, 38
    sCnt = 39
    sHs8k, sTile, sHsX, sHsXl = 40, 41, 42, 43
    sH0, sBeta, sB, sRegN = 44, 45, 46, 47
    sPtr = 48
    sWS = 56
    sCls, sBufA, sBufB = 30, 59, 61
    sKVs, sKVl = 4, 5
    FUSE = OPT["FUSE"]
    sPOut, sPWo, sDbg, sHpl = 6, 62, 96, 100
    WS_F = 64 << 20
    WSLOT = [32768, 49152, 65536, 0]
    OSLOT0 = 81920
    vO, vQ, vS, vNM, vF = 0, 64, 96, 112, 128
    vA = 144
    vA0K, vA0V, vL0, vL1, vMX, vMX2 = 148, 149, 150, 151, 152, 153
    vT0, vT1 = 154, 155
    vDK, vDV, vDX, vDW, vXB, vOst = 156, 157, 158, 159, 160, 161
    vLane = 162
    NV = 168
    R = 32768
    L = vLane
    uid = [0]
    def newlab(p):
        uid[0] += 1
        return f"{name}_{p}{uid[0]}"

    a.raw(f".globl {name}\n.p2align 8\n.type {name},@function\n{name}:")
    a.e("s_cmp_ge_u32 s2, 256")
    a.e(f"s_cbranch_scc1 {name}_end")
    stamp_rt(a, 0); stamp(a, 1)
    a.e(f"s_load_dwordx2 s[{sWS}:{sWS+1}], s[0:1], 96")
    if FUSE:
        a.e(f"s_load_dwordx2 s[{sPOut}:{sPOut+1}], s[0:1], 80")
        a.e(f"s_load_dwordx2 s[{sDbg}:{sDbg+1}], s[0:1], 88")
    a.e(f"s_and_b32 s{sT0}, s2, 7")
    a.e(f"s_lshr_b32 s{sT1}, s2, 3")
    a.e(f"s_lshr_b32 s{sBeta}, s{sT0}, 2")
    a.e(f"s_mul_i32 s{sT2}, s{sBeta}, 40")
    a.e(f"s_add_u32 s0, s0, s{sT2}")
    a.e(f"s_addc_u32 s1, s1, 0")
    a.e(f"s_load_dwordx8 s[{sPtr}:{sPtr+7}], s[0:1], 0")
    if FUSE: a.e(f"s_load_dwordx2 s[{sPWo}:{sPWo+1}], s[0:1], 32")
    a.e(f"s_and_b32 s{sT0}, s{sT0}, 3")
    a.e(f"s_lshr_b32 s{sB}, s{sT1}, 2")
    a.e(f"s_and_b32 s{sT1}, s{sT1}, 3")
    a.e(f"s_mov_b32 s{sHpl}, s{sT1}")
    a.e(f"s_lshl_b32 s{sT0}, s{sT0}, 2")
    a.e(f"s_add_u32 s{sH0}, s{sT0}, s{sT1}")
    a.e(f"s_lshl_b32 s{sH0}, s{sH0}, 1")
    a.e(f"v_lshrrev_b32 v1, 6, v0")
    a.e(f"v_and_b32 v{L}, 63, v0")
    a.e(f"v_readfirstlane_b32 s{sW}, v1")
    a.e(f"s_and_b32 s{sHS}, s{sW}, 1")
    a.e(f"s_lshr_b32 s{sQB}, s{sW}, 1")
    a.e(f"s_and_b32 s{sT0}, s{sW}, 3")
    a.e(f"s_lshl_b32 s{sL1024}, s{sT0}, 10")
    a.e(f"""
    v_lshrrev_b32 v2, 4, v{L}            ; i>>4
    v_lshlrev_b32 v3, 2, v2
    v_and_b32 v4, 15, v{L}
    v_xor_b32 v3, v3, v4
    v_lshlrev_b32 v3, 4, v3
    v_lshl_add_u32 v{vDV}, v2, 8, v3     ; V: (i>>4)*256 + swz*16
    v_lshl_add_u32 v{vDW}, v2, 13, v3
    v_and_b32 v2, 3, v2                  ; (i>>4)&3
    v_and_b32 v4, 3, v{L}
    v_xor_b32 v2, v2, v4
    v_lshlrev_b32 v2, 4, v2
    v_lshrrev_b32 v3, 2, v{L}
    v_lshl_add_u32 v{vDX}, v3, 10, v2    ; x: (i>>2)*1024 + swz*16
    s_lshl_b32 s{sT1}, s{sT0}, 3
    v_lshrrev_b32 v2, 3, v{L}            ; i>>3
    v_add_u32 v2, s{sT1}, v2             ; row = 8l + (i>>3)
    v_bfe_u32 v3, v2, 1, 3
    v_and_b32 v4, 7, v{L}
    v_xor_b32 v3, v3, v4
    v_lshlrev_b32 v3, 4, v3
    v_lshl_add_u32 v{vDK}, v2, 8, v3
    s_lshl_b32 s{sHs8k}, s{sHS}, 13
    s_lshl_b32 s{sHsW}, s{sHS}, 8
    s_mul_i32 s{sHsX}, s{sHS}, 81920
    s_mul_i32 s{sHsXl}, s{sHS}, 5120
    s_mul_i32 s{sKc}, s{sB}, {OPT["ROT"]}
    s_and_b32 s{sKc}, s{sKc}, 15
    """)
    a.e("s_waitcnt lgkmcnt(0)")
    if FUSE:
        a.e(f"s_mov_b32 s{sDbg+2}, 256")
        a.e(f"s_mov_b32 s{sDbg+3}, 0x00020000")
        a.e(f"s_cmp_eq_u32 s{sW}, 0")
        a.e(f"s_cbranch_scc0 {name}_noinit")
        a.c("wave 0 clears this workgroup's two hand-off words, then counts the workgroup into its group")
        a.e(f"s_mov_b32 s{sT0}, {WS_F}")
        srd(a, sX, sWS, 65536, sT0)
        a.e(f"s_lshl_b32 s{sT0}, s2, 8")
        a.e(f"v_lshlrev_b32 v2, 7, v{L}")
        a.e(f"v_add_u32 v2, s{sT0}, v2")
        a.e(f"v_mov_b32 v3, 0")
        a.e(f"s_mov_b64 exec, 3")
        a.e(f"buffer_store_dword v3, v2, s[{sX}:{sX+3}], 0 offen sc1")
        a.e(f"s_waitcnt vmcnt(0)")
        a.e(f"s_lshl_b32 s{sT0}, s{sBeta}, 3")
        a.e(f"s_add_u32 s{sT0}, s{sT0}, s{sB}")
        a.e(f"s_lshl_b32 s{sT0}, s{sT0}, 2")
        a.e(f"s_mov_b64 exec, 1")
        a.e(f"v_mov_b32 v2, s{sT0}")
        a.e(f"v_mov_b32 v3, 1")
        a.e(f"buffer_atomic_add v3, v2, s[{sDbg}:{sDbg+3}], 0 offen sc1")
        a.e(f"s_mov_b64 exec, -1")
        a.lab(f"{name}_noinit")
    a.e(f"s_mul_i32 s{sT0}, s{sB}, 163840")
    srd(a, sX, sPtr+0, 163840, sT0)
    a.e(f"s_lshl_b32 s{sT0}, s{sH0}, 8")
    srd(a, sWQ, sPtr+6, 0, sT0)
    a.e(f"s_sub_u32 s{sWQ+2}, 4194304, s{sT0}")
    a.e(f"s_lshl_b32 s{sT0}, s{sB}, 5")
    a.e(f"s_add_u32 s{sT0}, s{sT0}, s{sH0}")
    a.e(f"s_lshl_b32 s{sT0}, s{sT0}, 17")
    srd(a, sK, sPtr+2, 262144, sT0)
    srd(a, sV, sPtr+4, 262144, sT0)
    a.e(f"s_lshl_b32 s{sT0}, s{sBeta}, 3")
    a.e(f"s_add_u32 s{sT0}, s{sT0}, s{sB}")
    a.e(f"s_mul_i32 s{sT0}, s{sT0}, 1310720")
    srd(a, sO, sWS, 1310720, sT0)

    def sadd(dst, base, imm):
        if isinstance(base, tuple): a.e(f"s_add_u32 {dst}, s{base[1]}, {imm}")
        else: a.e(f"s_mov_b32 {dst}, {base + imm}")
    def sadds(dst, base, sreg):
        if isinstance(base, tuple): a.e(f"s_add_u32 {dst}, s{base[1]}, s{sreg}")
        else: a.e(f"s_add_u32 {dst}, s{sreg}, {base}")
    def vadd(dst, base, imm, vreg):
        if isinstance(base, tuple):
            if imm:
                a.e(f"s_add_u32 s{sT2}, s{base[1]}, {imm & 0xffffffff}")
                a.e(f"v_add_u32 v{dst}, s{sT2}, v{vreg}")
            else: a.e(f"v_add_u32 v{dst}, s{base[1]}, v{vreg}")
        else: a.e(f"v_add_u32 v{dst}, {base + imm}, v{vreg}")
    def dma(voff, sr, m0base, m0imm, sbase, simm, nt):
        a.e(f"s_add_u32 m0, s{m0base}, {m0imm}")
        a.e(f"s_add_u32 s{sT3}, s{sbase}, {simm}")
        a.e(f"buffer_load_dwordx4 v{voff}, s[{sr}:{sr+3}], s{sT3} offen {'nt ' if nt else ''}lds")
    def cls_block(c, body):
        lab = newlab(f"c{c}_")
        a.e(f"s_cmp_eq_u32 s{sCls}, {c}")
        a.e(f"s_cbranch_scc0 {lab}")
        body()
        a.lab(lab)

    def lo4_block(body):
        lab = newlab("lo4_")
        a.e(f"s_cmp_lt_u32 s{sW}, 4")
        a.e(f"s_cbranch_scc0 {lab}")
        body()
        a.lab(lab)
    def kv_pieces(region, tile_off, parts):
        sadds(f"s{sT0}", region, sL1024)
        sadds(f"s{sT1}", tile_off, sL1024)
        sadd(f"s{sT2}", tile_off, 0)
        for p in parts:
            hs2 = p & 1
            if p < 2:
                for half in (0, 1):
                    dma(vDK, sK, sT0, hs2*8192 + half*4096, sT2, hs2*131072 + half*128, True)
            else:
                for nn in (0, 4):
                    dma(vDV, sV, sT0, 16384 + hs2*8192 + nn*1024, sT1, hs2*131072 + nn*1024, True)
    def q_pieces(c, buf):
        if QW[c]:
            a.e(f"s_lshl_b32 s{sT0}, s{sKc}, 18")
            a.e(f"s_add_u32 s{sT0}, s{sT0}, s{sHsW}")
            sadds(f"s{sT1}", buf, sHs8k)
            for n in QW[c]:
                dma(vDW, sWQ, sT1, 10240 + n*1024, sT0, n*32768, QNT)
        if QX[c]:
            a.e(f"s_lshl_b32 s{sT0}, s{sKc}, 6")
            a.e(f"s_add_u32 s{sT0}, s{sT0}, s{sHsX}")
            sadds(f"s{sT1}", buf, sHsXl)
            for m in QX[c]:
                dma(vDX, sX, sT1, m*1024, sT0, m*16384, QNT)
    def kc_next():
        a.e(f"s_add_u32 s{sKc}, s{sKc}, 1")
        a.e(f"s_and_b32 s{sKc}, s{sKc}, 15")

    QB = [2*R, 3*R, 4*R]
    qbuf = lambda sg: QB[(sg + 2) % 3]
    QSET = [dict(B=(96, 100), A=104), dict(B=(136, 140), A=64)]
    def q_reads(par, buf):
        st = QSET[par]
        vadd(vA, buf, -6144, vA0V)
        vadd(vT0, buf, 0, vXB)
        a.e(f"v_xor_b32 v{vA+1}, 64, v{vA}")
        a.e(f"v_xor_b32 v{vA+2}, 128, v{vA}")
        a.e(f"v_xor_b32 v{vA+3}, 192, v{vA}")
        a.e(f"v_xor_b32 v{vT1}, 32, v{vT0}")
        L_ = []
        for sx in range(2):
            b = st["B"][sx]
            L_.append(f"ds_read_b128 v[{b}:{b+3}], v{vT0 if sx == 0 else vT1}")
            for t in range(4):
                d = st["A"] + (sx*4 + t)*4
                L_.append(f"ds_read_b64_tr_b16 v[{d}:{d+1}], v{vA+t} offset:{sx*4096}")
                L_.append(f"ds_read_b64_tr_b16 v[{d+2}:{d+3}], v{vA+t} offset:{sx*4096+1024}")
        return L_
    def q_mfmas(par, rd, fq=False):
        st = QSET[par]; nrd = 0
        for i in range(8):
            sx, t = i >> 2, i & 3
            d = st["A"] + (sx*4 + t)*4
            b = st["B"][sx]
            a.e(f"v_mfma_f32_32x32x16_bf16 v[{vO+16*t}:{vO+16*t+15}], v[{d}:{d+3}], v[{b}:{b+3}], v[{vO+16*t}:{vO+16*t+15}]")
            if rd:
                if nrd >= 12: a.e("s_waitcnt lgkmcnt(9)")
                for _ in range(3):
                    if rd: a.e(rd.pop(0)); nrd += 1
            if fq and (i & 1): stamp_nw(a, 11 + (i >> 1))

    def lane_addresses():
        a.e(f"""
        v_lshrrev_b32 v1, 5, v{L}            ; h
        v_bfe_u32 v2, v{L}, 2, 2             ; r
        v_lshl_add_u32 v3, v1, 3, v2         ; 8h+r
        v_lshlrev_b32 v3, 8, v3
        v_lshl_add_u32 v3, v2, 6, v3         ; + r*64
        v_bfe_u32 v4, v{L}, 4, 1
        v_lshl_add_u32 v3, v4, 5, v3         ; + g*32
        v_and_b32 v4, 1, v{L}
        v_lshl_add_u32 v3, v4, 4, v3         ; + c0*16
        v_bfe_u32 v4, v{L}, 1, 1
        v_lshl_add_u32 v3, v4, 3, v3         ; + c1*8
        s_add_u32 s{sT1}, s{sHs8k}, 16384
        v_add_u32 v{vA0V}, s{sT1}, v3
        v_and_b32 v2, 0x13, v{L}
        v_and_b32 v3, 4, v{L}
        v_lshl_or_b32 v2, v3, 1, v2
        v_and_b32 v3, 8, v{L}
        v_lshrrev_b32 v3, 1, v3
        v_or_b32 v2, v2, v3                  ; rho
        v_bfe_u32 v3, v2, 1, 3
        v_xor_b32 v3, v3, v1
        v_lshlrev_b32 v3, 4, v3
        v_lshl_add_u32 v3, v2, 7, v3
        v_add_u32 v{vA0K}, s{sHs8k}, v3
        v_and_b32 v2, 31, v{L}
        v_bfe_u32 v3, v{L}, 2, 2
        v_xor_b32 v3, v3, v1
        v_lshlrev_b32 v3, 4, v3
        v_lshl_add_u32 v3, v2, 6, v3
        s_lshl_b32 s{sT0}, s{sQB}, 11
        v_add_u32 v{vXB}, s{sT0}, v3
        v_lshlrev_b32 v{vOst}, 4, v{L}
        """)

    seq = []
    def push(key, n4): seq.append((key, list(n4)))
    def wait_for(key):
        idx = max(i for i, e in enumerate(seq) if e[0] == key)
        for c in range(NC):
            if not any(e[0] == key and e[1][c] for e in seq): continue
            n = min(63, sum(e[1][c] for e in seq[idx+1:]))
            cls_block(c, lambda n=n: a.e(f"s_waitcnt vmcnt({n})"))

    for c in range(1, NC):
        a.e(f"s_cmp_eq_u32 s{sCls}, {c}")
        a.e(f"s_cbranch_scc1 {name}_cls{c}")
    for c in range(NC):
        a.lab(f"{name}_cls{c}")
        for sg in range(NQ):
            q_pieces(c, qbuf(sg)); kc_next()
        if OPT.get("QTOUCH") and c in (2, 4):
            a.c("pull this workgroup's share of the XCD group's x / Wq lines into L2 (one dword per 128-byte line)")
            if c == 2:
                a.e(f"s_mul_i32 s{sT0}, s{sHpl}, 40960")
                a.e(f"s_mul_i32 s{sT1}, s{sHS}, 20480")
                a.e(f"s_add_u32 s{sT0}, s{sT0}, s{sT1}")
                a.e(f"v_lshlrev_b32 v5, 7, v{L}")
                for m in range(3):
                    a.e(f"s_add_u32 s{sT1}, s{sT0}, {m*8192}")
                    if m == 2: a.e("s_mov_b64 exec, 0xffffffff")
                    a.e(f"buffer_load_dword v{163+m}, v5, s[{sX}:{sX+3}], s{sT1} offen")
                a.e("s_mov_b64 exec, -1")
            else:
                a.e(f"s_lshl_b32 s{sT0}, s{sB}, 19")
                a.e(f"s_lshl_b32 s{sT1}, s{sHS}, 18")
                a.e(f"s_add_u32 s{sT0}, s{sT0}, s{sT1}")
                a.e(f"v_lshrrev_b32 v5, 2, v{L}")
                a.e(f"v_lshlrev_b32 v5, 13, v5")
                a.e(f"v_and_b32 v6, 3, v{L}")
                a.e(f"v_lshl_add_u32 v5, v6, 7, v5")
                for m in range(2):
                    a.e(f"s_add_u32 s{sT1}, s{sT0}, {m*16*8192}")
                    a.e(f"buffer_load_dword v{163+m}, v5, s[{sWQ}:{sWQ+3}], s{sT1} offen")
        stamp(a, 2)
        lane_addresses()
        for r in range(64): a.e(f"v_mov_b32 v{vO+r}, 0")
        if QN[c]: a.e(f"s_waitcnt vmcnt({2*QN[c]})")
        a.e("s_barrier")
        rd = q_reads(0, qbuf(0))
        for i, r_ in enumerate(rd):
            if i == 14: a.e("s_waitcnt lgkmcnt(8)")
            a.e(r_)
        a.e("s_waitcnt lgkmcnt(0)")
        stamp(a, 3)
        a.e(f"s_mov_b32 s{sBufA}, {qbuf(0)}")
        a.e(f"s_mov_b32 s{sBufB}, {qbuf(1)}")
        a.e(f"s_mov_b32 s{sCnt}, 0")
        a.e(f"s_mov_b32 s{sKVs}, 0")
        a.e(f"s_mov_b32 s{sKVl}, 0")
        a.lab(f"{name}_ql{c}")
        for par in range(2):
            if QN[c]: a.e(f"s_waitcnt vmcnt({QN[c]})")
            a.e("s_barrier")
            fq = OPT.get("FINEQ") and par == 0
            if fq: stamp_nw(a, 10)
            if OPT.get("FINEQ") and par == 1: stamp_nw(a, 15)
            rd = q_reads(1 - par, ("s", sBufB))
            if QN[c] and not QLATE[c]: q_pieces(c, ("s", sBufA))
            q_mfmas(par, rd, fq)
            if QN[c] and QLATE[c]: q_pieces(c, ("s", sBufA))
            kc_next()
            a.e(f"s_mov_b32 s{sBufA}, s{sBufB}")
            a.e(f"s_add_u32 s{sBufB}, s{sBufB}, {R}")
            a.e(f"s_cmp_eq_u32 s{sBufB}, {5*R}")
            a.e(f"s_cselect_b32 s{sBufB}, {2*R}, s{sBufB}")
            if c == 0:
                lab = newlab("nokv")
                a.e(f"s_cmp_lt_u32 s{sCnt}, 4")
                a.e(f"s_cbranch_scc0 {lab}")
                a.e(f"s_add_u32 s{sT0}, s{sKVl}, s{sL1024}")
                if par == 0:
                    for n2 in (0, 2):
                        for half in (0, 1):
                            dma(vDK, sK, sT0, half*4096 + n2*1024, sKVs, half*128 + n2*2048, True)
                else:
                    a.e(f"s_add_u32 s{sT1}, s{sKVs}, s{sL1024}")
                    for nn in (0, 2, 4, 6):
                        dma(vDV, sV, sT0, 16384 + nn*1024, sT1, nn*1024, True)
                    a.e(f"s_add_u32 s{sT0}, s{sCnt}, 1")
                    a.e(f"s_lshr_b32 s{sT1}, s{sT0}, 1")
                    a.e(f"s_and_b32 s{sT0}, s{sT0}, 1")
                    a.e(f"s_lshl_b32 s{sKVs}, s{sT1}, 13")
                    a.e(f"s_lshl_b32 s{sT2}, s{sT0}, 17")
                    a.e(f"s_add_u32 s{sKVs}, s{sKVs}, s{sT2}")
                    a.e(f"s_lshl_b32 s{sKVl}, s{sT1}, 15")
                    a.e(f"s_lshl_b32 s{sT2}, s{sT0}, 13")
                    a.e(f"s_add_u32 s{sKVl}, s{sKVl}, s{sT2}")
                a.lab(lab)
            a.e("s_waitcnt lgkmcnt(0)")
        a.e(f"s_add_u32 s{sCnt}, s{sCnt}, 1")
        a.e(f"s_cmp_lt_u32 s{sCnt}, 6")
        a.e(f"s_cbranch_scc1 {name}_ql{c}")
        if c < NC - 1: a.e(f"s_branch {name}_qtail")
    a.lab(f"{name}_qtail")
    stamp(a, 9)
    for i in range(4): push(("kv", i >> 1), [8, 0, 0, 0, 0])
    for sg in (13, 14): push(("q", sg), QN)
    def q_iter(sg, kv):
        rd = []
        if sg < 15: wait_for(("q", sg + 1))
        a.e("s_barrier")
        if sg < 15: rd = q_reads((sg + 1) & 1, qbuf(sg + 1))
        if sg + NQ < 16:
            for c in range(NC):
                if QN[c] and not QLATE[c]: cls_block(c, lambda c=c: q_pieces(c, qbuf(sg + NQ)))
        q_mfmas(sg & 1, rd)
        if sg + NQ < 16:
            for c in range(NC):
                if QN[c] and QLATE[c]: cls_block(c, lambda c=c: q_pieces(c, qbuf(sg + NQ)))
            push(("q", sg + NQ), QN)
        if kv is not None:
            lo4_block(lambda: kv_pieces((kv % 5)*R, kv*8192, [0, 1, 2, 3]))
            push(("kv", kv), [8, 8, 0, 0, 0])
        a.e("s_waitcnt lgkmcnt(0)")
    q_iter(12, None); q_iter(13, 2); q_iter(14, 3); q_iter(15, 4 if LAT == 4 else None)
    stamp(a, 4)
    if FUSE:
        a.e(f"s_lshl_b32 s{sT0}, s{sHpl}, 8")
        srd(a, sX, sPWo, 0, sT0)
        a.e(f"s_sub_u32 s{sX+2}, 4194304, s{sT0}")
        a.e(f"v_lshrrev_b32 v{vT0}, 4, v{L}")
        a.e(f"v_mul_u32_u24 v{vT0}, 768, v{vT0}")
        a.e(f"v_add_u32 v{vDW}, v{vT0}, v{vDV}")
    a.nop(12)
    a.e(f"s_mov_b32 s{sT0}, {hex(f2u(QSCALE))}")
    a.e(f"v_mov_b32 v{vMX}, s{sT0}")
    a.nop(1)
    for r in range(32):
        a.e(f"v_pk_mul_f32 v[{vO+2*r}:{vO+2*r+1}], v[{vO+2*r}:{vO+2*r+1}], v[{vMX}:{vMX+1}] op_sel_hi:[1,0]")
    for r in range(32):
        a.e(f"v_cvt_pk_bf16_f32 v{vQ+r}, v{vO+2*r}, v{vO+2*r+1}")

    F0 = OPT.get("FINE0")
    if F0: stamp_nw(a, 10)
    def k_addr(reg):
        vadd(vA, reg, 0, vA0K)
        a.e(f"v_xor_b32 v{vA+1}, 32, v{vA}")
        a.e(f"v_xor_b32 v{vA+2}, 64, v{vA}")
        a.e(f"v_xor_b32 v{vA+3}, 96, v{vA}")
    def rdK(j):
        f = vF + (j & 3)*4
        a.ds(f"ds_read_b128 v[{f}:{f+3}], v{vA+(j&3)} offset:{(j>>2)*4096}", ("K", j))
    def setprio(p):
        if p is not None: a.e(f"s_setprio {p}")
    S = lambda r: f"v{vS+r}"
    def att_body(tag, first, reg, regn):
        PQ, PS, PP = OPT["PRIO"]
        fine = False
        def rdV(sx, t):
            f = vF + t*4
            a.ds(f"ds_read_b64_tr_b16 v[{f}:{f+1}], v{vA+t} offset:{sx*4096}", ("V", sx, t, 0))
            a.ds(f"ds_read_b64_tr_b16 v[{f+2}:{f+3}], v{vA+t} offset:{sx*4096+1024}", ("V", sx, t, 1))
        setprio(PQ)
        for j in range(8):
            a.need(("K", j))
            f = vF + (j & 3)*4
            cop = f"v[{vS}:{vS+15}]" if j else ("0" if first else f"v[{vNM}:{vNM+15}]")
            a.e(f"v_mfma_f32_32x32x16_bf16 v[{vS}:{vS+15}], v[{f}:{f+3}], v[{vQ+4*j}:{vQ+4*j+3}], {cop}")
            if j < 4: rdK(j+4)
            if j == 3:
                vadd(vA, reg, 0, vA0V)
                a.e(f"v_xor_b32 v{vA+1}, 64, v{vA}")
                a.e(f"v_xor_b32 v{vA+2}, 128, v{vA}")
                a.e(f"v_xor_b32 v{vA+3}, 192, v{vA}")
            if j >= 4: rdV(0, j - 4)
        setprio(PS)
        a.nop(10)
        a.e(f"v_max3_f32 v{vMX}, {S(0)}, {S(1)}, {S(2)}")
        a.e(f"v_max3_f32 v{vMX2}, {S(3)}, {S(4)}, {S(5)}")
        a.e(f"v_max3_f32 v{vMX}, v{vMX}, {S(6)}, {S(7)}")
        a.e(f"v_max3_f32 v{vMX2}, v{vMX2}, {S(8)}, {S(9)}")
        a.e(f"v_max3_f32 v{vMX}, v{vMX}, {S(10)}, {S(11)}")
        a.e(f"v_max3_f32 v{vMX2}, v{vMX2}, {S(12)}, {S(13)}")
        a.e(f"v_max3_f32 v{vMX}, v{vMX}, {S(14)}, {S(15)}")
        a.e(f"v_max_f32 v{vMX}, v{vMX}, v{vMX2}")
        if first:
            a.e(f"v_mov_b32 v{vMX2}, v{vMX}")
            a.nop(2)
            a.e(f"v_permlane32_swap_b32 v{vMX}, v{vMX2}")
            a.nop(1)
            a.e(f"v_max_f32 v{vMX}, v{vMX}, v{vMX2}")
            for r in range(16):
                a.e(f"v_sub_f32 {S(r)}, {S(r)}, v{vMX}")
            for r in range(16):
                a.e(f"v_sub_f32 v{vNM+r}, 0, v{vMX}")
            a.e(f"v_mov_b32 v{vL0}, 0")
            a.e(f"v_mov_b32 v{vL1}, 0")
        else:
            a.e(f"v_cmp_lt_f32 vcc, 0x41200000, v{vMX}")
            a.e(f"s_cbranch_vccnz {name}_rare_{tag}")
            a.lab(f"{name}_back_{tag}")
        ex = lambda r: a.e(f"v_exp_f32 {S(r)}, {S(r)}")
        ad = lambda r: a.e(f"v_add_f32 v{vL0 + (r&1)}, v{vL0 + (r&1)}, {S(r)}")
        pk = lambda d: a.e(f"v_cvt_pk_bf16_f32 {S(d)}, {S(2*d)}, {S(2*d+1)}")
        ex(0)
        for r in range(1, 8): ex(r); ad(r-1)
        pk(0); ad(7); pk(1); pk(2); pk(3)
        setprio(PP)
        a.nop(2)
        def pv(sx, t):
            a.need(("V", sx, t, 0), ("V", sx, t, 1))
            f = vF + t*4
            cop = "0" if (first and sx == 0) else f"v[{vO+16*t}:{vO+16*t+15}]"
            a.e(f"v_mfma_f32_32x32x16_bf16 v[{vO+16*t}:{vO+16*t+15}], v[{f}:{f+3}], v[{vS+4*sx}:{vS+4*sx+3}], {cop}")
        for t in range(4):
            pv(0, t); rdV(1, t)
            if t: ad(7 + 2*t)
            ex(8 + 2*t); ex(9 + 2*t); ad(8 + 2*t)
            if t: pk(3 + t)
        ad(15); pk(7)
        if regn is not None: k_addr(regn)
        else: a.nop(2)
        for t in range(4):
            pv(1, t)
            if regn is not None: rdK(t)
        if regn is None: a.drain()

    def rare(tag):
        a.lab(f"{name}_rare_{tag}")
        a.c("raise the subtracted max to the running row max and rescale what was accumulated")
        a.e(f"v_mov_b32 v{vMX2}, v{vMX}")
        a.nop(2)
        a.e(f"v_permlane32_swap_b32 v{vMX}, v{vMX2}")
        a.nop(1)
        a.e(f"v_max_f32 v{vMX}, v{vMX}, v{vMX2}")
        a.e(f"v_max_f32 v{vMX}, 0, v{vMX}")
        a.e(f"v_sub_f32 v{vMX2}, 0, v{vMX}")
        a.e(f"v_exp_f32 v{vMX2}, v{vMX2}")
        for r in range(16):
            a.e(f"v_sub_f32 v{vS+r}, v{vS+r}, v{vMX}")
        for r in range(16):
            a.e(f"v_sub_f32 v{vNM+r}, v{vNM+r}, v{vMX}")
        for r in range(64):
            a.e(f"v_mul_f32 v{vO+r}, v{vO+r}, v{vMX2}")
        a.e(f"v_mul_f32 v{vL0}, v{vL0}, v{vMX2}")
        a.e(f"v_mul_f32 v{vL1}, v{vL1}, v{vMX2}")
        a.e(f"s_branch {name}_back_{tag}")

    wait_for(("kv", 0))
    a.e("s_barrier")
    if F0: stamp_nw(a, 11)
    k_addr(0)
    for j in range(4): rdK(j)
    wait_for(("kv", 1))
    a.e("s_barrier")
    if F0: stamp_nw(a, 12)
    att_body("t0", True, 0, R)
    if F0: stamp_nw(a, 13)
    if F0: stamp_nw(a, 14)
    if C.PROF: a.e("s_waitcnt lgkmcnt(0)")
    stamp(a, 5)
    if FUSE and OPT.get("WTOUCH", True):
        a.c("pull this workgroup's 1/32 share of the quarter's Wo rows into L2 (one dword per 128-byte line)")
        def touch():
            a.e(f"s_lshr_b32 s{sT0}, s{sH0}, 3")
            a.e(f"s_lshl_b32 s{sT0}, s{sT0}, 20")
            a.e(f"s_lshl_b32 s{sT1}, s{sB}, 2")
            a.e(f"s_add_u32 s{sT1}, s{sT1}, s{sHpl}")
            a.e(f"s_lshl_b32 s{sT1}, s{sT1}, 15")
            a.e(f"s_add_u32 s{sT0}, s{sT0}, s{sT1}")
            a.e(f"s_lshl_b32 s{sT1}, s{sHS}, 14")
            a.e(f"s_add_u32 s{sT0}, s{sT0}, s{sT1}")
            a.e(f"s_lshl_b32 s{sT1}, s{sHpl}, 8")
            a.e(f"s_sub_u32 s{sT0}, s{sT0}, s{sT1}")
            a.e(f"v_lshlrev_b32 v{vT0}, 7, v{L}")
            for m in range(2):
                a.e(f"s_add_u32 s{sT1}, s{sT0}, {m*8192}")
                a.e(f"buffer_load_dword v{163+m}, v{vT0}, s[{sX}:{sX+3}], s{sT1} offen")
        cls_block(2, touch)
    entry_state = list(a.lg)
    a.e(f"s_mov_b32 s{sCnt}, 1")
    a.e(f"s_mov_b32 s{sTile}, {LAT*8192}")
    a.e(f"s_mov_b32 s{sRegD}, {(LAT % 5)*R}")
    a.e(f"s_mov_b32 s{sReg}, 0")
    a.e(f"s_mov_b32 s{sRegN}, {R}")
    a.e(f"s_cmp_lt_u32 s{sW}, 4")
    a.e(f"s_cbranch_scc0 {name}_aloop1")
    for var in range(2):
        a.lg = list(entry_state)
        a.lab(f"{name}_aloop{var}")
        if var == 0:
            a.e(f"s_cmp_le_u32 s{sCnt}, {16 - LAT}")
            a.e(f"s_cbranch_scc0 {name}_atailw")
            a.e(f"s_waitcnt vmcnt({8*(LAT-2)})")
            a.lab(f"{name}_atailb")
        a.e("s_barrier")
        regs = (sReg, sRegN) + ((sRegD,) if var == 0 else ())
        for sr in regs:
            a.e(f"s_add_u32 s{sr}, s{sr}, {R}")
            a.e(f"s_cmp_eq_u32 s{sr}, {5*R}")
            a.e(f"s_cselect_b32 s{sr}, 0, s{sr}")
        att_body(f"lp{var}", False, ("s", sReg), ("s", sRegN))
        if var == 0:
            a.e(f"s_add_u32 s{sTile}, s{sTile}, 8192")
            a.e(f"s_cmp_le_u32 s{sCnt}, {15 - LAT}")
            a.e(f"s_cbranch_scc0 {name}_anofill")
            kv_pieces(("s", sRegD), ("s", sTile), [0, 1, 2, 3])
            if FUSE:
                a.e(f"s_branch {name}_afilled")
                a.lab(f"{name}_anofill")
                a.e(f"s_cmp_eq_u32 s{sCnt}, 14")
                a.e(f"s_cbranch_scc1 {name}_afilled")
                a.e(f"s_branch {name}_awo")
                a.lab(f"{name}_afilled")
            else:
                a.lab(f"{name}_anofill")
        assert a.lg == entry_state
        a.e(f"s_add_u32 s{sCnt}, s{sCnt}, 1")
        a.e(f"s_cmp_lt_u32 s{sCnt}, 15")
        a.e(f"s_cbranch_scc1 {name}_aloop{var}")
        if var == 0: a.e(f"s_branch {name}_alast")
    a.lab(f"{name}_alast")
    a.e("s_barrier")
    att_body("t15", False, (15 % 5)*R, None)
    if F0: stamp_nw(a, 15)
    stamp(a, 6)
    a.e(f"v_add_f32 v{vL0}, v{vL0}, v{vL1}")
    a.nop(1)
    a.e(f"v_mov_b32 v{vL1}, v{vL0}")
    a.nop(2)
    a.e(f"v_permlane32_swap_b32 v{vL0}, v{vL1}")
    a.nop(1)
    a.e(f"v_add_f32 v{vL0}, v{vL0}, v{vL1}")
    a.nop(1)
    a.e(f"v_rcp_f32 v{vL0}, v{vL0}")
    if OPT.get("FINEE"): stamp_nw(a, 10)
    a.nop(12)
    a.e(f"s_lshl_b32 s{sT0}, s{sQB}, 18")
    a.e(f"s_add_u32 s{sT1}, s{sH0}, s{sHS}")
    a.e(f"s_lshl_b32 s{sT1}, s{sT1}, 13")
    a.e(f"s_add_u32 s{sT0}, s{sT0}, s{sT1}")
    if FUSE:
        a.e(f"s_mul_i32 s{sT2}, s{sHS}, 10240")
        a.e(f"s_lshl_b32 s{sT3}, s{sQB}, 11")
        a.e(f"s_add_u32 s{sT2}, s{sT2}, s{sT3}")
        a.e(f"s_add_u32 s{sT2}, s{sT2}, {OSLOT0}")
        a.e(f"v_add_u32 v{vT0}, s{sT2}, v{vOst}")
    for fr in range(8):
        for r in range(4):
            q_ = vO + 8*fr + 2*r
            a.e(f"v_pk_mul_f32 v[{q_}:{q_+1}], v[{q_}:{q_+1}], v[{vL0}:{vL0+1}] op_sel_hi:[1,0]")
        for r in range(4):
            a.e(f"v_cvt_pk_bf16_f32 v{vQ+4*fr+r}, v{vO+8*fr+2*r}, v{vO+8*fr+2*r+1}")
        a.e(f"s_add_u32 s{sT1}, s{sT0}, {fr*1024}")
        a.e(f"buffer_store_dwordx4 v[{vQ+4*fr}:{vQ+4*fr+3}], v{vOst}, s[{sO}:{sO+3}], s{sT1} offen{' sc1' if FUSE else ''}")
        if FUSE and not OPT.get("STFIRST", True):
            a.e(f"ds_write_b128 v{vT0}, v[{vQ+4*fr}:{vQ+4*fr+3}] offset:{(fr >> 1)*20480 + (fr & 1)*1024}")
    if FUSE and OPT.get("STFIRST", True):
        for fr in range(8):
            a.e(f"ds_write_b128 v{vT0}, v[{vQ+4*fr}:{vQ+4*fr+3}] offset:{(fr >> 1)*20480 + (fr & 1)*1024}")
    if OPT.get("FINEE"): stamp_nw(a, 11)
    if FUSE:
        import tail
        tail.gen_tail(a, name, locals())
    else:
        a.e("s_waitcnt vmcnt(0)")
    stamp(a, 7); stamp_rt(a, 8)
    stamp_store(a, sWS, sW, 16, 0, vT0)
    a.e(f"s_branch {name}_end")
    WNT = "nt " if OPT["WNT"] else ""
    def wo_stage_c0(sg):
        a.e(f"s_lshl_b32 s{sT0}, s{sH0}, 17")
        a.e(f"s_lshl_b32 s{sT1}, s{sL1024}, 2")
        a.e(f"s_add_u32 s{sT0}, s{sT0}, s{sT1}")
        for kh in (0, 1):
            for nn in (0, 4):
                a.e(f"s_add_u32 m0, s{sL1024}, {WSLOT[sg] + kh*8192 + nn*1024}")
                a.e(f"s_add_u32 s{sT3}, s{sT0}, {kh*131072 + sg*32768 + nn*4096}")
                a.e(f"buffer_load_dwordx4 v{vDW}, s[{sX}:{sX+3}], s{sT3} offen {WNT}lds")
    if FUSE:
        assert LAT == 4
        a.lab(f"{name}_awo")
        a.e(f"s_cmp_eq_u32 s{sCnt}, 12")
        a.e(f"s_cbranch_scc0 {name}_awo13")
        wo_stage_c0(0); wo_stage_c0(1)
        a.e(f"s_branch {name}_afilled")
        a.lab(f"{name}_awo13")
        wo_stage_c0(2)
        a.e(f"s_branch {name}_afilled")
    a.lab(f"{name}_atailw")
    for k in range(LAT - 2):
        t = 17 - LAT + k
        if k < LAT - 3:
            lab = newlab("tw")
            a.e(f"s_cmp_eq_u32 s{sCnt}, {t}")
            a.e(f"s_cbranch_scc0 {lab}")
        extra = ({13: 8, 14: 12}[t] if FUSE else 0)
        a.e(f"s_waitcnt vmcnt({8*(15 - (t + 1)) + extra})")
        a.e(f"s_branch {name}_atailb")
        if k < LAT - 3: a.lab(lab)
    for tag in ["lp0", "lp1", "t15"]:
        rare(tag)
    a.lab(f"{name}_end")
    a.e("s_endpgm")
    return a.text(), NV
```

```python
from dsl import *
import common as C
from common import srd, stamp

def gen_tail(a, name, g):
    OPT = g["OPT"] if "OPT" in g else __import__("k1").OPT
    sW, sHS, sQB, sH0, sHpl, sBeta, sB, sWS = g["sW"], g["sHS"], g["sQB"], g["sH0"], g["sHpl"], g["sBeta"], g["sB"], g["sWS"]
    sT0, sT1, sT2, sT3, sCnt, sCls = g["sT0"], g["sT1"], g["sT2"], g["sT3"], g["sCnt"], g["sCls"]
    sWo, sO, sDbg, sPOut = g["sX"], g["sO"], g["sDbg"], g["sPOut"]
    sP, sOut, sF = g["sWQ"], g["sK"], g["sV"]
    sWsl, sOsl, sNT, sKH = g["sReg"], g["sRegD"], g["sRegN"], g["sTile"]
    sIss, sHb, sWd, sOd = g["sBufA"], g["sBufB"], g["sKVs"], g["sKVl"]
    sSpin = g["sHs8k"]
    sWl, sWr = g["sHsX"], g["sHsXl"]
    sKq, sOwn = g["sHsW"], g["sL1024"]
    vOst, vDW, vA0V, vT0, vT1, L = g["vOst"], g["vDW"], g["vA0V"], g["vT0"], g["vT1"], g["L"]
    WSLOT, OSLOT0, WS_F = g["WSLOT"], g["OSLOT0"], g["WS_F"]
    WNT = "nt " if OPT["WNT"] else ""
    OFL = OPT.get("OFL", "sc1 ")
    SPIN = OPT["SPIN"]
    vAcc, vB, vAF, vAW, vBW, vA0W, vPo = 0, 80, 120, 128, 129, 130, 131
    FINEO = OPT.get("FINEO")
    def fs(i, at=9):
        if not (FINEO and C.PROF): return
        lab = f"{name}_fs{i}_{len(a.L)}"
        a.e(f"s_cmp_eq_u32 s{FINEO_CNT[0]}, {at}")
        a.e(f"s_cbranch_scc0 {lab}")
        a.e(f"s_memtime s[{64+2*i}:{65+2*i}]")
        a.lab(lab)
    FINEO_CNT = [sCnt]
    real_stamp = C.stamp_nw
    def fe(i):
        if OPT.get("FINEE"): real_stamp(a, i)
    stamp_nw = (lambda a, i: None) if (FINEO or OPT.get("FINE0") or OPT.get("FINEE")) else C.stamp_nw
    nbar = [0]
    def barrier(): a.e("s_barrier")

    a.e(f"s_mov_b32 s{sT0}, {WS_F}")
    srd(a, sF, sWS, 65536, sT0)
    a.e(f"s_lshl_b32 s{sT0}, s{sBeta}, 3")
    a.e(f"s_add_u32 s{sT0}, s{sT0}, s{sB}")
    a.e(f"s_lshl_b32 s{sT0}, s{sT0}, 2")
    a.e(f"s_add_u32 s{sT0}, s{sT0}, s{sHpl}")
    a.e(f"s_mul_i32 s{sT0}, s{sT0}, 40960")
    a.e(f"s_add_u32 s{sT0}, s{sT0}, {C.WS_P}")
    srd(a, sP, sWS, 3*64*40960 + 40960, sT0)
    srd(a, sOut, sPOut, 8*160*1024*2)
    a.e(f"s_cmp_ge_u32 s{sW}, 8")
    a.e(f"s_cbranch_scc1 {name}_oload")

    a.e(f"s_and_b32 s{sNT}, s{sW}, 3")
    a.e(f"s_lshr_b32 s{sKH}, s{sW}, 2")
    a.e(f"s_lshl_b32 s{sT0}, s{sHS}, 13")
    a.e(f"s_add_u32 s{sT0}, s{sT0}, 16384")
    a.e(f"v_subrev_u32 v{vA0W}, s{sT0}, v{vA0V}")
    a.e(f"s_lshl_b32 s{sT0}, s{sNT}, 6")
    a.e(f"v_xor_b32 v{vA0W}, s{sT0}, v{vA0W}")
    a.e(f"s_lshl_b32 s{sT0}, s{sHpl}, 1")
    a.e(f"s_sub_u32 s{sHb}, s{sH0}, s{sT0}")
    a.e(f"s_add_u32 s{sHb}, s{sHb}, s{sKH}")
    a.e(f"s_lshl_b32 s{sWl}, s{sKH}, 13")
    a.e(f"s_lshl_b32 s{sT0}, s{sNT}, 11")
    a.e(f"s_add_u32 s{sWl}, s{sWl}, s{sT0}")
    a.e(f"s_lshl_b32 s{sWr}, s{sNT}, 13")
    def w_issue():
        a.e(f"s_lshr_b32 s{sT0}, s{sIss}, 2")
        a.e(f"s_add_u32 s{sT0}, s{sT0}, s{sHpl}")
        a.e(f"s_and_b32 s{sT0}, s{sT0}, 3")
        a.e(f"s_lshl_b32 s{sT0}, s{sT0}, 1")
        a.e(f"s_add_u32 s{sT0}, s{sT0}, s{sHb}")
        a.e(f"s_lshl_b32 s{sT0}, s{sT0}, 17")
        a.e(f"s_and_b32 s{sT1}, s{sIss}, 3")
        a.e(f"s_lshl_b32 s{sT1}, s{sT1}, 15")
        a.e(f"s_add_u32 s{sT0}, s{sT0}, s{sT1}")
        a.e(f"s_add_u32 s{sT0}, s{sT0}, s{sWr}")
        a.e(f"s_add_u32 s{sT1}, s{sWd}, s{sWl}")
        for m in range(2):
            a.e(f"s_add_u32 m0, s{sT1}, {m*1024}")
            a.e(f"s_add_u32 s{sT3}, s{sT0}, {m*4096}")
            if not OPT.get("XNOW"): a.e(f"buffer_load_dwordx4 v{vDW}, s[{sWo}:{sWo+3}], s{sT3} offen {WNT}lds")
    def w_next():
        a.e(f"s_add_u32 s{sIss}, s{sIss}, 1")
        rot_w(sWd)
    def rot_w(r):
        a.e(f"s_cmp_eq_u32 s{r}, 0")
        a.e(f"s_cselect_b32 s{sT0}, 16384, s{r}")
        a.e(f"s_add_u32 s{sT0}, s{sT0}, 16384")
        a.e(f"s_cmp_eq_u32 s{sT0}, 81920")
        a.e(f"s_cselect_b32 s{r}, 0, s{sT0}")
    def next_slots():
        a.e(f"s_add_u32 s{sOsl}, s{sOsl}, 20480")
        a.e(f"s_cmp_eq_u32 s{sOsl}, {OSLOT0 + 4*20480}")
        a.e(f"s_cselect_b32 s{sOsl}, {OSLOT0}, s{sOsl}")
        rot_w(sWsl)
    def addr():
        a.e(f"v_add_u32 v{vAW}, s{sWsl}, v{vA0W}")
        a.e(f"v_add_u32 v{vBW}, s{sOsl}, v{vOst}")
    a.e("s_waitcnt vmcnt(8) lgkmcnt(0)")
    fe(12)
    barrier()
    fe(13)
    stamp_nw(a, 10)
    a.e(f"s_mov_b32 s{sWsl}, {WSLOT[0]}")
    a.e(f"s_mov_b32 s{sOsl}, {OSLOT0}")
    a.e(f"s_mov_b32 s{sIss}, 3")
    a.e(f"s_mov_b32 s{sWd}, {WSLOT[3]}")
    a.e(f"s_cmp_eq_u32 s{sKH}, 0")
    a.e(f"s_cbranch_scc0 {name}_og1")
    for gq, qbs in ((0, (3, 4)), (1, (0, 1, 2))):
        nq_ = len(qbs)
        SETSZ = 4 + 4*nq_
        vSet = 16*nq_
        a.lab(f"{name}_og{gq}")
        def reads(ks):
            kh, sx = ks >> 1, ks & 1
            d = vSet + ks*SETSZ
            R = [(f"ds_read_b64_tr_b16 v[{d}:{d+1}], v{vAW} offset:{kh*8192 + sx*4096}", ("A", ks, 0)),
                 (f"ds_read_b64_tr_b16 v[{d+2}:{d+3}], v{vAW} offset:{kh*8192 + sx*4096 + 1024}", ("A", ks, 1))]
            for i, qb in enumerate(qbs):
                b = d + 4 + 4*i
                R.append((f"ds_read_b128 v[{b}:{b+3}], v{vBW} offset:{kh*10240 + (qb*2+sx)*1024}", ("B", ks, i)))
            return R
        def groups(order, rd, zero=(), need=()):
            rd = list(rd)
            nslots = len(order)*nq_
            slot = 0
            for gi, ks in enumerate(order):
                d = vSet + ks*SETSZ
                for i in range(nq_):
                    if ks in need: a.need(("A", ks, 0), ("A", ks, 1), ("B", ks, i))
                    b = d + 4 + 4*i
                    cop = "0" if ks in zero else f"v[{16*i}:{16*i+15}]"
                    a.e(f"v_mfma_f32_32x32x16_bf16 v[{16*i}:{16*i+15}], v[{d}:{d+3}], v[{b}:{b+3}], {cop}")
                    slot += 1
                    last_of_group = (i == nq_ - 1)
                    n = 0
                    while rd and n < RPG and len(a.lg) < 14:
                        eg, r_ = rd[0]
                        if gi > eg or (gi == eg and last_of_group) or eg < 0:
                            a.ds(*r_); rd.pop(0); n += 1
                        else: break
            assert not rd, rd
        RPG = OPT.get('RPG', (3, 3))[gq]
        addr()
        if gq == 1: w_issue(); w_next()
        for r_ in reads(0) + reads(1): a.ds(*r_)
        groups([0, 1], [(-1, r_) for r_ in reads(2) + reads(3)], zero=(0,), need=(0, 1))
        next_slots(); addr()
        a.drain()
        if gq == 0: w_issue(); w_next()
        a.e(f"s_mov_b32 s{sCnt}, 1")
        fe(14)
        a.e("s_waitcnt vmcnt(2)")
        fe(15)
        def maybe_issue():
            lab = f"{name}_onow{gq}"
            a.e(f"s_cmp_lt_u32 s{sIss}, 16")
            a.e(f"s_cbranch_scc0 {lab}")
            w_issue(); w_next()
            a.lab(lab)
        def body():
            groups([2, 3, 0, 1], [(-1, r_) for r_ in reads(0) + reads(1)] + [(0, r_) for r_ in reads(2)] + [(1, r_) for r_ in reads(3)], need=(0, 1))
        def wait_w(tag):
            a.e(f"s_cmp_lt_u32 s{sCnt}, 13")
            a.e(f"s_cbranch_scc0 {name}_owt{gq}")
            a.e("s_waitcnt vmcnt(4)")
            a.lab(f"{name}_ogo{gq}")
        if gq == 0:
            a.e(f"s_branch {name}_obar0")
            a.lab(f"{name}_oloop0")
            a.lab(f"{name}_obar0")
            barrier()
            fs(10); fs(11); fs(12, 10)
            body()
            fs(13)
            next_slots(); addr()
            a.drain()
            maybe_issue()
            fs(14)
            wait_w("a")
            a.e(f"s_add_u32 s{sCnt}, s{sCnt}, 1")
            a.e(f"s_cmp_lt_u32 s{sCnt}, 16")
            a.e(f"s_cbranch_scc1 {name}_oloop0")
        else:
            barrier()
            a.lab(f"{name}_oloop1")
            fs(10); fs(12, 10)
            maybe_issue()
            fs(11)
            body()
            fs(13)
            a.drain()
            wait_w("b")
            fs(14)
            a.e(f"s_cmp_eq_u32 s{sCnt}, 15")
            a.e(f"s_cbranch_scc1 {name}_oend1")
            barrier()
            next_slots(); addr()
            a.e(f"s_add_u32 s{sCnt}, s{sCnt}, 1")
            a.e(f"s_branch {name}_oloop1")
            a.lab(f"{name}_oend1")
        groups([2, 3], [])
        stamp_nw(a, 13)
        a.e(f"s_lshr_b32 s{sKq}, s{sH0}, 3")
        a.e(f"s_mul_i32 s{sT1}, s{sKq}, {64*40960}")
        a.e(f"s_mul_i32 s{sT0}, s{sNT}, 10240")
        a.e(f"s_add_u32 s{sT1}, s{sT1}, s{sT0}")
        a.e(f"s_mov_b32 s{sOwn}, 7")
        a.nop(8)
        for i, qb in enumerate(qbs):
            lab = f"{name}_pown{gq}_{i}"
            if qb < 4:
                a.e(f"s_add_u32 s{sT0}, s{sNT}, {qb}")
                a.e(f"s_and_b32 s{sT0}, s{sT0}, 3")
                a.e(f"s_cmp_eq_u32 s{sT0}, s{sKq}")
            else:
                a.e(f"s_cmp_eq_u32 s{sNT}, s{sKq}")
            a.e(f"s_cselect_b32 s{sOwn}, {i}, s{sOwn}")
            a.e(f"s_cbranch_scc1 {lab}")
            t = 64 + 8*i
            for r in range(8):
                a.e(f"v_cvt_pk_bf16_f32 v{t+r}, v{16*i+2*r}, v{16*i+2*r+1}")
            for u in range(2):
                a.e(f"s_add_u32 s{sT2}, s{sT1}, {qb*2048 + u*1024}")
                a.e(f"buffer_store_dwordx4 v[{t+4*u}:{t+4*u+3}], v{vOst}, s[{sP}:{sP+3}], s{sT2} offen sc1")
            a.lab(lab)
        a.e(f"s_mov_b32 s{sCnt}, {1 - gq}")
        a.e(f"s_branch {name}_pdone")
        a.lab(f"{name}_owt{gq}")
        a.e("s_waitcnt vmcnt(0)")
        a.e(f"s_branch {name}_ogo{gq}")

    a.lab(f"{name}_oload")
    a.e(f"s_sub_u32 s{sKH}, s{sW}, 8")
    a.e(f"s_lshl_b32 s{sT0}, s{sHpl}, 1")
    a.e(f"s_sub_u32 s{sHb}, s{sH0}, s{sT0}")
    a.e(f"s_add_u32 s{sHb}, s{sHb}, s{sKH}")
    a.e("s_waitcnt lgkmcnt(0)")
    fe(12)
    barrier()
    fe(13)
    stamp_nw(a, 10)
    fe(14)
    a.e("s_waitcnt vmcnt(0)")
    fe(15)
    barrier()
    stamp_nw(a, 11)
    a.e(f"s_cmp_eq_u32 s{sW}, 8")
    a.e(f"s_cbranch_scc0 {name}_nopub")
    a.e(f"s_lshl_b32 s{sT0}, s2, 8")
    a.e(f"v_mov_b32 v{vT0}, s{sT0}")
    a.e(f"v_mov_b32 v{vT1}, 1")
    a.e("s_mov_b64 exec, 1")
    a.e(f"buffer_store_dword v{vT1}, v{vT0}, s[{sF}:{sF+3}], 0 offen sc1")
    a.e("s_mov_b64 exec, -1")
    a.lab(f"{name}_nopub")
    def poll(tag, srdreg, voff, nl, want, ge=False):
        a.e(f"s_mov_b32 s{sSpin}, {SPIN}")
        a.e(f"s_mov_b64 exec, {(1 << nl) - 1}")
        a.lab(f"{name}_poll{tag}")
        a.e(f"buffer_load_dword v{vT1}, v{voff}, s[{srdreg}:{srdreg+3}], 0 offen sc1")
        a.e("s_waitcnt vmcnt(0)")
        a.e(f"v_cmp_{'gt' if ge else 'ne'}_u32 vcc, {want}, v{vT1}")
        a.e("s_nop 4")
        a.e(f"s_cbranch_vccz {name}_pollok{tag}")
        a.e("s_sleep 2")
        a.e(f"s_sub_u32 s{sSpin}, s{sSpin}, 1")
        a.e(f"s_cmp_lg_u32 s{sSpin}, 0")
        a.e(f"s_cbranch_scc1 {name}_poll{tag}")
        a.lab(f"{name}_pollok{tag}")
        a.e("s_mov_b64 exec, -1")
    a.e(f"s_lshl_b32 s{sT0}, s{sBeta}, 3")
    a.e(f"s_add_u32 s{sT0}, s{sT0}, s{sB}")
    a.e(f"s_lshl_b32 s{sT0}, s{sT0}, 2")
    a.e(f"v_mov_b32 v{vPo}, s{sT0}")
    poll("i", sDbg, vPo, 1, 16, ge=True)
    a.e(f"s_andn2_b32 s{sT0}, s2, 0x18")
    a.e(f"v_lshlrev_b32 v{vPo}, 3, v{L}")
    a.e(f"v_or_b32 v{vPo}, s{sT0}, v{vPo}")
    a.e(f"v_lshlrev_b32 v{vPo}, 8, v{vPo}")
    poll("o", sF, vPo, 4, 1)
    stamp_nw(a, 12)
    a.e(f"s_mov_b32 s{sIss}, 4")
    a.e(f"s_mov_b32 s{sOd}, {OSLOT0}")
    def issue_stage():
        a.e(f"s_lshr_b32 s{sT0}, s{sIss}, 2")
        if OPT.get("XOWN"): a.e(f"s_mov_b32 s{sT0}, 0")
        a.e(f"s_add_u32 s{sT0}, s{sT0}, s{sHpl}")
        a.e(f"s_and_b32 s{sT0}, s{sT0}, 3")
        a.e(f"s_lshl_b32 s{sT0}, s{sT0}, 1")
        a.e(f"s_add_u32 s{sT2}, s{sT0}, s{sHb}")
        a.e(f"s_and_b32 s{sCnt}, s{sIss}, 3")
        a.e(f"s_lshl_b32 s{sT0}, s{sT2}, 13")
        a.e(f"s_lshl_b32 s{sT1}, s{sCnt}, 11")
        a.e(f"s_add_u32 s{sT0}, s{sT0}, s{sT1}")
        a.e(f"s_mul_i32 s{sT1}, s{sKH}, 10240")
        a.e(f"s_add_u32 s{sT1}, s{sT1}, s{sOd}")
        for qb in range(5):
            for sx in range(2):
                a.e(f"s_add_u32 m0, s{sT1}, {(qb*2+sx)*1024}")
                a.e(f"s_add_u32 s{sT3}, s{sT0}, {qb*262144 + sx*1024}")
                if not OPT.get("XNOO"): a.e(f"buffer_load_dwordx4 v{vOst}, s[{sO}:{sO+3}], s{sT3} offen {OFL}lds")
        a.e(f"s_add_u32 s{sIss}, s{sIss}, 1")
        a.e(f"s_add_u32 s{sOd}, s{sOd}, 20480")
        a.e(f"s_cmp_eq_u32 s{sOd}, {OSLOT0 + 4*20480}")
        a.e(f"s_cselect_b32 s{sOd}, {OSLOT0}, s{sOd}")
    issue_stage()
    barrier()
    issue_stage()
    a.lab(f"{name}_lloop")
    FINEO_CNT[0] = sIss
    fs(10)
    a.e("s_waitcnt vmcnt(20)")
    fs(11)
    barrier()
    fs(12)
    issue_stage_keep = True
    issue_stage()
    if FINEO and C.PROF:
        a.e(f"s_cmp_eq_u32 s{sIss}, 10")
        a.e(f"s_cbranch_scc0 {name}_fsl")
        a.e(f"s_memtime s[{64+2*13}:{65+2*13}]")
        a.lab(f"{name}_fsl")
    a.e(f"s_cmp_lt_u32 s{sIss}, 16")
    a.e(f"s_cbranch_scc1 {name}_lloop")
    a.e("s_waitcnt vmcnt(20)"); barrier()
    a.e("s_waitcnt vmcnt(10)"); barrier()
    a.e("s_waitcnt vmcnt(0)"); barrier()
    stamp_nw(a, 13)

    a.e(f"s_mov_b32 s{sOwn}, 7")
    a.lab(f"{name}_pdone")
    a.e("s_waitcnt vmcnt(0)")
    barrier()
    stamp_nw(a, 14)
    a.e(f"s_cmp_eq_u32 s{sW}, 8")
    a.e(f"s_cbranch_scc0 {name}_nopoll")
    a.e(f"s_lshl_b32 s{sT0}, s2, 8")
    a.e(f"s_add_u32 s{sT0}, s{sT0}, 128")
    a.e(f"v_mov_b32 v{vT0}, s{sT0}")
    a.e(f"v_mov_b32 v{vT1}, 1")
    a.e("s_mov_b64 exec, 1")
    a.e(f"buffer_store_dword v{vT1}, v{vT0}, s[{sF}:{sF+3}], 0 offen sc1")
    a.e("s_mov_b64 exec, -1")
    a.e(f"s_andn2_b32 s{sT0}, s2, 3")
    a.e(f"v_or_b32 v{vPo}, s{sT0}, v{L}")
    a.e(f"v_lshlrev_b32 v{vPo}, 8, v{vPo}")
    a.e(f"v_add_u32 v{vPo}, 128, v{vPo}")
    poll("p", sF, vPo, 4, 1)
    a.lab(f"{name}_nopoll")
    barrier()
    stamp_nw(a, 15)
    a.e(f"s_cmp_eq_u32 s{sOwn}, 7")
    a.e(f"s_cbranch_scc1 {name}_odone")
    a.e(f"s_mul_i32 s{sT0}, s{sCnt}, 3")
    a.e(f"s_add_u32 s{sT0}, s{sT0}, s{sOwn}")
    a.e(f"s_mul_i32 s{sT1}, s{sNT}, 5")
    a.e(f"s_add_u32 s{sT1}, s{sT1}, s{sT0}")
    a.e(f"s_lshl_b32 s{sT1}, s{sT1}, 11")
    for dd in range(1, 4):
        a.e(f"s_add_u32 s{sT2}, s{sKq}, {dd}")
        a.e(f"s_and_b32 s{sT2}, s{sT2}, 3")
        a.e(f"s_mul_i32 s{sT2}, s{sT2}, {64*40960}")
        a.e(f"s_add_u32 s{sT2}, s{sT2}, s{sT1}")
        for u in range(2):
            d = 64 + (dd-1)*8 + 4*u
            a.e(f"s_add_u32 s{sT3}, s{sT2}, {u*1024}")
            a.e(f"buffer_load_dwordx4 v[{d}:{d+3}], v{vOst}, s[{sP}:{sP+3}], s{sT3} offen sc1")
    a.e(f"s_mul_i32 s{sT1}, s{sB}, 160")
    a.e(f"s_lshl_b32 s{sT0}, s{sT0}, 5")
    a.e(f"s_add_u32 s{sT0}, s{sT0}, s{sT1}")
    a.e(f"s_lshl_b32 s{sT0}, s{sT0}, 11")
    a.e(f"s_lshl_b32 s{sT2}, s{sBeta}, 10")
    a.e(f"s_add_u32 s{sT0}, s{sT0}, s{sT2}")
    a.e(f"s_lshl_b32 s{sT2}, s{sHpl}, 8")
    a.e(f"s_add_u32 s{sT0}, s{sT0}, s{sT2}")
    a.e(f"s_lshl_b32 s{sT2}, s{sNT}, 6")
    a.e(f"s_add_u32 s{sT0}, s{sT0}, s{sT2}")
    a.e(f"v_and_b32 v4, 31, v{L}") if False else None
    a.e(f"v_and_b32 v{vAW}, 31, v{L}")
    a.e(f"v_lshlrev_b32 v{vAW}, 11, v{vAW}")
    a.e(f"v_lshrrev_b32 v{vBW}, 5, v{L}")
    a.e(f"v_lshl_add_u32 v{vAW}, v{vBW}, 4, v{vAW}")
    for i in range(3):
        lab = f"{name}_mvown{i}"
        a.e(f"s_cmp_eq_u32 s{sOwn}, {i}")
        a.e(f"s_cbranch_scc0 {lab}")
        for r in range(16): a.e(f"v_mov_b32 v{96+r}, v{16*i+r}")
        a.lab(lab)
    for dd in range(3):
        a.e(f"s_waitcnt vmcnt({4 - 2*dd})")
        for r in range(8):
            src = 64 + dd*8 + r
            a.e(f"v_lshlrev_b32 v112, 16, v{src}")
            a.e(f"v_and_b32 v113, 0xffff0000, v{src}")
            a.e(f"v_add_f32 v{96+2*r}, v{96+2*r}, v112")
            a.e(f"v_add_f32 v{96+2*r+1}, v{96+2*r+1}, v113")
    for r in range(8): a.e(f"v_cvt_pk_bf16_f32 v{64+r}, v{96+2*r}, v{96+2*r+1}")
    a.e(f"buffer_store_dwordx4 v[64:67], v{vAW}, s[{sOut}:{sOut+3}], s{sT0} offen")
    a.e(f"buffer_store_dwordx4 v[68:71], v{vAW}, s[{sOut}:{sOut+3}], s{sT0} offen offset:32")
    a.lab(f"{name}_odone")
    if C.PROF: a.e("s_waitcnt vmcnt(0)")
```

```python
import sys, math
from dsl import *

NAME = "concat_heads__gqa_block_cached__gqa_block_cached__near_ridge"
PROF = False
QSCALE = math.log2(math.e) / math.sqrt(128.0)
import struct
def f2u(x): return struct.unpack("<I", struct.pack("<f", x))[0]

import os as _os
WS_BASE = int(_os.environ.get('WSB', '0')) << 20
WS_O = WS_BASE + 0
WS_P = WS_BASE + (22 << 20)
WS_T = 128 << 20

def srd(a, sd, sbase, size, off_s=None):
    if off_s is None:
        a.e(f"s_mov_b32 s{sd}, s{sbase}")
        a.e(f"s_mov_b32 s{sd+1}, s{sbase+1}")
    else:
        a.e(f"s_add_u32 s{sd}, s{sbase}, s{off_s}")
        a.e(f"s_addc_u32 s{sd+1}, s{sbase+1}, 0")
    a.e(f"s_mov_b32 s{sd+2}, {size}")
    a.e(f"s_mov_b32 s{sd+3}, 0x00020000")

def stamp(a, idx):
    if not globals()["PROF"]: return
    a.e(f"s_memtime s[{64+2*idx}:{65+2*idx}]")
    a.e("s_waitcnt lgkmcnt(0)")
def stamp_nw(a, idx):
    if not globals()["PROF"]: return
    a.e(f"s_memtime s[{64+2*idx}:{65+2*idx}]")
def stamp_rt(a, idx):
    if not globals()["PROF"]: return
    a.e(f"s_memrealtime s[{64+2*idx}:{65+2*idx}]")
    a.e("s_waitcnt lgkmcnt(0)")
def stamp_store(a, sWS, sW, nst, kidx, vtmp):
    if not globals()["PROF"]: return
    a.e(f"s_lshl_b32 s60, s2, 4")
    a.e(f"s_add_u32 s60, s60, s{sW}")
    a.e(f"s_lshl_b32 s60, s60, 6")
    a.e(f"s_add_u32 s60, s60, {WS_T + (kidx << 20)}")
    a.e(f"s_add_u32 s62, s{sWS}, s60")
    a.e(f"s_addc_u32 s63, s{sWS+1}, 0")
    a.e(f"v_mov_b32 v{vtmp}, 0")
    for i in range(nst):
        a.e(f"v_mov_b32 v{vtmp+1}, s{64+2*i}")
        a.e(f"global_store_dword v{vtmp}, v{vtmp+1}, s[62:63] offset:{4*i}")
    a.e("s_waitcnt vmcnt(0)")
```

```python
from dsl import *
import common as C
from common import srd, stamp, stamp_nw, stamp_rt, stamp_store, f2u, QSCALE

OPT = dict(QNT=False, ROT=2, LAT=4, PRIO=(1, 0, 1), FUSE=True, WNT=True, SPIN=1 << 16, CTOUCH=2, WTAT=13, QNT0=3,
           QW=([], [0, 1, 2, 3], [], [4, 5, 6, 7], []), QX=([], [0, 1], [], [2, 3, 4], []), QLATE=(0, 0, 0, 0, 0))

def gen_k1(name):
    a = Asm()
    QNT = OPT["QNT"]; LAT = OPT["LAT"]; NQ = OPT.get("NQ", 3)
    QW, QX = OPT["QW"], OPT["QX"]
    NC = 5
    QLATE = OPT["QLATE"]
    QN = [len(QW[c]) + len(QX[c]) for c in range(NC)]
    sKc = 3
    sX, sWQ, sK, sV, sO = 8, 12, 16, 20, 24
    sW, sHS, sQB, sHsW = 28, 29, 30, 31
    sL1024 = 32
    sReg, sRegD = 33, 34
    sT0, sT1, sT2, sT3 = 35, 36, 37, 38
    sCnt = 39
    sHs8k, sTile, sHsX, sHsXl = 40, 41, 42, 43
    sH0, sBeta, sB, sRegN = 44, 45, 46, 47
    sPtr = 48
    sWS = 56
    sCls, sBufA, sBufB = 30, 59, 61
    sKVs, sKVl = 4, 5
    FUSE = OPT["FUSE"]
    sPOut, sPWo, sDbg, sHpl = 6, 62, 96, 100
    WS_F = C.WS_BASE + (33 << 20)
    WSLOT = [32768, 49152, 65536, 0]
    OSLOT0 = 81920
    vO, vQ, vS, vNM, vF = 0, 64, 96, 112, 128
    vA = 144
    vA0K, vA0V, vL0, vL1, vMX, vMX2 = 148, 149, 150, 151, 152, 153
    vT0, vT1 = 154, 155
    vDK, vDV, vDX, vDW, vXB, vOst = 156, 157, 158, 159, 160, 161
    vLane = 162
    NV = 168
    R = 32768
    L = vLane
    uid = [0]
    def newlab(p):
        uid[0] += 1
        return f"{name}_{p}{uid[0]}"

    a.raw(f".globl {name}\n.p2align 8\n.type {name},@function\n{name}:")
    a.e("s_cmp_ge_u32 s2, 256")
    a.e(f"s_cbranch_scc1 {name}_end")
    stamp_rt(a, 0); stamp(a, 1)
    a.e(f"s_load_dwordx2 s[{sWS}:{sWS+1}], s[0:1], 96")
    if FUSE:
        a.e(f"s_load_dwordx2 s[{sPOut}:{sPOut+1}], s[0:1], 80")
        a.e(f"s_load_dwordx2 s[{sDbg}:{sDbg+1}], s[0:1], 88")
    a.e(f"s_and_b32 s{sT0}, s2, 7")
    a.e(f"s_lshr_b32 s{sT1}, s2, 3")
    a.e(f"s_lshr_b32 s{sBeta}, s{sT0}, 2")
    a.e(f"s_mul_i32 s{sT2}, s{sBeta}, 40")
    a.e(f"s_add_u32 s0, s0, s{sT2}")
    a.e(f"s_addc_u32 s1, s1, 0")
    a.e(f"s_load_dwordx8 s[{sPtr}:{sPtr+7}], s[0:1], 0")
    if FUSE: a.e(f"s_load_dwordx2 s[{sPWo}:{sPWo+1}], s[0:1], 32")
    a.e(f"s_and_b32 s{sT0}, s{sT0}, 3")
    a.e(f"s_lshr_b32 s{sB}, s{sT1}, 2")
    a.e(f"s_and_b32 s{sT1}, s{sT1}, 3")
    a.e(f"s_mov_b32 s{sHpl}, s{sT1}")
    a.e(f"s_lshl_b32 s{sT0}, s{sT0}, 2")
    a.e(f"s_add_u32 s{sH0}, s{sT0}, s{sT1}")
    a.e(f"s_lshl_b32 s{sH0}, s{sH0}, 1")
    a.e(f"v_lshrrev_b32 v1, 6, v0")
    a.e(f"v_and_b32 v{L}, 63, v0")
    a.e(f"v_readfirstlane_b32 s{sW}, v1")
    a.e(f"s_and_b32 s{sHS}, s{sW}, 1")
    a.e(f"s_lshr_b32 s{sQB}, s{sW}, 1")
    a.e(f"s_and_b32 s{sT0}, s{sW}, 3")
    a.e(f"s_lshl_b32 s{sL1024}, s{sT0}, 10")
    if OPT.get("CTOUCH"):
        a.c("waves 8, 9 of the first workgroups of an XCD group pull the kernel's own code into L2 (one dword per 128-byte line)")
        a.e(f"s_cmp_lt_u32 s{sW}, 8")
        a.e(f"s_cbranch_scc1 {name}_noct")
        a.e(f"s_lshr_b32 s{sT1}, s2, 3")
        a.e(f"s_cmp_ge_u32 s{sT1}, {OPT['CTOUCH']}")
        a.e(f"s_cbranch_scc1 {name}_noct")
        a.e(f"s_getpc_b64 s[60:61]")
        a.lab(f"{name}_pc")
        a.e(f"s_lshl_b32 s{sT1}, s{sT1}, 1")
        a.e(f"s_add_u32 s{sT1}, s{sT1}, s{sHS}")
        a.e(f"s_lshl_b32 s{sT1}, s{sT1}, 13")
        a.e(f"v_lshlrev_b32 v2, 7, v{L}")
        a.e(f"v_add_u32 v2, s{sT1}, v2")
        a.e(f"s_mov_b32 s{sT1}, {name}_end-{name}_pc")
        a.e(f"v_cmp_gt_u32 vcc, s{sT1}, v2")
        a.e(f"s_and_saveexec_b64 s[{sT2}:{sT2+1}], vcc") if False else None
        a.e(f"s_and_saveexec_b64 s[4:5], vcc")
        a.e(f"s_cbranch_execz {name}_ct2")
        a.e(f"global_load_dword v165, v2, s[60:61]")
        a.lab(f"{name}_ct2")
        a.e(f"s_mov_b64 exec, -1")
        a.lab(f"{name}_noct")
    a.e(f"""
    v_lshrrev_b32 v2, 4, v{L}            ; i>>4
    v_lshlrev_b32 v3, 2, v2
    v_and_b32 v4, 15, v{L}
    v_xor_b32 v3, v3, v4
    v_lshlrev_b32 v3, 4, v3
    v_lshl_add_u32 v{vDV}, v2, 8, v3     ; V: (i>>4)*256 + swz*16
    v_lshl_add_u32 v{vDW}, v2, 13, v3
    v_and_b32 v2, 3, v2                  ; (i>>4)&3
    v_and_b32 v4, 3, v{L}
    v_xor_b32 v2, v2, v4
    v_lshlrev_b32 v2, 4, v2
    v_lshrrev_b32 v3, 2, v{L}
    v_lshl_add_u32 v{vDX}, v3, 10, v2    ; x: (i>>2)*1024 + swz*16
    s_lshl_b32 s{sT1}, s{sT0}, 3
    v_lshrrev_b32 v2, 3, v{L}            ; i>>3
    v_add_u32 v2, s{sT1}, v2             ; row = 8l + (i>>3)
    v_bfe_u32 v3, v2, 1, 3
    v_and_b32 v4, 7, v{L}
    v_xor_b32 v3, v3, v4
    v_lshlrev_b32 v3, 4, v3
    v_lshl_add_u32 v{vDK}, v2, 8, v3
    s_lshl_b32 s{sHs8k}, s{sHS}, 13
    s_lshl_b32 s{sHsW}, s{sHS}, 8
    s_mul_i32 s{sHsX}, s{sHS}, 81920
    s_mul_i32 s{sHsXl}, s{sHS}, 5120
    s_mul_i32 s{sKc}, s{sB}, {OPT["ROT"]}
    s_mul_i32 s{sT1}, s{sHpl}, {OPT.get("ROTH", 0)}
    s_add_u32 s{sKc}, s{sKc}, s{sT1}
    s_and_b32 s{sKc}, s{sKc}, 15
    """)
    a.e("s_waitcnt lgkmcnt(0)")
    if FUSE:
        a.e(f"s_mov_b32 s{sDbg+2}, 256")
        a.e(f"s_mov_b32 s{sDbg+3}, 0x00020000")
        a.e(f"s_cmp_eq_u32 s{sW}, 0")
        a.e(f"s_cbranch_scc0 {name}_noinit")
        a.c("wave 0 clears this workgroup's two hand-off words, then counts the workgroup into its group")
        a.e(f"s_mov_b32 s{sT0}, {WS_F}")
        srd(a, sX, sWS, 65536, sT0)
        a.e(f"s_lshl_b32 s{sT0}, s2, 8")
        a.e(f"v_lshlrev_b32 v2, 6, v{L}")
        a.e(f"v_add_u32 v2, s{sT0}, v2")
        a.e(f"v_mov_b32 v3, 0")
        a.e(f"s_mov_b64 exec, 15")
        a.e(f"buffer_store_dword v3, v2, s[{sX}:{sX+3}], 0 offen sc1")
        a.e(f"s_waitcnt vmcnt(0)")
        a.e(f"s_lshl_b32 s{sT0}, s{sBeta}, 3")
        a.e(f"s_add_u32 s{sT0}, s{sT0}, s{sB}")
        a.e(f"s_lshl_b32 s{sT0}, s{sT0}, 2")
        a.e(f"s_mov_b64 exec, 1")
        a.e(f"v_mov_b32 v2, s{sT0}")
        a.e(f"v_mov_b32 v3, 1")
        a.e(f"buffer_atomic_add v3, v2, s[{sDbg}:{sDbg+3}], 0 offen sc1")
        a.e(f"s_mov_b64 exec, -1")
        a.lab(f"{name}_noinit")
    a.e(f"s_mul_i32 s{sT0}, s{sB}, 163840")
    srd(a, sX, sPtr+0, 163840, sT0)
    a.e(f"s_lshl_b32 s{sT0}, s{sH0}, 8")
    srd(a, sWQ, sPtr+6, 0, sT0)
    a.e(f"s_sub_u32 s{sWQ+2}, 4194304, s{sT0}")
    a.e(f"s_lshl_b32 s{sT0}, s{sB}, 5")
    a.e(f"s_add_u32 s{sT0}, s{sT0}, s{sH0}")
    a.e(f"s_lshl_b32 s{sT0}, s{sT0}, 17")
    srd(a, sK, sPtr+2, 262144, sT0)
    srd(a, sV, sPtr+4, 262144, sT0)
    a.e(f"s_lshl_b32 s{sT0}, s{sBeta}, 3")
    a.e(f"s_add_u32 s{sT0}, s{sT0}, s{sB}")
    a.e(f"s_mul_i32 s{sT0}, s{sT0}, 1310720")
    if C.WS_O: a.e(f"s_add_u32 s{sT0}, s{sT0}, {C.WS_O}")
    srd(a, sO, sWS, 1310720, sT0)

    def sadd(dst, base, imm):
        if isinstance(base, tuple): a.e(f"s_add_u32 {dst}, s{base[1]}, {imm}")
        else: a.e(f"s_mov_b32 {dst}, {base + imm}")
    def sadds(dst, base, sreg):
        if isinstance(base, tuple): a.e(f"s_add_u32 {dst}, s{base[1]}, s{sreg}")
        else: a.e(f"s_add_u32 {dst}, s{sreg}, {base}")
    def vadd(dst, base, imm, vreg):
        if isinstance(base, tuple):
            if imm:
                a.e(f"s_add_u32 s{sT2}, s{base[1]}, {imm & 0xffffffff}")
                a.e(f"v_add_u32 v{dst}, s{sT2}, v{vreg}")
            else: a.e(f"v_add_u32 v{dst}, s{base[1]}, v{vreg}")
        else: a.e(f"v_add_u32 v{dst}, {base + imm}, v{vreg}")
    def dma(voff, sr, m0base, m0imm, sbase, simm, nt):
        a.e(f"s_add_u32 m0, s{m0base}, {m0imm}")
        a.e(f"s_add_u32 s{sT3}, s{sbase}, {simm}")
        a.e(f"buffer_load_dwordx4 v{voff}, s[{sr}:{sr+3}], s{sT3} offen {'nt ' if nt else ''}lds")
    def cls_block(c, body):
        lab = newlab(f"c{c}_")
        a.e(f"s_cmp_eq_u32 s{sCls}, {c}")
        a.e(f"s_cbranch_scc0 {lab}")
        body()
        a.lab(lab)

    def lo4_block(body):
        lab = newlab("lo4_")
        a.e(f"s_cmp_lt_u32 s{sW}, 4")
        a.e(f"s_cbranch_scc0 {lab}")
        body()
        a.lab(lab)
    def kv_pieces(region, tile_off, parts):
        sadds(f"s{sT0}", region, sL1024)
        sadds(f"s{sT1}", tile_off, sL1024)
        sadd(f"s{sT2}", tile_off, 0)
        for p in parts:
            hs2 = p & 1
            if p < 2:
                for half in (0, 1):
                    dma(vDK, sK, sT0, hs2*8192 + half*4096, sT2, hs2*131072 + half*128, True)
            else:
                for nn in (0, 4):
                    dma(vDV, sV, sT0, 16384 + hs2*8192 + nn*1024, sT1, hs2*131072 + nn*1024, True)
    def q_pieces(c, buf, nt0=None):
        wnt = OPT.get("WQNT", QNT) if nt0 is None else nt0
        xnt = OPT.get("XNT", QNT) if nt0 is None else nt0
        if QW[c]:
            a.e(f"s_lshl_b32 s{sT0}, s{sKc}, 18")
            a.e(f"s_add_u32 s{sT0}, s{sT0}, s{sHsW}")
            sadds(f"s{sT1}", buf, sHs8k)
            for n in QW[c]:
                dma(vDW, sWQ, sT1, 10240 + n*1024, sT0, n*32768, wnt)
        if QX[c]:
            a.e(f"s_lshl_b32 s{sT0}, s{sKc}, 6")
            a.e(f"s_add_u32 s{sT0}, s{sT0}, s{sHsX}")
            sadds(f"s{sT1}", buf, sHsXl)
            for m in QX[c]:
                dma(vDX, sX, sT1, m*1024, sT0, m*16384, xnt)
    def kc_next():
        a.e(f"s_add_u32 s{sKc}, s{sKc}, 1")
        a.e(f"s_and_b32 s{sKc}, s{sKc}, 15")

    if NQ == 3:
        QB = [2*R, 3*R, 4*R]; qbuf = lambda sg: QB[(sg + 2) % 3]; QSTR = R
    else:
        QB = [57344 + 26624*i for i in range(4)]; qbuf = lambda sg: QB[sg % 4]; QSTR = 26624
    QSET = [dict(B=(96, 100), A=104), dict(B=(136, 140), A=64)]
    def q_reads(par, buf):
        st = QSET[par]
        vadd(vA, buf, -6144, vA0V)
        vadd(vT0, buf, 0, vXB)
        a.e(f"v_xor_b32 v{vA+1}, 64, v{vA}")
        a.e(f"v_xor_b32 v{vA+2}, 128, v{vA}")
        a.e(f"v_xor_b32 v{vA+3}, 192, v{vA}")
        a.e(f"v_xor_b32 v{vT1}, 32, v{vT0}")
        L_ = []
        for sx in range(2):
            b = st["B"][sx]
            L_.append(f"ds_read_b128 v[{b}:{b+3}], v{vT0 if sx == 0 else vT1}")
            for t in range(4):
                d = st["A"] + (sx*4 + t)*4
                L_.append(f"ds_read_b64_tr_b16 v[{d}:{d+1}], v{vA+t} offset:{sx*4096}")
                L_.append(f"ds_read_b64_tr_b16 v[{d+2}:{d+3}], v{vA+t} offset:{sx*4096+1024}")
        return L_
    def q_mfmas(par, rd, fq=False):
        st = QSET[par]; nrd = 0
        for i in range(8):
            sx, t = i >> 2, i & 3
            d = st["A"] + (sx*4 + t)*4
            b = st["B"][sx]
            a.e(f"v_mfma_f32_32x32x16_bf16 v[{vO+16*t}:{vO+16*t+15}], v[{d}:{d+3}], v[{b}:{b+3}], v[{vO+16*t}:{vO+16*t+15}]")
            if rd:
                if nrd >= 12: a.e("s_waitcnt lgkmcnt(9)")
                for _ in range(3):
                    if rd: a.e(rd.pop(0)); nrd += 1
            if fq and (i & 1): stamp_nw(a, 11 + (i >> 1))

    def lane_addresses():
        a.e(f"""
        v_lshrrev_b32 v1, 5, v{L}            ; h
        v_bfe_u32 v2, v{L}, 2, 2             ; r
        v_lshl_add_u32 v3, v1, 3, v2         ; 8h+r
        v_lshlrev_b32 v3, 8, v3
        v_lshl_add_u32 v3, v2, 6, v3         ; + r*64
        v_bfe_u32 v4, v{L}, 4, 1
        v_lshl_add_u32 v3, v4, 5, v3         ; + g*32
        v_and_b32 v4, 1, v{L}
        v_lshl_add_u32 v3, v4, 4, v3         ; + c0*16
        v_bfe_u32 v4, v{L}, 1, 1
        v_lshl_add_u32 v3, v4, 3, v3         ; + c1*8
        s_add_u32 s{sT1}, s{sHs8k}, 16384
        v_add_u32 v{vA0V}, s{sT1}, v3
        v_and_b32 v2, 0x13, v{L}
        v_and_b32 v3, 4, v{L}
        v_lshl_or_b32 v2, v3, 1, v2
        v_and_b32 v3, 8, v{L}
        v_lshrrev_b32 v3, 1, v3
        v_or_b32 v2, v2, v3                  ; rho
        v_bfe_u32 v3, v2, 1, 3
        v_xor_b32 v3, v3, v1
        v_lshlrev_b32 v3, 4, v3
        v_lshl_add_u32 v3, v2, 7, v3
        v_add_u32 v{vA0K}, s{sHs8k}, v3
        v_and_b32 v2, 31, v{L}
        v_bfe_u32 v3, v{L}, 2, 2
        v_xor_b32 v3, v3, v1
        v_lshlrev_b32 v3, 4, v3
        v_lshl_add_u32 v3, v2, 6, v3
        s_lshl_b32 s{sT0}, s{sQB}, 11
        v_add_u32 v{vXB}, s{sT0}, v3
        v_lshlrev_b32 v{vOst}, 4, v{L}
        """)

    seq = []
    def push(key, n4): seq.append((key, list(n4)))
    def wait_for(key):
        idx = max(i for i, e in enumerate(seq) if e[0] == key)
        for c in range(NC):
            if not any(e[0] == key and e[1][c] for e in seq): continue
            n = min(63, sum(e[1][c] for e in seq[idx+1:]))
            cls_block(c, lambda n=n: a.e(f"s_waitcnt vmcnt({n})"))

    for c in range(1, NC):
        a.e(f"s_cmp_eq_u32 s{sCls}, {c}")
        a.e(f"s_cbranch_scc1 {name}_cls{c}")
    for c in range(NC):
        a.lab(f"{name}_cls{c}")
        for sg in range(NQ):
            q_pieces(c, qbuf(sg), True if sg < OPT.get("QNT0", 0) else None); kc_next()
        if OPT.get("QTOUCH") and c in (2, 4):
            a.c("pull this workgroup's share of the XCD group's x / Wq lines into L2 (one dword per 128-byte line)")
            if c == 2:
                a.e(f"s_mul_i32 s{sT0}, s{sHpl}, 40960")
                a.e(f"s_mul_i32 s{sT1}, s{sHS}, 20480")
                a.e(f"s_add_u32 s{sT0}, s{sT0}, s{sT1}")
                a.e(f"v_lshlrev_b32 v5, 7, v{L}")
                for m in range(3):
                    a.e(f"s_add_u32 s{sT1}, s{sT0}, {m*8192}")
                    if m == 2: a.e("s_mov_b64 exec, 0xffffffff")
                    a.e(f"buffer_load_dword v{163+m}, v5, s[{sX}:{sX+3}], s{sT1} offen {OPT.get('QTFL', '')}")
                a.e("s_mov_b64 exec, -1")
            else:
                a.e(f"s_lshl_b32 s{sT0}, s{sB}, 19")
                a.e(f"s_lshl_b32 s{sT1}, s{sHS}, 18")
                a.e(f"s_add_u32 s{sT0}, s{sT0}, s{sT1}")
                a.e(f"v_lshrrev_b32 v5, 2, v{L}")
                a.e(f"v_lshlrev_b32 v5, 13, v5")
                a.e(f"v_and_b32 v6, 3, v{L}")
                a.e(f"v_lshl_add_u32 v5, v6, 7, v5")
                for m in range(2):
                    a.e(f"s_add_u32 s{sT1}, s{sT0}, {m*16*8192}")
                    a.e(f"buffer_load_dword v{163+m}, v5, s[{sWQ}:{sWQ+3}], s{sT1} offen {OPT.get('QTFL', '')}")
        if FUSE and OPT.get("PTOUCH") and c == 4:
            a.c("address-translation warm-up: one dword from each 64 KiB of the workspace / output areas this workgroup uses later")
            st = OPT["PTOUCH"]
            srd(a, 64 if False else 92, sWS, 0x10000000) if False else None
            a.e(f"v_lshlrev_b32 v5, 16, v{L}")
            a.e(f"s_mov_b64 exec, 0xfffff")
            a.e(f"buffer_load_dword v166, v5, s[{sO}:{sO+3}], 0 offen")
            a.e(f"s_mov_b64 exec, -1")
            a.e(f"s_lshl_b32 s{sT0}, s{sBeta}, 3")
            a.e(f"s_add_u32 s{sT0}, s{sT0}, s{sB}")
            a.e(f"s_lshl_b32 s{sT0}, s{sT0}, 2")
            a.e(f"s_add_u32 s{sT0}, s{sT0}, s{sHpl}")
            a.e(f"s_mul_i32 s{sT0}, s{sT0}, 40960")
            a.e(f"s_add_u32 s{sT0}, s{sT0}, {C.WS_P}")
            a.e(f"v_mul_u32_u24 v5, {64*40960 >> 8}, v{L}")
            a.e(f"v_lshlrev_b32 v5, 8, v5")
            a.e(f"v_add_u32 v5, s{sT0}, v5")
            a.e(f"v_mov_b32 v6, {WS_F}")
            a.e(f"v_cmp_eq_u32 vcc, 4, v{L}")
            a.e(f"s_nop 1")
            a.e(f"v_cndmask_b32 v5, v5, v6, vcc")
            a.e(f"s_mov_b64 exec, 31")
            a.e(f"global_load_dword v167, v5, s[{sWS}:{sWS+1}]")
            a.e(f"s_mul_i32 s{sT0}, s{sB}, {160*2048}")
            a.e(f"v_lshlrev_b32 v5, 16, v{L}")
            a.e(f"v_add_u32 v5, s{sT0}, v5")
            a.e(f"s_mov_b64 exec, 31")
            a.e(f"global_load_dword v165, v5, s[{sPOut}:{sPOut+1}]")
            a.e(f"s_mov_b64 exec, -1")
        stamp(a, 2)
        lane_addresses()
        for r in range(64): a.e(f"v_mov_b32 v{vO+r}, 0")
        if QN[c]: a.e(f"s_waitcnt vmcnt({(NQ-1)*QN[c]})")
        a.e("s_barrier")
        rd = q_reads(0, qbuf(0))
        for i, r_ in enumerate(rd):
            if i == 14: a.e("s_waitcnt lgkmcnt(8)")
            a.e(r_)
        a.e("s_waitcnt lgkmcnt(0)")
        stamp(a, 3)
        a.e(f"s_mov_b32 s{sBufA}, {qbuf(0)}")
        a.e(f"s_mov_b32 s{sBufB}, {qbuf(1)}")
        a.e(f"s_mov_b32 s{sCnt}, 0")
        a.e(f"s_mov_b32 s{sKVs}, 0")
        a.e(f"s_mov_b32 s{sKVl}, 0")
        a.lab(f"{name}_ql{c}")
        for par in range(2):
            if QN[c]: a.e(f"s_waitcnt vmcnt({(NQ-2)*QN[c]})")
            a.e("s_barrier")
            fq = OPT.get("FINEQ") and par == 0
            if fq: stamp_nw(a, 10)
            if OPT.get("FINEQ") and par == 1: stamp_nw(a, 15)
            rd = q_reads(1 - par, ("s", sBufB))
            if QN[c] and not QLATE[c]: q_pieces(c, ("s", sBufA))
            q_mfmas(par, rd, fq)
            if QN[c] and QLATE[c]: q_pieces(c, ("s", sBufA))
            kc_next()
            a.e(f"s_mov_b32 s{sBufA}, s{sBufB}")
            a.e(f"s_add_u32 s{sBufB}, s{sBufB}, {QSTR}")
            a.e(f"s_cmp_eq_u32 s{sBufB}, {5*R}")
            a.e(f"s_cselect_b32 s{sBufB}, {QB[0]}, s{sBufB}")
            if c == 0:
                lab = newlab("nokv")
                a.e(f"s_cmp_lt_u32 s{sCnt}, {3 if (NQ == 4 and par == 1) else 4}")
                a.e(f"s_cbranch_scc0 {lab}")
                a.e(f"s_add_u32 s{sT0}, s{sKVl}, s{sL1024}")
                if par == 0:
                    for n2 in (0, 2):
                        for half in (0, 1):
                            dma(vDK, sK, sT0, half*4096 + n2*1024, sKVs, half*128 + n2*2048, True)
                else:
                    a.e(f"s_add_u32 s{sT1}, s{sKVs}, s{sL1024}")
                    for nn in (0, 2, 4, 6):
                        dma(vDV, sV, sT0, 16384 + nn*1024, sT1, nn*1024, True)
                    a.e(f"s_add_u32 s{sT0}, s{sCnt}, 1")
                    a.e(f"s_lshr_b32 s{sT1}, s{sT0}, 1")
                    a.e(f"s_and_b32 s{sT0}, s{sT0}, 1")
                    a.e(f"s_lshl_b32 s{sKVs}, s{sT1}, 13")
                    a.e(f"s_lshl_b32 s{sT2}, s{sT0}, 17")
                    a.e(f"s_add_u32 s{sKVs}, s{sKVs}, s{sT2}")
                    a.e(f"s_lshl_b32 s{sKVl}, s{sT1}, 15")
                    a.e(f"s_lshl_b32 s{sT2}, s{sT0}, 13")
                    a.e(f"s_add_u32 s{sKVl}, s{sKVl}, s{sT2}")
                a.lab(lab)
            a.e("s_waitcnt lgkmcnt(0)")
        a.e(f"s_add_u32 s{sCnt}, s{sCnt}, 1")
        a.e(f"s_cmp_lt_u32 s{sCnt}, 6")
        a.e(f"s_cbranch_scc1 {name}_ql{c}")
        if c < NC - 1: a.e(f"s_branch {name}_qtail")
    a.lab(f"{name}_qtail")
    stamp(a, 9)
    for i in range(4): push(("kv", i >> 1), [4 if (NQ == 4 and i == 3) else 8, 0, 0, 0, 0])
    for sg in range(13, 12 + NQ): push(("q", sg), QN)
    def q_iter(sg, kv):
        rd = []
        if sg < 15: wait_for(("q", sg + 1))
        a.e("s_barrier")
        if sg < 15: rd = q_reads((sg + 1) & 1, qbuf(sg + 1))
        if sg + NQ < 16:
            for c in range(NC):
                if QN[c] and not QLATE[c]: cls_block(c, lambda c=c: q_pieces(c, qbuf(sg + NQ)))
        q_mfmas(sg & 1, rd)
        if sg + NQ < 16:
            for c in range(NC):
                if QN[c] and QLATE[c]: cls_block(c, lambda c=c: q_pieces(c, qbuf(sg + NQ)))
            push(("q", sg + NQ), QN)
        if NQ == 4 and sg == 12:
            def vlast():
                a.e(f"s_add_u32 s{sT0}, s{sL1024}, {R + 16384 + 8192}")
                a.e(f"s_add_u32 s{sT1}, s{sL1024}, {8192 + 131072}")
                for nn in (0, 2, 4, 6):
                    dma(vDV, sV, sT0, nn*1024, sT1, nn*1024, True)
            cls_block(0, vlast)
            push(("kv1v", 1), [4, 0, 0, 0, 0])
        if kv is not None:
            lo4_block(lambda: kv_pieces((kv % 5)*R, kv*8192, [0, 1, 2, 3]))
            push(("kv", kv), [8, 8, 0, 0, 0])
        a.e("s_waitcnt lgkmcnt(0)")
    q_iter(12, None); q_iter(13, 2); q_iter(14, 3); q_iter(15, 4 if LAT == 4 else None)
    stamp(a, 4)
    if FUSE:
        a.e(f"s_lshl_b32 s{sT0}, s{sHpl}, 8")
        srd(a, sX, sPWo, 0, sT0)
        a.e(f"s_sub_u32 s{sX+2}, 4194304, s{sT0}")
        a.e(f"v_lshrrev_b32 v{vT0}, 4, v{L}")
        a.e(f"v_mul_u32_u24 v{vT0}, 768, v{vT0}")
        a.e(f"v_add_u32 v{vDW}, v{vT0}, v{vDV}")
    PACE = OPT.get("PACE") if FUSE else None
    if PACE:
        a.e(f"s_mov_b32 s{sT0}, {WS_F}")
        srd(a, sWQ, sWS, 65536, sT0)
        a.e(f"s_andn2_b32 s{sT0}, s2, 7")
        a.e(f"v_or_b32 v165, s{sT0}, v{L}")
        a.e(f"v_lshlrev_b32 v165, 8, v165")
        a.e(f"v_add_u32 v165, 64, v165")
    a.nop(12)
    a.e(f"s_mov_b32 s{sT0}, {hex(f2u(QSCALE))}")
    a.e(f"v_mov_b32 v{vMX}, s{sT0}")
    a.nop(1)
    for r in range(32):
        a.e(f"v_pk_mul_f32 v[{vO+2*r}:{vO+2*r+1}], v[{vO+2*r}:{vO+2*r+1}], v[{vMX}:{vMX+1}] op_sel_hi:[1,0]")
    for r in range(32):
        a.e(f"v_cvt_pk_bf16_f32 v{vQ+r}, v{vO+2*r}, v{vO+2*r+1}")

    F0 = OPT.get("FINE0")
    if F0: stamp_nw(a, 10)
    def k_addr(reg):
        vadd(vA, reg, 0, vA0K)
        a.e(f"v_xor_b32 v{vA+1}, 32, v{vA}")
        a.e(f"v_xor_b32 v{vA+2}, 64, v{vA}")
        a.e(f"v_xor_b32 v{vA+3}, 96, v{vA}")
    def rdK(j):
        f = vF + (j & 3)*4
        a.ds(f"ds_read_b128 v[{f}:{f+3}], v{vA+(j&3)} offset:{(j>>2)*4096}", ("K", j))
    def setprio(p):
        if p is not None: a.e(f"s_setprio {p}")
    S = lambda r: f"v{vS+r}"
    def att_body(tag, first, reg, regn):
        PQ, PS, PP = OPT["PRIO"]
        fine = False
        def rdV(sx, t):
            f = vF + t*4
            a.ds(f"ds_read_b64_tr_b16 v[{f}:{f+1}], v{vA+t} offset:{sx*4096}", ("V", sx, t, 0))
            a.ds(f"ds_read_b64_tr_b16 v[{f+2}:{f+3}], v{vA+t} offset:{sx*4096+1024}", ("V", sx, t, 1))
        setprio(PQ)
        for j in range(8):
            a.need(("K", j))
            f = vF + (j & 3)*4
            cop = f"v[{vS}:{vS+15}]" if j else ("0" if first else f"v[{vNM}:{vNM+15}]")
            a.e(f"v_mfma_f32_32x32x16_bf16 v[{vS}:{vS+15}], v[{f}:{f+3}], v[{vQ+4*j}:{vQ+4*j+3}], {cop}")
            if j < 4: rdK(j+4)
            if j == 3:
                vadd(vA, reg, 0, vA0V)
                a.e(f"v_xor_b32 v{vA+1}, 64, v{vA}")
                a.e(f"v_xor_b32 v{vA+2}, 128, v{vA}")
                a.e(f"v_xor_b32 v{vA+3}, 192, v{vA}")
            if j >= 4: rdV(0, j - 4)
        setprio(PS)
        a.nop(10)
        a.e(f"v_max3_f32 v{vMX}, {S(0)}, {S(1)}, {S(2)}")
        a.e(f"v_max3_f32 v{vMX2}, {S(3)}, {S(4)}, {S(5)}")
        a.e(f"v_max3_f32 v{vMX}, v{vMX}, {S(6)}, {S(7)}")
        a.e(f"v_max3_f32 v{vMX2}, v{vMX2}, {S(8)}, {S(9)}")
        a.e(f"v_max3_f32 v{vMX}, v{vMX}, {S(10)}, {S(11)}")
        a.e(f"v_max3_f32 v{vMX2}, v{vMX2}, {S(12)}, {S(13)}")
        a.e(f"v_max3_f32 v{vMX}, v{vMX}, {S(14)}, {S(15)}")
        a.e(f"v_max_f32 v{vMX}, v{vMX}, v{vMX2}")
        if first:
            a.e(f"v_mov_b32 v{vMX2}, v{vMX}")
            a.nop(2)
            a.e(f"v_permlane32_swap_b32 v{vMX}, v{vMX2}")
            a.nop(1)
            a.e(f"v_max_f32 v{vMX}, v{vMX}, v{vMX2}")
            for r in range(16):
                a.e(f"v_sub_f32 {S(r)}, {S(r)}, v{vMX}")
            for r in range(16):
                a.e(f"v_sub_f32 v{vNM+r}, 0, v{vMX}")
            a.e(f"v_mov_b32 v{vL0}, 0")
            a.e(f"v_mov_b32 v{vL1}, 0")
        else:
            a.e(f"v_cmp_lt_f32 vcc, 0x41200000, v{vMX}")
            a.e(f"s_cbranch_vccnz {name}_rare_{tag}")
            a.lab(f"{name}_back_{tag}")
        ex = lambda r: a.e(f"v_exp_f32 {S(r)}, {S(r)}")
        ad = lambda r: a.e(f"v_add_f32 v{vL0 + (r&1)}, v{vL0 + (r&1)}, {S(r)}")
        pk = lambda d: a.e(f"v_cvt_pk_bf16_f32 {S(d)}, {S(2*d)}, {S(2*d+1)}")
        ex(0)
        for r in range(1, 8): ex(r); ad(r-1)
        pk(0); ad(7); pk(1); pk(2); pk(3)
        setprio(PP)
        a.nop(2)
        def pv(sx, t):
            a.need(("V", sx, t, 0), ("V", sx, t, 1))
            f = vF + t*4
            cop = "0" if (first and sx == 0) else f"v[{vO+16*t}:{vO+16*t+15}]"
            a.e(f"v_mfma_f32_32x32x16_bf16 v[{vO+16*t}:{vO+16*t+15}], v[{f}:{f+3}], v[{vS+4*sx}:{vS+4*sx+3}], {cop}")
        for t in range(4):
            pv(0, t); rdV(1, t)
            if t: ad(7 + 2*t)
            ex(8 + 2*t); ex(9 + 2*t); ad(8 + 2*t)
            if t: pk(3 + t)
        ad(15); pk(7)
        if regn is not None: k_addr(regn)
        else: a.nop(2)
        for t in range(4):
            pv(1, t)
            if regn is not None: rdK(t)
        if regn is None: a.drain()

    def rare(tag):
        a.lab(f"{name}_rare_{tag}")
        a.c("raise the subtracted max to the running row max and rescale what was accumulated")
        a.e(f"v_mov_b32 v{vMX2}, v{vMX}")
        a.nop(2)
        a.e(f"v_permlane32_swap_b32 v{vMX}, v{vMX2}")
        a.nop(1)
        a.e(f"v_max_f32 v{vMX}, v{vMX}, v{vMX2}")
        a.e(f"v_max_f32 v{vMX}, 0, v{vMX}")
        a.e(f"v_sub_f32 v{vMX2}, 0, v{vMX}")
        a.e(f"v_exp_f32 v{vMX2}, v{vMX2}")
        for r in range(16):
            a.e(f"v_sub_f32 v{vS+r}, v{vS+r}, v{vMX}")
        for r in range(16):
            a.e(f"v_sub_f32 v{vNM+r}, v{vNM+r}, v{vMX}")
        for r in range(64):
            a.e(f"v_mul_f32 v{vO+r}, v{vO+r}, v{vMX2}")
        a.e(f"v_mul_f32 v{vL0}, v{vL0}, v{vMX2}")
        a.e(f"v_mul_f32 v{vL1}, v{vL1}, v{vMX2}")
        a.e(f"s_branch {name}_back_{tag}")

    wait_for(("kv", 0))
    a.e("s_barrier")
    if F0: stamp_nw(a, 11)
    k_addr(0)
    for j in range(4): rdK(j)
    wait_for(("kv", 1))
    a.e("s_barrier")
    if F0: stamp_nw(a, 12)
    att_body("t0", True, 0, R)
    if F0: stamp_nw(a, 13)
    if F0: stamp_nw(a, 14)
    if C.PROF: a.e("s_waitcnt lgkmcnt(0)")
    stamp(a, 5)
    if FUSE and OPT.get("WTOUCH", True):
        a.c("pull this workgroup's 1/32 share of the quarter's Wo rows into L2 (one dword per 128-byte line)")
        def touch():
            a.e(f"s_lshr_b32 s{sT0}, s{sH0}, 3")
            a.e(f"s_lshl_b32 s{sT0}, s{sT0}, 20")
            a.e(f"s_lshl_b32 s{sT1}, s{sB}, 2")
            a.e(f"s_add_u32 s{sT1}, s{sT1}, s{sHpl}")
            a.e(f"s_lshl_b32 s{sT1}, s{sT1}, 15")
            a.e(f"s_add_u32 s{sT0}, s{sT0}, s{sT1}")
            a.e(f"s_lshl_b32 s{sT1}, s{sHS}, 14")
            a.e(f"s_add_u32 s{sT0}, s{sT0}, s{sT1}")
            a.e(f"s_lshl_b32 s{sT1}, s{sHpl}, 8")
            a.e(f"s_sub_u32 s{sT0}, s{sT0}, s{sT1}")
            a.e(f"v_lshlrev_b32 v{vT0}, 7, v{L}")
            for m in range(2):
                a.e(f"s_add_u32 s{sT1}, s{sT0}, {m*8192}")
                a.e(f"buffer_load_dword v{163+m}, v{vT0}, s[{sX}:{sX+3}], s{sT1} offen {OPT.get('WTFL', '')}")
        if not OPT.get("WTAT"): cls_block(2, touch)
    if FUSE:
        def init_check():
            a.c("request the group's start counter now; the loader waves look at it before they read any hand-off word")
            a.e(f"s_lshl_b32 s{sT0}, s{sBeta}, 3")
            a.e(f"s_add_u32 s{sT0}, s{sT0}, s{sB}")
            a.e(f"s_lshl_b32 s{sT0}, s{sT0}, 2")
            a.e(f"v_mov_b32 v{vT0}, s{sT0}")
            a.e(f"buffer_load_dword v166, v{vT0}, s[{sDbg}:{sDbg+3}], 0 offen sc1")
        cls_block(4, init_check)
    entry_state = list(a.lg)
    a.e(f"s_mov_b32 s{sCnt}, 1")
    a.e(f"s_mov_b32 s{sTile}, {LAT*8192}")
    a.e(f"s_mov_b32 s{sRegD}, {(LAT % 5)*R}")
    a.e(f"s_mov_b32 s{sReg}, 0")
    a.e(f"s_mov_b32 s{sRegN}, {R}")
    a.e(f"s_cmp_lt_u32 s{sW}, 4")
    a.e(f"s_cbranch_scc0 {name}_aloop1")
    for var in range(2):
        a.lg = list(entry_state)
        a.lab(f"{name}_aloop{var}")
        if var == 0:
            a.e(f"s_cmp_le_u32 s{sCnt}, {16 - LAT}")
            a.e(f"s_cbranch_scc0 {name}_atailw")
            a.e(f"s_waitcnt vmcnt({8*(LAT-2)})")
            a.lab(f"{name}_atailb")
        regs = (sReg, sRegN) + ((sRegD,) if var == 0 else ())
        def rot():
            for sr in regs:
                a.e(f"s_add_u32 s{sr}, s{sr}, {R}")
                a.e(f"s_cmp_eq_u32 s{sr}, {5*R}")
                a.e(f"s_cselect_b32 s{sr}, 0, s{sr}")
        if var == 0 and OPT.get("ROTPRE", True): rot()
        a.e("s_barrier")
        if not (var == 0 and OPT.get("ROTPRE", True)): rot()
        att_body(f"lp{var}", False, ("s", sReg), ("s", sRegN))
        if var == 0:
            a.e(f"s_add_u32 s{sTile}, s{sTile}, 8192")
            a.e(f"s_cmp_le_u32 s{sCnt}, {15 - LAT}")
            a.e(f"s_cbranch_scc0 {name}_anofill")
            if not OPT.get("ANODMA"): kv_pieces(("s", sRegD), ("s", sTile), [0, 1, 2, 3])
            if FUSE:
                a.e(f"s_branch {name}_afilled")
                a.lab(f"{name}_anofill")
                a.e(f"s_cmp_eq_u32 s{sCnt}, 14")
                a.e(f"s_cbranch_scc1 {name}_afilled")
                a.e(f"s_branch {name}_awo")
                a.lab(f"{name}_afilled")
            else:
                a.lab(f"{name}_anofill")
        if var == 1 and FUSE and OPT.get("WTAT"):
            a.e(f"s_cmp_eq_u32 s{sCnt}, {OPT['WTAT']}")
            a.e(f"s_cbranch_scc1 {name}_wtl")
            a.lab(f"{name}_wtb")
        if var == 1 and PACE:
            a.e(f"s_cmp_eq_u32 s{sW}, 4")
            a.e(f"s_cbranch_scc1 {name}_pace")
            a.lab(f"{name}_paceb")
        assert a.lg == entry_state
        a.e(f"s_add_u32 s{sCnt}, s{sCnt}, 1")
        a.e(f"s_cmp_lt_u32 s{sCnt}, 15")
        a.e(f"s_cbranch_scc1 {name}_aloop{var}")
        if var == 0: a.e(f"s_branch {name}_alast")
    a.lab(f"{name}_alast")
    a.e("s_barrier")
    att_body("t15", False, (15 % 5)*R, None)
    if F0: stamp_nw(a, 15)
    stamp(a, 6)
    a.e(f"v_add_f32 v{vL0}, v{vL0}, v{vL1}")
    a.nop(1)
    a.e(f"v_mov_b32 v{vL1}, v{vL0}")
    a.nop(2)
    a.e(f"v_permlane32_swap_b32 v{vL0}, v{vL1}")
    a.nop(1)
    a.e(f"v_add_f32 v{vL0}, v{vL0}, v{vL1}")
    a.nop(1)
    a.e(f"v_rcp_f32 v{vL0}, v{vL0}")
    if OPT.get("FINEE"): stamp_nw(a, 10)
    a.nop(12)
    a.e(f"s_lshl_b32 s{sT0}, s{sQB}, 18")
    a.e(f"s_add_u32 s{sT1}, s{sH0}, s{sHS}")
    a.e(f"s_lshl_b32 s{sT1}, s{sT1}, 13")
    a.e(f"s_add_u32 s{sT0}, s{sT0}, s{sT1}")
    if FUSE:
        a.e(f"s_mul_i32 s{sT2}, s{sHS}, 10240")
        a.e(f"s_lshl_b32 s{sT3}, s{sQB}, 11")
        a.e(f"s_add_u32 s{sT2}, s{sT2}, s{sT3}")
        a.e(f"s_add_u32 s{sT2}, s{sT2}, {OSLOT0}")
        a.e(f"v_add_u32 v{vT0}, s{sT2}, v{vOst}")
    for fr in range(8):
        for r in range(4):
            q_ = vO + 8*fr + 2*r
            a.e(f"v_pk_mul_f32 v[{q_}:{q_+1}], v[{q_}:{q_+1}], v[{vL0}:{vL0+1}] op_sel_hi:[1,0]")
        for r in range(4):
            a.e(f"v_cvt_pk_bf16_f32 v{vQ+4*fr+r}, v{vO+8*fr+2*r}, v{vO+8*fr+2*r+1}")
        a.e(f"s_add_u32 s{sT1}, s{sT0}, {fr*1024}")
        a.e(f"buffer_store_dwordx4 v[{vQ+4*fr}:{vQ+4*fr+3}], v{vOst}, s[{sO}:{sO+3}], s{sT1} offen{(' ' + OPT.get('OST', 'sc1')) if FUSE else ''}")
        if FUSE and not OPT.get("STFIRST", True):
            a.e(f"ds_write_b128 v{vT0}, v[{vQ+4*fr}:{vQ+4*fr+3}] offset:{(fr >> 1)*20480 + (fr & 1)*1024}")
    if FUSE and OPT.get("STFIRST", True):
        for fr in range(8):
            a.e(f"ds_write_b128 v{vT0}, v[{vQ+4*fr}:{vQ+4*fr+3}] offset:{(fr >> 1)*20480 + (fr & 1)*1024}")
    if OPT.get("FINEE"): stamp_nw(a, 11)
    if FUSE:
        import tail
        tail.gen_tail(a, name, locals())
    else:
        a.e("s_waitcnt vmcnt(0)")
    stamp(a, 7); stamp_rt(a, 8)
    stamp_store(a, sWS, sW, 16, 0, vT0)
    a.e(f"s_branch {name}_end")
    WNT = "nt " if OPT["WNT"] else ""
    def wo_stage_c0(sg):
        a.e(f"s_lshl_b32 s{sT0}, s{sH0}, 17")
        a.e(f"s_lshl_b32 s{sT1}, s{sL1024}, 2")
        a.e(f"s_add_u32 s{sT0}, s{sT0}, s{sT1}")
        for kh in (0, 1):
            for nn in (0, 4):
                a.e(f"s_add_u32 m0, s{sL1024}, {WSLOT[sg] + kh*8192 + nn*1024}")
                a.e(f"s_add_u32 s{sT3}, s{sT0}, {kh*131072 + sg*32768 + nn*4096}")
                a.e(f"buffer_load_dwordx4 v{vDW}, s[{sX}:{sX+3}], s{sT3} offen {WNT}lds")
    if FUSE:
        a.lab(f"{name}_awo")
        if LAT == 4:
            a.e(f"s_cmp_eq_u32 s{sCnt}, 12")
            a.e(f"s_cbranch_scc0 {name}_awo13")
            wo_stage_c0(0); wo_stage_c0(1)
            a.e(f"s_branch {name}_afilled")
            a.lab(f"{name}_awo13")
            wo_stage_c0(2)
        else:
            assert LAT == 3
            wo_stage_c0(0); wo_stage_c0(1); wo_stage_c0(2)
        a.e(f"s_branch {name}_afilled")
    if FUSE and OPT.get("WTAT"):
        a.lab(f"{name}_wtl")
        cls_block(2, touch)
        a.e(f"s_branch {name}_wtb")
    if PACE:
        CP, D = PACE
        a.lab(f"{name}_pace")
        a.c("keep the workgroups that share the memory system in step: publish the step count, wait if a partner on another XCD lags")
        a.e(f"s_add_u32 s{sT0}, s{sCnt}, 1")
        a.e(f"v_mov_b32 v166, s{sT0}")
        a.e(f"s_lshl_b32 s{sT1}, s2, 8")
        a.e(f"s_add_u32 s{sT1}, s{sT1}, 64")
        a.e("s_mov_b64 exec, 1")
        a.e(f"buffer_store_dword v166, off, s[{sWQ}:{sWQ+3}], s{sT1} sc1")
        a.e("s_mov_b64 exec, 0xff")
        for c in CP:
            lab = newlab("pc")
            a.e(f"s_cmp_eq_u32 s{sCnt}, {c - 3}")
            a.e(f"s_cbranch_scc0 {lab}")
            a.e(f"buffer_load_dword v167, v165, s[{sWQ}:{sWQ+3}], 0 offen sc1")
            a.e(f"s_branch {name}_pacex")
            a.lab(lab)
            lab = newlab("pc")
            a.e(f"s_cmp_eq_u32 s{sCnt}, {c}")
            a.e(f"s_cbranch_scc0 {lab}")
            a.e("s_waitcnt vmcnt(3)")
            a.e(f"v_cmp_gt_u32 vcc, {max(0, c - 2 - D)}, v167")
            a.e("s_nop 4")
            a.e(f"s_cbranch_vccz {name}_pacex")
            a.e(f"s_mov_b32 s{sT2}, {OPT['SPIN']}")
            l2 = newlab("pw")
            a.lab(l2)
            a.e(f"buffer_load_dword v167, v165, s[{sWQ}:{sWQ+3}], 0 offen sc1")
            a.e("s_waitcnt vmcnt(0)")
            a.e(f"v_cmp_gt_u32 vcc, {max(0, c - D)}, v167")
            a.e("s_nop 4")
            a.e(f"s_cbranch_vccz {name}_pacex")
            a.e(f"s_sub_u32 s{sT2}, s{sT2}, 1")
            a.e(f"s_cmp_lg_u32 s{sT2}, 0")
            a.e(f"s_cbranch_scc1 {l2}")
            a.e(f"s_branch {name}_pacex")
            a.lab(lab)
        a.lab(f"{name}_pacex")
        a.e("s_mov_b64 exec, -1")
        a.e(f"s_branch {name}_paceb")
    a.lab(f"{name}_atailw")
    for k in range(LAT - 2):
        t = 17 - LAT + k
        if k < LAT - 3:
            lab = newlab("tw")
            a.e(f"s_cmp_eq_u32 s{sCnt}, {t}")
            a.e(f"s_cbranch_scc0 {lab}")
        extra = ({13: 8, 14: 12}[t] if FUSE else 0)
        a.e(f"s_waitcnt vmcnt({8*(15 - (t + 1)) + extra})")
        a.e(f"s_branch {name}_atailb")
        if k < LAT - 3: a.lab(lab)
    for tag in ["lp0", "lp1", "t15"]:
        rare(tag)
    a.lab(f"{name}_end")
    a.e("s_endpgm")
    return a.text(), NV
```

```python
from dsl import *
import common as C
from common import srd, stamp

def gen_tail(a, name, g):
    OPT = g["OPT"] if "OPT" in g else __import__("k1").OPT
    sW, sHS, sQB, sH0, sHpl, sBeta, sB, sWS = g["sW"], g["sHS"], g["sQB"], g["sH0"], g["sHpl"], g["sBeta"], g["sB"], g["sWS"]
    sT0, sT1, sT2, sT3, sCnt, sCls = g["sT0"], g["sT1"], g["sT2"], g["sT3"], g["sCnt"], g["sCls"]
    sWo, sO, sDbg, sPOut = g["sX"], g["sO"], g["sDbg"], g["sPOut"]
    sP, sOut, sF = g["sWQ"], g["sK"], g["sV"]
    sWsl, sOsl, sNT, sKH = g["sReg"], g["sRegD"], g["sRegN"], g["sTile"]
    sIss, sHb, sWd, sOd = g["sBufA"], g["sBufB"], g["sKVs"], g["sKVl"]
    sSpin = g["sHs8k"]
    sWl, sWr = g["sHsX"], g["sHsXl"]
    sKq, sOwn = g["sHsW"], g["sL1024"]
    vOst, vDW, vA0V, vT0, vT1, L = g["vOst"], g["vDW"], g["vA0V"], g["vT0"], g["vT1"], g["L"]
    WSLOT, OSLOT0, WS_F = g["WSLOT"], g["OSLOT0"], g["WS_F"]
    WNT = "nt " if OPT["WNT"] else ""
    OFL = OPT.get("OFL", "sc1 ")
    SPIN = OPT["SPIN"]
    vAcc, vB, vAF, vAW, vBW, vA0W, vPo, vPr = 0, 80, 120, 128, 129, 130, 131, 132
    FINEO = OPT.get("FINEO")
    def fs(i, at=9):
        if not (FINEO and C.PROF): return
        lab = f"{name}_fs{i}_{len(a.L)}"
        a.e(f"s_cmp_eq_u32 s{FINEO_CNT[0]}, {at}")
        a.e(f"s_cbranch_scc0 {lab}")
        a.e(f"s_memtime s[{64+2*i}:{65+2*i}]")
        a.lab(lab)
    FINEO_CNT = [sCnt]
    real_stamp = C.stamp_nw
    def fe(i):
        if OPT.get("FINEE"): real_stamp(a, i)
    stamp_nw = (lambda a, i: None) if (FINEO or OPT.get("FINE0") or OPT.get("FINEE") or OPT.get("FINEQ2")) else C.stamp_nw
    nbar = [0]
    def barrier(): a.e("s_barrier")

    a.e(f"s_mov_b32 s{sT0}, {WS_F}")
    srd(a, sF, sWS, 65536, sT0)
    a.e(f"s_lshl_b32 s{sT0}, s{sBeta}, 3")
    a.e(f"s_add_u32 s{sT0}, s{sT0}, s{sB}")
    a.e(f"s_lshl_b32 s{sT0}, s{sT0}, 2")
    a.e(f"s_add_u32 s{sT0}, s{sT0}, s{sHpl}")
    a.e(f"s_mul_i32 s{sT0}, s{sT0}, 40960")
    a.e(f"s_add_u32 s{sT0}, s{sT0}, {C.WS_P}")
    srd(a, sP, sWS, 3*64*40960 + 40960, sT0)
    srd(a, sOut, sPOut, 8*160*1024*2)
    a.e(f"s_cmp_ge_u32 s{sW}, 8")
    a.e(f"s_cbranch_scc1 {name}_oload")

    a.e(f"s_and_b32 s{sNT}, s{sW}, 3")
    a.e(f"s_lshr_b32 s{sKH}, s{sW}, 2")
    a.e(f"s_lshl_b32 s{sT0}, s{sHS}, 13")
    a.e(f"s_add_u32 s{sT0}, s{sT0}, 16384")
    a.e(f"v_subrev_u32 v{vA0W}, s{sT0}, v{vA0V}")
    a.e(f"s_lshl_b32 s{sT0}, s{sNT}, 6")
    a.e(f"v_xor_b32 v{vA0W}, s{sT0}, v{vA0W}")
    a.e(f"s_lshl_b32 s{sT0}, s{sHpl}, 1")
    a.e(f"s_sub_u32 s{sHb}, s{sH0}, s{sT0}")
    a.e(f"s_add_u32 s{sHb}, s{sHb}, s{sKH}")
    a.e(f"s_lshl_b32 s{sWl}, s{sKH}, 13")
    a.e(f"s_lshl_b32 s{sT0}, s{sNT}, 11")
    a.e(f"s_add_u32 s{sWl}, s{sWl}, s{sT0}")
    a.e(f"s_lshl_b32 s{sWr}, s{sNT}, 13")
    def w_issue():
        a.e(f"s_lshr_b32 s{sT0}, s{sIss}, 2")
        a.e(f"s_add_u32 s{sT0}, s{sT0}, s{sHpl}")
        a.e(f"s_and_b32 s{sT0}, s{sT0}, 3")
        a.e(f"s_lshl_b32 s{sT0}, s{sT0}, 1")
        a.e(f"s_add_u32 s{sT0}, s{sT0}, s{sHb}")
        a.e(f"s_lshl_b32 s{sT0}, s{sT0}, 17")
        a.e(f"s_and_b32 s{sT1}, s{sIss}, 3")
        a.e(f"s_lshl_b32 s{sT1}, s{sT1}, 15")
        a.e(f"s_add_u32 s{sT0}, s{sT0}, s{sT1}")
        a.e(f"s_add_u32 s{sT0}, s{sT0}, s{sWr}")
        a.e(f"s_add_u32 s{sT1}, s{sWd}, s{sWl}")
        for m in range(2):
            a.e(f"s_add_u32 m0, s{sT1}, {m*1024}")
            a.e(f"s_add_u32 s{sT3}, s{sT0}, {m*4096}")
            if not OPT.get("XNOW"): a.e(f"buffer_load_dwordx4 v{vDW}, s[{sWo}:{sWo+3}], s{sT3} offen {WNT}lds")
    def w_next():
        a.e(f"s_add_u32 s{sIss}, s{sIss}, 1")
        rot_w(sWd)
    def rot_w(r):
        a.e(f"s_cmp_eq_u32 s{r}, 0")
        a.e(f"s_cselect_b32 s{sT0}, 16384, s{r}")
        a.e(f"s_add_u32 s{sT0}, s{sT0}, 16384")
        a.e(f"s_cmp_eq_u32 s{sT0}, 81920")
        a.e(f"s_cselect_b32 s{r}, 0, s{sT0}")
    def next_slots():
        a.e(f"s_add_u32 s{sOsl}, s{sOsl}, 20480")
        a.e(f"s_cmp_eq_u32 s{sOsl}, {OSLOT0 + 4*20480}")
        a.e(f"s_cselect_b32 s{sOsl}, {OSLOT0}, s{sOsl}")
        rot_w(sWsl)
    def addr():
        a.e(f"v_add_u32 v{vAW}, s{sWsl}, v{vA0W}")
        a.e(f"v_add_u32 v{vBW}, s{sOsl}, v{vOst}")
    a.e("s_waitcnt vmcnt(8) lgkmcnt(0)")
    fe(12)
    barrier()
    fe(13)
    stamp_nw(a, 10)
    a.e(f"s_mov_b32 s{sWsl}, {WSLOT[0]}")
    a.e(f"s_mov_b32 s{sOsl}, {OSLOT0}")
    a.e(f"s_mov_b32 s{sIss}, 3")
    a.e(f"s_mov_b32 s{sWd}, {WSLOT[3]}")
    a.e(f"s_cmp_eq_u32 s{sKH}, 0")
    a.e(f"s_cbranch_scc0 {name}_og1")
    for gq, qbs in ((0, (3, 4)), (1, (0, 1, 2))):
        nq_ = len(qbs)
        SETSZ = 4 + 4*nq_
        vSet = 16*nq_
        a.lab(f"{name}_og{gq}")
        def reads(ks):
            kh, sx = ks >> 1, ks & 1
            d = vSet + ks*SETSZ
            R = [(f"ds_read_b64_tr_b16 v[{d}:{d+1}], v{vAW} offset:{kh*8192 + sx*4096}", ("A", ks, 0)),
                 (f"ds_read_b64_tr_b16 v[{d+2}:{d+3}], v{vAW} offset:{kh*8192 + sx*4096 + 1024}", ("A", ks, 1))]
            for i, qb in enumerate(qbs):
                b = d + 4 + 4*i
                R.append((f"ds_read_b128 v[{b}:{b+3}], v{vBW} offset:{kh*10240 + (qb*2+sx)*1024}", ("B", ks, i)))
            return R
        def groups(order, rd, zero=(), need=()):
            rd = list(rd)
            nslots = len(order)*nq_
            slot = 0
            for gi, ks in enumerate(order):
                d = vSet + ks*SETSZ
                for i in range(nq_):
                    if ks in need: a.need(("A", ks, 0), ("A", ks, 1), ("B", ks, i))
                    b = d + 4 + 4*i
                    cop = "0" if ks in zero else f"v[{16*i}:{16*i+15}]"
                    a.e(f"v_mfma_f32_32x32x16_bf16 v[{16*i}:{16*i+15}], v[{d}:{d+3}], v[{b}:{b+3}], {cop}")
                    slot += 1
                    last_of_group = (i == nq_ - 1)
                    n = 0
                    while rd and n < RPG and len(a.lg) < 14:
                        eg, r_ = rd[0]
                        if gi > eg or (gi == eg and last_of_group) or eg < 0:
                            a.ds(*r_); rd.pop(0); n += 1
                        else: break
            assert not rd, rd
        RPG = OPT.get('RPG', (3, 3))[gq]
        addr()
        if gq == 1: w_issue(); w_next()
        for r_ in reads(0) + reads(1): a.ds(*r_)
        groups([0, 1], [(-1, r_) for r_ in reads(2) + reads(3)], zero=(0,), need=(0, 1))
        next_slots(); addr()
        a.drain()
        if gq == 0: w_issue(); w_next()
        a.e(f"s_mov_b32 s{sCnt}, 1")
        fe(14)
        a.e("s_waitcnt vmcnt(2)")
        fe(15)
        def maybe_issue():
            lab = f"{name}_onow{gq}"
            a.e(f"s_cmp_lt_u32 s{sIss}, 16")
            a.e(f"s_cbranch_scc0 {lab}")
            w_issue(); w_next()
            a.lab(lab)
        def body():
            groups([2, 3, 0, 1], [(-1, r_) for r_ in reads(0) + reads(1)] + [(0, r_) for r_ in reads(2)] + [(1, r_) for r_ in reads(3)], need=(0, 1))
        def wait_w(tag):
            a.e(f"s_cmp_lt_u32 s{sCnt}, 13")
            a.e(f"s_cbranch_scc0 {name}_owt{gq}")
            a.e("s_waitcnt vmcnt(4)")
            a.lab(f"{name}_ogo{gq}")
        if gq == 0:
            a.e(f"s_branch {name}_obar0")
            a.lab(f"{name}_oloop0")
            a.lab(f"{name}_obar0")
            barrier()
            fs(10); fs(11); fs(12, 10)
            body()
            fs(13)
            next_slots(); addr()
            a.drain()
            maybe_issue()
            fs(14)
            wait_w("a")
            a.e(f"s_add_u32 s{sCnt}, s{sCnt}, 1")
            a.e(f"s_cmp_lt_u32 s{sCnt}, 16")
            a.e(f"s_cbranch_scc1 {name}_oloop0")
        else:
            barrier()
            a.lab(f"{name}_oloop1")
            fs(10); fs(12, 10)
            maybe_issue()
            fs(11)
            body()
            fs(13)
            a.drain()
            wait_w("b")
            fs(14)
            a.e(f"s_cmp_eq_u32 s{sCnt}, 15")
            a.e(f"s_cbranch_scc1 {name}_oend1")
            barrier()
            next_slots(); addr()
            a.e(f"s_add_u32 s{sCnt}, s{sCnt}, 1")
            a.e(f"s_branch {name}_oloop1")
            a.lab(f"{name}_oend1")
        groups([2, 3], [])
        stamp_nw(a, 13)
        a.e(f"s_lshr_b32 s{sKq}, s{sH0}, 3")
        a.e(f"s_mul_i32 s{sT1}, s{sKq}, {64*40960}")
        a.e(f"s_mul_i32 s{sT0}, s{sNT}, 10240")
        a.e(f"s_add_u32 s{sT1}, s{sT1}, s{sT0}")
        a.e(f"s_mov_b32 s{sOwn}, 7")
        a.nop(8)
        for i, qb in enumerate(qbs):
            lab = f"{name}_pown{gq}_{i}"
            if qb < 4:
                a.e(f"s_add_u32 s{sT0}, s{sNT}, {qb}")
                a.e(f"s_and_b32 s{sT0}, s{sT0}, 3")
                a.e(f"s_cmp_eq_u32 s{sT0}, s{sKq}")
            else:
                a.e(f"s_cmp_eq_u32 s{sNT}, s{sKq}")
            a.e(f"s_cselect_b32 s{sOwn}, {i}, s{sOwn}")
            a.e(f"s_cbranch_scc1 {lab}")
            t = 64 + 8*i
            for r in range(8):
                a.e(f"v_cvt_pk_bf16_f32 v{t+r}, v{16*i+2*r}, v{16*i+2*r+1}")
            for u in range(2):
                a.e(f"s_add_u32 s{sT2}, s{sT1}, {qb*2048 + u*1024}")
                a.e(f"buffer_store_dwordx4 v[{t+4*u}:{t+4*u+3}], v{vOst}, s[{sP}:{sP+3}], s{sT2} offen {OPT.get('PST', 'sc1')}")
            a.lab(lab)
        a.e(f"s_mov_b32 s{sCnt}, {1 - gq}")
        a.e(f"s_branch {name}_pdone")
        a.lab(f"{name}_owt{gq}")
        a.e("s_waitcnt vmcnt(0)")
        a.e(f"s_branch {name}_ogo{gq}")

    a.lab(f"{name}_oload")
    a.e(f"s_sub_u32 s{sKH}, s{sW}, 8")
    a.e(f"s_lshl_b32 s{sT0}, s{sHpl}, 1")
    a.e(f"s_sub_u32 s{sHb}, s{sH0}, s{sT0}")
    a.e(f"s_add_u32 s{sHb}, s{sHb}, s{sKH}")
    a.e("s_waitcnt lgkmcnt(0)")
    fe(12)
    barrier()
    fe(13)
    stamp_nw(a, 10)
    fe(14)
    a.e("s_waitcnt vmcnt(0)")
    fe(15)
    barrier()
    stamp_nw(a, 11)
    a.e(f"s_cmp_eq_u32 s{sW}, 8")
    a.e(f"s_cbranch_scc0 {name}_nopub")
    a.e(f"s_lshl_b32 s{sT0}, s2, 8")
    a.e(f"v_mov_b32 v{vT0}, s{sT0}")
    a.e(f"v_mov_b32 v{vT1}, 1")
    a.e("s_mov_b64 exec, 1")
    a.e(f"buffer_store_dword v{vT1}, v{vT0}, s[{sF}:{sF+3}], 0 offen sc1")
    a.e("s_mov_b64 exec, -1")
    a.lab(f"{name}_nopub")
    def poll(tag, srdreg, voff, nl, want):
        NP = OPT.get("NPOLL", 3)
        a.e(f"s_mov_b32 s{sSpin}, {SPIN}")
        a.e(f"s_mov_b64 exec, {(1 << nl) - 1}")
        for i in range(NP - 1):
            a.e(f"buffer_load_dword v{vPr+i}, v{voff}, s[{srdreg}:{srdreg+3}], 0 offen sc1")
            a.e("s_sleep 4")
        a.lab(f"{name}_poll{tag}")
        for i in range(NP):
            a.e(f"buffer_load_dword v{vPr + (i + NP - 1) % NP}, v{voff}, s[{srdreg}:{srdreg+3}], 0 offen sc1")
            a.e(f"s_waitcnt vmcnt({NP - 1})")
            a.e(f"v_cmp_ne_u32 vcc, {want}, v{vPr+i}")
            a.e("s_nop 4")
            a.e(f"s_cbranch_vccz {name}_pollok{tag}")
        a.e(f"s_sub_u32 s{sSpin}, s{sSpin}, 1")
        a.e(f"s_cmp_lg_u32 s{sSpin}, 0")
        a.e(f"s_cbranch_scc1 {name}_poll{tag}")
        a.lab(f"{name}_pollok{tag}")
        a.e("s_waitcnt vmcnt(0)")
        a.e("s_mov_b64 exec, -1")
    a.e(f"v_cmp_gt_u32 vcc, 16, v166")
    a.e("s_nop 4")
    a.e(f"s_cbranch_vccz {name}_initok")
    a.e(f"s_lshl_b32 s{sT0}, s{sBeta}, 3")
    a.e(f"s_add_u32 s{sT0}, s{sT0}, s{sB}")
    a.e(f"s_lshl_b32 s{sT0}, s{sT0}, 2")
    if OPT.get("DBGT"): a.e(f"s_add_u32 s{sT0}, s{sT0}, 128")
    a.e(f"v_mov_b32 v{vPo}, s{sT0}")
    a.e(f"s_mov_b32 s{sSpin}, {SPIN}")
    a.lab(f"{name}_polli")
    a.e(f"buffer_load_dword v166, v{vPo}, s[{sDbg}:{sDbg+3}], 0 offen sc1")
    a.e("s_waitcnt vmcnt(0)")
    a.e(f"v_cmp_gt_u32 vcc, 16, v166")
    a.e("s_nop 4")
    a.e(f"s_cbranch_vccz {name}_initok")
    a.e("s_sleep 8")
    a.e(f"s_sub_u32 s{sSpin}, s{sSpin}, 1")
    a.e(f"s_cmp_lg_u32 s{sSpin}, 0")
    a.e(f"s_cbranch_scc1 {name}_polli")
    a.lab(f"{name}_initok")
    a.e(f"s_andn2_b32 s{sT0}, s2, 0x18")
    a.e(f"v_lshlrev_b32 v{vPo}, 3, v{L}")
    a.e(f"v_or_b32 v{vPo}, s{sT0}, v{vPo}")
    a.e(f"v_lshlrev_b32 v{vPo}, 8, v{vPo}")
    poll("o", sF, vPo, 4, 1)
    stamp_nw(a, 12)
    a.e(f"s_mov_b32 s{sIss}, 4")
    a.e(f"s_mov_b32 s{sOd}, {OSLOT0}")
    def issue_stage():
        a.e(f"s_lshr_b32 s{sT0}, s{sIss}, 2")
        if OPT.get("XOWN"): a.e(f"s_mov_b32 s{sT0}, 0")
        a.e(f"s_add_u32 s{sT0}, s{sT0}, s{sHpl}")
        a.e(f"s_and_b32 s{sT0}, s{sT0}, 3")
        a.e(f"s_lshl_b32 s{sT0}, s{sT0}, 1")
        a.e(f"s_add_u32 s{sT2}, s{sT0}, s{sHb}")
        a.e(f"s_and_b32 s{sCnt}, s{sIss}, 3")
        a.e(f"s_lshl_b32 s{sT0}, s{sT2}, 13")
        a.e(f"s_lshl_b32 s{sT1}, s{sCnt}, 11")
        a.e(f"s_add_u32 s{sT0}, s{sT0}, s{sT1}")
        a.e(f"s_mul_i32 s{sT1}, s{sKH}, 10240")
        a.e(f"s_add_u32 s{sT1}, s{sT1}, s{sOd}")
        for qb in range(5):
            for sx in range(2):
                a.e(f"s_add_u32 m0, s{sT1}, {(qb*2+sx)*1024}")
                a.e(f"s_add_u32 s{sT3}, s{sT0}, {qb*262144 + sx*1024}")
                if not OPT.get("XNOO"): a.e(f"buffer_load_dwordx4 v{vOst}, s[{sO}:{sO+3}], s{sT3} offen {OFL}lds")
        a.e(f"s_add_u32 s{sIss}, s{sIss}, 1")
        a.e(f"s_add_u32 s{sOd}, s{sOd}, 20480")
        a.e(f"s_cmp_eq_u32 s{sOd}, {OSLOT0 + 4*20480}")
        a.e(f"s_cselect_b32 s{sOd}, {OSLOT0}, s{sOd}")
    issue_stage()
    barrier()
    issue_stage()
    a.lab(f"{name}_lloop")
    FINEO_CNT[0] = sIss
    fs(10)
    a.e("s_waitcnt vmcnt(20)")
    fs(11)
    barrier()
    fs(12)
    issue_stage_keep = True
    issue_stage()
    if FINEO and C.PROF:
        a.e(f"s_cmp_eq_u32 s{sIss}, 10")
        a.e(f"s_cbranch_scc0 {name}_fsl")
        a.e(f"s_memtime s[{64+2*13}:{65+2*13}]")
        a.lab(f"{name}_fsl")
    a.e(f"s_cmp_lt_u32 s{sIss}, 16")
    a.e(f"s_cbranch_scc1 {name}_lloop")
    a.e("s_waitcnt vmcnt(20)"); barrier()
    a.e("s_waitcnt vmcnt(10)"); barrier()
    a.e("s_waitcnt vmcnt(0)"); barrier()
    stamp_nw(a, 13)

    a.e(f"s_mov_b32 s{sOwn}, 7")
    a.lab(f"{name}_pdone")
    a.e("s_waitcnt vmcnt(0)")
    barrier()
    stamp_nw(a, 14)
    a.e(f"s_cmp_eq_u32 s{sW}, 8")
    a.e(f"s_cbranch_scc0 {name}_nopoll")
    a.e(f"s_lshl_b32 s{sT0}, s2, 8")
    a.e(f"s_add_u32 s{sT0}, s{sT0}, 128")
    a.e(f"v_mov_b32 v{vT0}, s{sT0}")
    a.e(f"v_mov_b32 v{vT1}, 1")
    a.e("s_mov_b64 exec, 1")
    a.e(f"buffer_store_dword v{vT1}, v{vT0}, s[{sF}:{sF+3}], 0 offen sc1")
    a.e("s_mov_b64 exec, -1")
    a.e(f"s_andn2_b32 s{sT0}, s2, 3")
    a.e(f"v_or_b32 v{vPo}, s{sT0}, v{L}")
    a.e(f"v_lshlrev_b32 v{vPo}, 8, v{vPo}")
    a.e(f"v_add_u32 v{vPo}, 128, v{vPo}")
    poll("p", sF, vPo, 4, 1)
    a.lab(f"{name}_nopoll")
    barrier()
    stamp_nw(a, 15)
    a.e(f"s_cmp_eq_u32 s{sOwn}, 7")
    a.e(f"s_cbranch_scc1 {name}_odone")
    a.e(f"s_mul_i32 s{sT0}, s{sCnt}, 3")
    a.e(f"s_add_u32 s{sT0}, s{sT0}, s{sOwn}")
    a.e(f"s_mul_i32 s{sT1}, s{sNT}, 5")
    a.e(f"s_add_u32 s{sT1}, s{sT1}, s{sT0}")
    a.e(f"s_lshl_b32 s{sT1}, s{sT1}, 11")
    for dd in range(1, 4):
        a.e(f"s_add_u32 s{sT2}, s{sKq}, {dd}")
        a.e(f"s_and_b32 s{sT2}, s{sT2}, 3")
        a.e(f"s_mul_i32 s{sT2}, s{sT2}, {64*40960}")
        a.e(f"s_add_u32 s{sT2}, s{sT2}, s{sT1}")
        for u in range(2):
            d = 64 + (dd-1)*8 + 4*u
            a.e(f"s_add_u32 s{sT3}, s{sT2}, {u*1024}")
            a.e(f"buffer_load_dwordx4 v[{d}:{d+3}], v{vOst}, s[{sP}:{sP+3}], s{sT3} offen {OPT.get('PLD', 'sc1')}")
    a.e(f"s_mul_i32 s{sT1}, s{sB}, 160")
    a.e(f"s_lshl_b32 s{sT0}, s{sT0}, 5")
    a.e(f"s_add_u32 s{sT0}, s{sT0}, s{sT1}")
    a.e(f"s_lshl_b32 s{sT0}, s{sT0}, 11")
    a.e(f"s_lshl_b32 s{sT2}, s{sBeta}, 10")
    a.e(f"s_add_u32 s{sT0}, s{sT0}, s{sT2}")
    a.e(f"s_lshl_b32 s{sT2}, s{sHpl}, 8")
    a.e(f"s_add_u32 s{sT0}, s{sT0}, s{sT2}")
    a.e(f"s_lshl_b32 s{sT2}, s{sNT}, 6")
    a.e(f"s_add_u32 s{sT0}, s{sT0}, s{sT2}")
    a.e(f"v_and_b32 v4, 31, v{L}") if False else None
    a.e(f"v_and_b32 v{vAW}, 31, v{L}")
    a.e(f"v_lshlrev_b32 v{vAW}, 11, v{vAW}")
    a.e(f"v_lshrrev_b32 v{vBW}, 5, v{L}")
    a.e(f"v_lshl_add_u32 v{vAW}, v{vBW}, 4, v{vAW}")
    for i in range(3):
        lab = f"{name}_mvown{i}"
        a.e(f"s_cmp_eq_u32 s{sOwn}, {i}")
        a.e(f"s_cbranch_scc0 {lab}")
        for r in range(16): a.e(f"v_mov_b32 v{96+r}, v{16*i+r}")
        a.lab(lab)
    for dd in range(3):
        a.e(f"s_waitcnt vmcnt({4 - 2*dd})")
        for r in range(8):
            src = 64 + dd*8 + r
            a.e(f"v_lshlrev_b32 v112, 16, v{src}")
            a.e(f"v_and_b32 v113, 0xffff0000, v{src}")
            a.e(f"v_add_f32 v{96+2*r}, v{96+2*r}, v112")
            a.e(f"v_add_f32 v{96+2*r+1}, v{96+2*r+1}, v113")
    for r in range(8): a.e(f"v_cvt_pk_bf16_f32 v{64+r}, v{96+2*r}, v{96+2*r+1}")
    a.e(f"buffer_store_dwordx4 v[64:67], v{vAW}, s[{sOut}:{sOut+3}], s{sT0} offen {OPT.get('OUTST', '')}")
    a.e(f"buffer_store_dwordx4 v[68:71], v{vAW}, s[{sOut}:{sOut+3}], s{sT0} offen offset:32 {OPT.get('OUTST', '')}")
    a.lab(f"{name}_odone")
    if C.PROF: a.e("s_waitcnt vmcnt(0)")
```

```python
from dsl import *
import common as C
from common import srd, stamp, stamp_nw, stamp_rt, stamp_store, f2u, QSCALE

OPT = dict(QNT=False, ROT=2, LAT=4, PRIO=(1, 0, 1), FUSE=True, WNT=True, SPIN=1 << 16, CTOUCH=2, WTAT=13, QNT0=0,
           QW=([], [0, 1, 2, 3], [], [4, 5, 6, 7], []), QX=([], [0, 1], [], [2, 3, 4], []), QLATE=(0, 0, 0, 0, 0))

def gen_k1(name):
    a = Asm()
    QNT = OPT["QNT"]; LAT = OPT["LAT"]; NQ = OPT.get("NQ", 3)
    QW, QX = OPT["QW"], OPT["QX"]
    NC = 5
    QLATE = OPT["QLATE"]
    QN = [len(QW[c]) + len(QX[c]) for c in range(NC)]
    sKc = 3
    sX, sWQ, sK, sV, sO = 8, 12, 16, 20, 24
    sW, sHS, sQB, sHsW = 28, 29, 30, 31
    sL1024 = 32
    sReg, sRegD = 33, 34
    sT0, sT1, sT2, sT3 = 35, 36, 37, 38
    sCnt = 39
    sHs8k, sTile, sHsX, sHsXl = 40, 41, 42, 43
    sH0, sBeta, sB, sRegN = 44, 45, 46, 47
    sPtr = 48
    sWS = 56
    sCls, sBufA, sBufB = 30, 59, 61
    sKVs, sKVl = 4, 5
    FUSE = OPT["FUSE"]
    sPOut, sPWo, sDbg, sHpl = 6, 62, 96, 100
    WS_F = C.WS_BASE + (33 << 20)
    WSLOT = [32768, 49152, 65536, 0]
    OSLOT0 = 81920
    vO, vQ, vS, vNM, vF = 0, 64, 96, 112, 128
    vA = 144
    vA0K, vA0V, vL0, vL1, vMX, vMX2 = 148, 149, 150, 151, 152, 153
    vT0, vT1 = 154, 155
    vDK, vDV, vDX, vDW, vXB, vOst = 156, 157, 158, 159, 160, 161
    vLane = 162
    NV = 168
    R = 32768
    L = vLane
    uid = [0]
    def newlab(p):
        uid[0] += 1
        return f"{name}_{p}{uid[0]}"

    a.raw(f".globl {name}\n.p2align 8\n.type {name},@function\n{name}:")
    a.e("s_cmp_ge_u32 s2, 256")
    a.e(f"s_cbranch_scc1 {name}_end")
    stamp_rt(a, 0); stamp(a, 1)
    a.e(f"s_load_dwordx2 s[{sWS}:{sWS+1}], s[0:1], 96")
    if FUSE:
        a.e(f"s_load_dwordx2 s[{sPOut}:{sPOut+1}], s[0:1], 80")
        a.e(f"s_load_dwordx2 s[{sDbg}:{sDbg+1}], s[0:1], 88")
    a.e(f"s_and_b32 s{sT0}, s2, 7")
    a.e(f"s_lshr_b32 s{sT1}, s2, 3")
    a.e(f"s_lshr_b32 s{sBeta}, s{sT0}, 2")
    a.e(f"s_mul_i32 s{sT2}, s{sBeta}, 40")
    a.e(f"s_add_u32 s0, s0, s{sT2}")
    a.e(f"s_addc_u32 s1, s1, 0")
    a.e(f"s_load_dwordx8 s[{sPtr}:{sPtr+7}], s[0:1], 0")
    if FUSE: a.e(f"s_load_dwordx2 s[{sPWo}:{sPWo+1}], s[0:1], 32")
    a.e(f"s_and_b32 s{sT0}, s{sT0}, 3")
    a.e(f"s_lshr_b32 s{sB}, s{sT1}, 2")
    a.e(f"s_and_b32 s{sT1}, s{sT1}, 3")
    a.e(f"s_mov_b32 s{sHpl}, s{sT1}")
    a.e(f"s_lshl_b32 s{sT0}, s{sT0}, 2")
    a.e(f"s_add_u32 s{sH0}, s{sT0}, s{sT1}")
    a.e(f"s_lshl_b32 s{sH0}, s{sH0}, 1")
    a.e(f"v_lshrrev_b32 v1, 6, v0")
    a.e(f"v_and_b32 v{L}, 63, v0")
    a.e(f"v_readfirstlane_b32 s{sW}, v1")
    a.e(f"s_and_b32 s{sHS}, s{sW}, 1")
    a.e(f"s_lshr_b32 s{sQB}, s{sW}, 1")
    a.e(f"s_and_b32 s{sT0}, s{sW}, 3")
    a.e(f"s_lshl_b32 s{sL1024}, s{sT0}, 10")
    if OPT.get("CTOUCH"):
        a.c("waves 8, 9 of the first workgroups of an XCD group pull the kernel's own code into L2 (one dword per 128-byte line)")
        a.e(f"s_cmp_lt_u32 s{sW}, 8")
        a.e(f"s_cbranch_scc1 {name}_noct")
        a.e(f"s_lshr_b32 s{sT1}, s2, 3")
        a.e(f"s_cmp_ge_u32 s{sT1}, {OPT['CTOUCH']}")
        a.e(f"s_cbranch_scc1 {name}_noct")
        a.e(f"s_getpc_b64 s[60:61]")
        a.lab(f"{name}_pc")
        a.e(f"s_lshl_b32 s{sT1}, s{sT1}, 1")
        a.e(f"s_add_u32 s{sT1}, s{sT1}, s{sHS}")
        a.e(f"s_lshl_b32 s{sT1}, s{sT1}, 13")
        a.e(f"v_lshlrev_b32 v2, 7, v{L}")
        a.e(f"v_add_u32 v2, s{sT1}, v2")
        a.e(f"s_mov_b32 s{sT1}, {name}_end-{name}_pc")
        a.e(f"v_cmp_gt_u32 vcc, s{sT1}, v2")
        a.e(f"s_and_saveexec_b64 s[{sT2}:{sT2+1}], vcc") if False else None
        a.e(f"s_and_saveexec_b64 s[4:5], vcc")
        a.e(f"s_cbranch_execz {name}_ct2")
        a.e(f"global_load_dword v165, v2, s[60:61]")
        a.lab(f"{name}_ct2")
        a.e(f"s_mov_b64 exec, -1")
        a.lab(f"{name}_noct")
    a.e(f"""
    v_lshrrev_b32 v2, 4, v{L}            ; i>>4
    v_lshlrev_b32 v3, 2, v2
    v_and_b32 v4, 15, v{L}
    v_xor_b32 v3, v3, v4
    v_lshlrev_b32 v3, 4, v3
    v_lshl_add_u32 v{vDV}, v2, 8, v3     ; V: (i>>4)*256 + swz*16
    v_lshl_add_u32 v{vDW}, v2, 13, v3
    v_and_b32 v2, 3, v2                  ; (i>>4)&3
    v_and_b32 v4, 3, v{L}
    v_xor_b32 v2, v2, v4
    v_lshlrev_b32 v2, 4, v2
    v_lshrrev_b32 v3, 2, v{L}
    v_lshl_add_u32 v{vDX}, v3, 10, v2    ; x: (i>>2)*1024 + swz*16
    s_lshl_b32 s{sT1}, s{sT0}, 3
    v_lshrrev_b32 v2, 3, v{L}            ; i>>3
    v_add_u32 v2, s{sT1}, v2             ; row = 8l + (i>>3)
    v_bfe_u32 v3, v2, 1, 3
    v_and_b32 v4, 7, v{L}
    v_xor_b32 v3, v3, v4
    v_lshlrev_b32 v3, 4, v3
    v_lshl_add_u32 v{vDK}, v2, 8, v3
    s_lshl_b32 s{sHs8k}, s{sHS}, 13
    s_lshl_b32 s{sHsW}, s{sHS}, 8
    s_mul_i32 s{sHsX}, s{sHS}, 81920
    s_mul_i32 s{sHsXl}, s{sHS}, 5120
    s_mul_i32 s{sKc}, s{sB}, {OPT["ROT"]}
    s_mul_i32 s{sT1}, s{sHpl}, {OPT.get("ROTH", 0)}
    s_add_u32 s{sKc}, s{sKc}, s{sT1}
    s_and_b32 s{sKc}, s{sKc}, 15
    """)
    a.e("s_waitcnt lgkmcnt(0)")
    if FUSE:
        a.e(f"s_mov_b32 s{sDbg+2}, 256")
        a.e(f"s_mov_b32 s{sDbg+3}, 0x00020000")
        a.e(f"s_cmp_eq_u32 s{sW}, 0")
        a.e(f"s_cbranch_scc0 {name}_noinit")
        a.c("wave 0 clears this workgroup's two hand-off words, then counts the workgroup into its group")
        a.e(f"s_mov_b32 s{sT0}, {WS_F}")
        srd(a, sX, sWS, 65536, sT0)
        a.e(f"s_lshl_b32 s{sT0}, s2, 8")
        a.e(f"v_lshlrev_b32 v2, 6, v{L}")
        a.e(f"v_add_u32 v2, s{sT0}, v2")
        a.e(f"v_mov_b32 v3, 0")
        a.e(f"s_mov_b64 exec, 15")
        a.e(f"buffer_store_dword v3, v2, s[{sX}:{sX+3}], 0 offen sc1")
        a.e(f"s_waitcnt vmcnt(0)")
        a.e(f"s_lshl_b32 s{sT0}, s{sBeta}, 3")
        a.e(f"s_add_u32 s{sT0}, s{sT0}, s{sB}")
        a.e(f"s_lshl_b32 s{sT0}, s{sT0}, 2")
        if OPT.get("DBGT"): a.e(f"s_add_u32 s{sT0}, s{sT0}, 128")
        a.e(f"s_mov_b64 exec, 1")
        a.e(f"v_mov_b32 v2, s{sT0}")
        a.e(f"v_mov_b32 v3, 1")
        a.e(f"buffer_atomic_add v3, v2, s[{sDbg}:{sDbg+3}], 0 offen sc1")
        a.e(f"s_mov_b64 exec, -1")
        a.lab(f"{name}_noinit")
    a.e(f"s_mul_i32 s{sT0}, s{sB}, 163840")
    srd(a, sX, sPtr+0, 163840, sT0)
    a.e(f"s_lshl_b32 s{sT0}, s{sH0}, 8")
    srd(a, sWQ, sPtr+6, 0, sT0)
    a.e(f"s_sub_u32 s{sWQ+2}, 4194304, s{sT0}")
    a.e(f"s_lshl_b32 s{sT0}, s{sB}, 5")
    a.e(f"s_add_u32 s{sT0}, s{sT0}, s{sH0}")
    a.e(f"s_lshl_b32 s{sT0}, s{sT0}, 17")
    srd(a, sK, sPtr+2, 262144, sT0)
    srd(a, sV, sPtr+4, 262144, sT0)
    a.e(f"s_lshl_b32 s{sT0}, s{sBeta}, 3")
    a.e(f"s_add_u32 s{sT0}, s{sT0}, s{sB}")
    a.e(f"s_mul_i32 s{sT0}, s{sT0}, 1310720")
    if C.WS_O: a.e(f"s_add_u32 s{sT0}, s{sT0}, {C.WS_O}")
    srd(a, sO, sWS, 1310720, sT0)

    def sadd(dst, base, imm):
        if isinstance(base, tuple): a.e(f"s_add_u32 {dst}, s{base[1]}, {imm}")
        else: a.e(f"s_mov_b32 {dst}, {base + imm}")
    def sadds(dst, base, sreg):
        if isinstance(base, tuple): a.e(f"s_add_u32 {dst}, s{base[1]}, s{sreg}")
        else: a.e(f"s_add_u32 {dst}, s{sreg}, {base}")
    def vadd(dst, base, imm, vreg):
        if isinstance(base, tuple):
            if imm:
                a.e(f"s_add_u32 s{sT2}, s{base[1]}, {imm & 0xffffffff}")
                a.e(f"v_add_u32 v{dst}, s{sT2}, v{vreg}")
            else: a.e(f"v_add_u32 v{dst}, s{base[1]}, v{vreg}")
        else: a.e(f"v_add_u32 v{dst}, {base + imm}, v{vreg}")
    def dma(voff, sr, m0base, m0imm, sbase, simm, nt):
        a.e(f"s_add_u32 m0, s{m0base}, {m0imm}")
        a.e(f"s_add_u32 s{sT3}, s{sbase}, {simm}")
        a.e(f"buffer_load_dwordx4 v{voff}, s[{sr}:{sr+3}], s{sT3} offen {'nt ' if nt else ''}lds")
    def cls_block(c, body):
        lab = newlab(f"c{c}_")
        a.e(f"s_cmp_eq_u32 s{sCls}, {c}")
        a.e(f"s_cbranch_scc0 {lab}")
        body()
        a.lab(lab)

    def lo4_block(body):
        lab = newlab("lo4_")
        a.e(f"s_cmp_lt_u32 s{sW}, 4")
        a.e(f"s_cbranch_scc0 {lab}")
        body()
        a.lab(lab)
    def kv_pieces(region, tile_off, parts):
        sadds(f"s{sT0}", region, sL1024)
        sadds(f"s{sT1}", tile_off, sL1024)
        sadd(f"s{sT2}", tile_off, 0)
        for p in parts:
            hs2 = p & 1
            if p < 2:
                for half in (0, 1):
                    dma(vDK, sK, sT0, hs2*8192 + half*4096, sT2, hs2*131072 + half*128, True)
            else:
                for nn in (0, 4):
                    dma(vDV, sV, sT0, 16384 + hs2*8192 + nn*1024, sT1, hs2*131072 + nn*1024, True)
    def q_pieces(c, buf, nt0=None):
        wnt = OPT.get("WQNT", QNT) if nt0 is None else nt0
        xnt = OPT.get("XNT", QNT) if nt0 is None else nt0
        if QW[c]:
            a.e(f"s_lshl_b32 s{sT0}, s{sKc}, 18")
            a.e(f"s_add_u32 s{sT0}, s{sT0}, s{sHsW}")
            sadds(f"s{sT1}", buf, sHs8k)
            for n in QW[c]:
                dma(vDW, sWQ, sT1, 10240 + n*1024, sT0, n*32768, wnt)
        if QX[c]:
            a.e(f"s_lshl_b32 s{sT0}, s{sKc}, 6")
            a.e(f"s_add_u32 s{sT0}, s{sT0}, s{sHsX}")
            sadds(f"s{sT1}", buf, sHsXl)
            for m in QX[c]:
                dma(vDX, sX, sT1, m*1024, sT0, m*16384, xnt)
    def kc_next():
        a.e(f"s_add_u32 s{sKc}, s{sKc}, 1")
        a.e(f"s_and_b32 s{sKc}, s{sKc}, 15")

    if NQ == 3:
        QB = [2*R, 3*R, 4*R]; qbuf = lambda sg: QB[(sg + 2) % 3]; QSTR = R
    else:
        QB = [57344 + 26624*i for i in range(4)]; qbuf = lambda sg: QB[sg % 4]; QSTR = 26624
    QSET = [dict(B=(96, 100), A=104), dict(B=(136, 140), A=64)]
    def q_reads(par, buf):
        st = QSET[par]
        vadd(vA, buf, -6144, vA0V)
        vadd(vT0, buf, 0, vXB)
        a.e(f"v_xor_b32 v{vA+1}, 64, v{vA}")
        a.e(f"v_xor_b32 v{vA+2}, 128, v{vA}")
        a.e(f"v_xor_b32 v{vA+3}, 192, v{vA}")
        a.e(f"v_xor_b32 v{vT1}, 32, v{vT0}")
        L_ = []
        for sx in range(2):
            b = st["B"][sx]
            L_.append(f"ds_read_b128 v[{b}:{b+3}], v{vT0 if sx == 0 else vT1}")
            for t in range(4):
                d = st["A"] + (sx*4 + t)*4
                L_.append(f"ds_read_b64_tr_b16 v[{d}:{d+1}], v{vA+t} offset:{sx*4096}")
                L_.append(f"ds_read_b64_tr_b16 v[{d+2}:{d+3}], v{vA+t} offset:{sx*4096+1024}")
        return L_
    def q_mfmas(par, rd, fq=False):
        st = QSET[par]; nrd = 0
        for i in range(8):
            sx, t = i >> 2, i & 3
            d = st["A"] + (sx*4 + t)*4
            b = st["B"][sx]
            a.e(f"v_mfma_f32_32x32x16_bf16 v[{vO+16*t}:{vO+16*t+15}], v[{d}:{d+3}], v[{b}:{b+3}], v[{vO+16*t}:{vO+16*t+15}]")
            if rd:
                if nrd >= 12: a.e("s_waitcnt lgkmcnt(9)")
                for _ in range(3):
                    if rd: a.e(rd.pop(0)); nrd += 1
            if fq and (i & 1): stamp_nw(a, 11 + (i >> 1))

    def lane_addresses():
        a.e(f"""
        v_lshrrev_b32 v1, 5, v{L}            ; h
        v_bfe_u32 v2, v{L}, 2, 2             ; r
        v_lshl_add_u32 v3, v1, 3, v2         ; 8h+r
        v_lshlrev_b32 v3, 8, v3
        v_lshl_add_u32 v3, v2, 6, v3         ; + r*64
        v_bfe_u32 v4, v{L}, 4, 1
        v_lshl_add_u32 v3, v4, 5, v3         ; + g*32
        v_and_b32 v4, 1, v{L}
        v_lshl_add_u32 v3, v4, 4, v3         ; + c0*16
        v_bfe_u32 v4, v{L}, 1, 1
        v_lshl_add_u32 v3, v4, 3, v3         ; + c1*8
        s_add_u32 s{sT1}, s{sHs8k}, 16384
        v_add_u32 v{vA0V}, s{sT1}, v3
        v_and_b32 v2, 0x13, v{L}
        v_and_b32 v3, 4, v{L}
        v_lshl_or_b32 v2, v3, 1, v2
        v_and_b32 v3, 8, v{L}
        v_lshrrev_b32 v3, 1, v3
        v_or_b32 v2, v2, v3                  ; rho
        v_bfe_u32 v3, v2, 1, 3
        v_xor_b32 v3, v3, v1
        v_lshlrev_b32 v3, 4, v3
        v_lshl_add_u32 v3, v2, 7, v3
        v_add_u32 v{vA0K}, s{sHs8k}, v3
        v_and_b32 v2, 31, v{L}
        v_bfe_u32 v3, v{L}, 2, 2
        v_xor_b32 v3, v3, v1
        v_lshlrev_b32 v3, 4, v3
        v_lshl_add_u32 v3, v2, 6, v3
        s_lshl_b32 s{sT0}, s{sQB}, 11
        v_add_u32 v{vXB}, s{sT0}, v3
        v_lshlrev_b32 v{vOst}, 4, v{L}
        """)

    seq = []
    def push(key, n4): seq.append((key, list(n4)))
    def wait_for(key):
        idx = max(i for i, e in enumerate(seq) if e[0] == key)
        for c in range(NC):
            if not any(e[0] == key and e[1][c] for e in seq): continue
            n = min(63, sum(e[1][c] for e in seq[idx+1:]))
            cls_block(c, lambda n=n: a.e(f"s_waitcnt vmcnt({n})"))

    for c in range(1, NC):
        a.e(f"s_cmp_eq_u32 s{sCls}, {c}")
        a.e(f"s_cbranch_scc1 {name}_cls{c}")
    for c in range(NC):
        a.lab(f"{name}_cls{c}")
        for sg in range(NQ):
            q_pieces(c, qbuf(sg), True if sg < OPT.get("QNT0", 0) else None); kc_next()
        if OPT.get("QTOUCH") and c in (2, 4):
            a.c("pull this workgroup's share of the XCD group's x / Wq lines into L2 (one dword per 128-byte line)")
            if c == 2:
                a.e(f"s_mul_i32 s{sT0}, s{sHpl}, 40960")
                a.e(f"s_mul_i32 s{sT1}, s{sHS}, 20480")
                a.e(f"s_add_u32 s{sT0}, s{sT0}, s{sT1}")
                a.e(f"v_lshlrev_b32 v5, 7, v{L}")
                for m in range(3):
                    a.e(f"s_add_u32 s{sT1}, s{sT0}, {m*8192}")
                    if m == 2: a.e("s_mov_b64 exec, 0xffffffff")
                    a.e(f"buffer_load_dword v{163+m}, v5, s[{sX}:{sX+3}], s{sT1} offen {OPT.get('QTFL', '')}")
                a.e("s_mov_b64 exec, -1")
            else:
                a.e(f"s_lshl_b32 s{sT0}, s{sB}, 19")
                a.e(f"s_lshl_b32 s{sT1}, s{sHS}, 18")
                a.e(f"s_add_u32 s{sT0}, s{sT0}, s{sT1}")
                a.e(f"v_lshrrev_b32 v5, 2, v{L}")
                a.e(f"v_lshlrev_b32 v5, 13, v5")
                a.e(f"v_and_b32 v6, 3, v{L}")
                a.e(f"v_lshl_add_u32 v5, v6, 7, v5")
                for m in range(2):
                    a.e(f"s_add_u32 s{sT1}, s{sT0}, {m*16*8192}")
                    a.e(f"buffer_load_dword v{163+m}, v5, s[{sWQ}:{sWQ+3}], s{sT1} offen {OPT.get('QTFL', '')}")
        if FUSE and OPT.get("PTOUCH") and c == 4:
            a.c("address-translation warm-up: one dword from each 64 KiB of the workspace / output areas this workgroup uses later")
            st = OPT["PTOUCH"]
            srd(a, 64 if False else 92, sWS, 0x10000000) if False else None
            a.e(f"v_lshlrev_b32 v5, 16, v{L}")
            a.e(f"s_mov_b64 exec, 0xfffff")
            a.e(f"buffer_load_dword v166, v5, s[{sO}:{sO+3}], 0 offen")
            a.e(f"s_mov_b64 exec, -1")
            a.e(f"s_lshl_b32 s{sT0}, s{sBeta}, 3")
            a.e(f"s_add_u32 s{sT0}, s{sT0}, s{sB}")
            a.e(f"s_lshl_b32 s{sT0}, s{sT0}, 2")
            a.e(f"s_add_u32 s{sT0}, s{sT0}, s{sHpl}")
            a.e(f"s_mul_i32 s{sT0}, s{sT0}, 40960")
            a.e(f"s_add_u32 s{sT0}, s{sT0}, {C.WS_P}")
            a.e(f"v_mul_u32_u24 v5, {64*40960 >> 8}, v{L}")
            a.e(f"v_lshlrev_b32 v5, 8, v5")
            a.e(f"v_add_u32 v5, s{sT0}, v5")
            a.e(f"v_mov_b32 v6, {WS_F}")
            a.e(f"v_cmp_eq_u32 vcc, 4, v{L}")
            a.e(f"s_nop 1")
            a.e(f"v_cndmask_b32 v5, v5, v6, vcc")
            a.e(f"s_mov_b64 exec, 31")
            a.e(f"global_load_dword v167, v5, s[{sWS}:{sWS+1}]")
            a.e(f"s_mul_i32 s{sT0}, s{sB}, {160*2048}")
            a.e(f"v_lshlrev_b32 v5, 16, v{L}")
            a.e(f"v_add_u32 v5, s{sT0}, v5")
            a.e(f"s_mov_b64 exec, 31")
            a.e(f"global_load_dword v165, v5, s[{sPOut}:{sPOut+1}]")
            a.e(f"s_mov_b64 exec, -1")
        stamp(a, 2)
        lane_addresses()
        for r in range(64): a.e(f"v_mov_b32 v{vO+r}, 0")
        if QN[c]: a.e(f"s_waitcnt vmcnt({(NQ-1)*QN[c]})")
        a.e("s_barrier")
        rd = q_reads(0, qbuf(0))
        for i, r_ in enumerate(rd):
            if i == 14: a.e("s_waitcnt lgkmcnt(8)")
            a.e(r_)
        a.e("s_waitcnt lgkmcnt(0)")
        stamp(a, 3)
        a.e(f"s_mov_b32 s{sBufA}, {qbuf(0)}")
        a.e(f"s_mov_b32 s{sBufB}, {qbuf(1)}")
        a.e(f"s_mov_b32 s{sCnt}, 0")
        a.e(f"s_mov_b32 s{sKVs}, 0")
        a.e(f"s_mov_b32 s{sKVl}, 0")
        a.lab(f"{name}_ql{c}")
        for par in range(2):
            if QN[c]: a.e(f"s_waitcnt vmcnt({(NQ-2)*QN[c]})")
            a.e("s_barrier")
            fq = OPT.get("FINEQ") and par == 0
            if fq: stamp_nw(a, 10)
            if OPT.get("FINEQ") and par == 1: stamp_nw(a, 15)
            rd = q_reads(1 - par, ("s", sBufB))
            if QN[c] and not QLATE[c]: q_pieces(c, ("s", sBufA))
            q_mfmas(par, rd, fq)
            if QN[c] and QLATE[c]: q_pieces(c, ("s", sBufA))
            kc_next()
            a.e(f"s_mov_b32 s{sBufA}, s{sBufB}")
            a.e(f"s_add_u32 s{sBufB}, s{sBufB}, {QSTR}")
            a.e(f"s_cmp_eq_u32 s{sBufB}, {5*R}")
            a.e(f"s_cselect_b32 s{sBufB}, {QB[0]}, s{sBufB}")
            if c == 0:
                lab = newlab("nokv")
                a.e(f"s_cmp_lt_u32 s{sCnt}, {3 if (NQ == 4 and par == 1) else 4}")
                a.e(f"s_cbranch_scc0 {lab}")
                a.e(f"s_add_u32 s{sT0}, s{sKVl}, s{sL1024}")
                if par == 0:
                    for n2 in (0, 2):
                        for half in (0, 1):
                            dma(vDK, sK, sT0, half*4096 + n2*1024, sKVs, half*128 + n2*2048, True)
                else:
                    a.e(f"s_add_u32 s{sT1}, s{sKVs}, s{sL1024}")
                    for nn in (0, 2, 4, 6):
                        dma(vDV, sV, sT0, 16384 + nn*1024, sT1, nn*1024, True)
                    a.e(f"s_add_u32 s{sT0}, s{sCnt}, 1")
                    a.e(f"s_lshr_b32 s{sT1}, s{sT0}, 1")
                    a.e(f"s_and_b32 s{sT0}, s{sT0}, 1")
                    a.e(f"s_lshl_b32 s{sKVs}, s{sT1}, 13")
                    a.e(f"s_lshl_b32 s{sT2}, s{sT0}, 17")
                    a.e(f"s_add_u32 s{sKVs}, s{sKVs}, s{sT2}")
                    a.e(f"s_lshl_b32 s{sKVl}, s{sT1}, 15")
                    a.e(f"s_lshl_b32 s{sT2}, s{sT0}, 13")
                    a.e(f"s_add_u32 s{sKVl}, s{sKVl}, s{sT2}")
                a.lab(lab)
            a.e("s_waitcnt lgkmcnt(0)")
        a.e(f"s_add_u32 s{sCnt}, s{sCnt}, 1")
        a.e(f"s_cmp_lt_u32 s{sCnt}, 6")
        a.e(f"s_cbranch_scc1 {name}_ql{c}")
        if c < NC - 1: a.e(f"s_branch {name}_qtail")
    a.lab(f"{name}_qtail")
    stamp(a, 9)
    for i in range(4): push(("kv", i >> 1), [4 if (NQ == 4 and i == 3) else 8, 0, 0, 0, 0])
    for sg in range(13, 12 + NQ): push(("q", sg), QN)
    def q_iter(sg, kv):
        rd = []
        if sg < 15: wait_for(("q", sg + 1))
        a.e("s_barrier")
        if sg < 15: rd = q_reads((sg + 1) & 1, qbuf(sg + 1))
        if sg + NQ < 16:
            for c in range(NC):
                if QN[c] and not QLATE[c]: cls_block(c, lambda c=c: q_pieces(c, qbuf(sg + NQ)))
        q_mfmas(sg & 1, rd)
        if sg + NQ < 16:
            for c in range(NC):
                if QN[c] and QLATE[c]: cls_block(c, lambda c=c: q_pieces(c, qbuf(sg + NQ)))
            push(("q", sg + NQ), QN)
        if NQ == 4 and sg == 12:
            def vlast():
                a.e(f"s_add_u32 s{sT0}, s{sL1024}, {R + 16384 + 8192}")
                a.e(f"s_add_u32 s{sT1}, s{sL1024}, {8192 + 131072}")
                for nn in (0, 2, 4, 6):
                    dma(vDV, sV, sT0, nn*1024, sT1, nn*1024, True)
            cls_block(0, vlast)
            push(("kv1v", 1), [4, 0, 0, 0, 0])
        if kv is not None:
            lo4_block(lambda: kv_pieces((kv % 5)*R, kv*8192, [0, 1, 2, 3]))
            push(("kv", kv), [8, 8, 0, 0, 0])
        a.e("s_waitcnt lgkmcnt(0)")
    q_iter(12, None); q_iter(13, 2); q_iter(14, 3); q_iter(15, 4 if LAT == 4 else None)
    stamp(a, 4)
    if FUSE:
        a.e(f"s_lshl_b32 s{sT0}, s{sHpl}, 8")
        srd(a, sX, sPWo, 0, sT0)
        a.e(f"s_sub_u32 s{sX+2}, 4194304, s{sT0}")
        a.e(f"v_lshrrev_b32 v{vT0}, 4, v{L}")
        a.e(f"v_mul_u32_u24 v{vT0}, 768, v{vT0}")
        a.e(f"v_add_u32 v{vDW}, v{vT0}, v{vDV}")
    PACE = OPT.get("PACE") if FUSE else None
    if PACE:
        a.e(f"s_mov_b32 s{sT0}, {WS_F}")
        srd(a, sWQ, sWS, 65536, sT0)
        a.e(f"s_andn2_b32 s{sT0}, s2, 7")
        a.e(f"v_or_b32 v165, s{sT0}, v{L}")
        a.e(f"v_lshlrev_b32 v165, 8, v165")
        a.e(f"v_add_u32 v165, 64, v165")
    a.nop(12)
    a.e(f"s_mov_b32 s{sT0}, {hex(f2u(QSCALE))}")
    a.e(f"v_mov_b32 v{vMX}, s{sT0}")
    a.nop(1)
    for r in range(32):
        a.e(f"v_pk_mul_f32 v[{vO+2*r}:{vO+2*r+1}], v[{vO+2*r}:{vO+2*r+1}], v[{vMX}:{vMX+1}] op_sel_hi:[1,0]")
    for r in range(32):
        a.e(f"v_cvt_pk_bf16_f32 v{vQ+r}, v{vO+2*r}, v{vO+2*r+1}")

    F0 = OPT.get("FINE0")
    if F0: stamp_nw(a, 10)
    def k_addr(reg):
        vadd(vA, reg, 0, vA0K)
        a.e(f"v_xor_b32 v{vA+1}, 32, v{vA}")
        a.e(f"v_xor_b32 v{vA+2}, 64, v{vA}")
        a.e(f"v_xor_b32 v{vA+3}, 96, v{vA}")
    def rdK(j):
        f = vF + (j & 3)*4
        a.ds(f"ds_read_b128 v[{f}:{f+3}], v{vA+(j&3)} offset:{(j>>2)*4096}", ("K", j))
    def setprio(p):
        if p is not None: a.e(f"s_setprio {p}")
    S = lambda r: f"v{vS+r}"
    def att_body(tag, first, reg, regn):
        PQ, PS, PP = OPT["PRIO"]
        fine = False
        def rdV(sx, t):
            f = vF + t*4
            a.ds(f"ds_read_b64_tr_b16 v[{f}:{f+1}], v{vA+t} offset:{sx*4096}", ("V", sx, t, 0))
            a.ds(f"ds_read_b64_tr_b16 v[{f+2}:{f+3}], v{vA+t} offset:{sx*4096+1024}", ("V", sx, t, 1))
        setprio(PQ)
        for j in range(8):
            a.need(("K", j))
            f = vF + (j & 3)*4
            cop = f"v[{vS}:{vS+15}]" if j else ("0" if first else f"v[{vNM}:{vNM+15}]")
            a.e(f"v_mfma_f32_32x32x16_bf16 v[{vS}:{vS+15}], v[{f}:{f+3}], v[{vQ+4*j}:{vQ+4*j+3}], {cop}")
            if j < 4: rdK(j+4)
            if j == 3:
                vadd(vA, reg, 0, vA0V)
                a.e(f"v_xor_b32 v{vA+1}, 64, v{vA}")
                a.e(f"v_xor_b32 v{vA+2}, 128, v{vA}")
                a.e(f"v_xor_b32 v{vA+3}, 192, v{vA}")
            if j >= 4: rdV(0, j - 4)
        setprio(PS)
        a.nop(10)
        a.e(f"v_max3_f32 v{vMX}, {S(0)}, {S(1)}, {S(2)}")
        a.e(f"v_max3_f32 v{vMX2}, {S(3)}, {S(4)}, {S(5)}")
        a.e(f"v_max3_f32 v{vMX}, v{vMX}, {S(6)}, {S(7)}")
        a.e(f"v_max3_f32 v{vMX2}, v{vMX2}, {S(8)}, {S(9)}")
        a.e(f"v_max3_f32 v{vMX}, v{vMX}, {S(10)}, {S(11)}")
        a.e(f"v_max3_f32 v{vMX2}, v{vMX2}, {S(12)}, {S(13)}")
        a.e(f"v_max3_f32 v{vMX}, v{vMX}, {S(14)}, {S(15)}")
        a.e(f"v_max_f32 v{vMX}, v{vMX}, v{vMX2}")
        if first:
            a.e(f"v_mov_b32 v{vMX2}, v{vMX}")
            a.nop(2)
            a.e(f"v_permlane32_swap_b32 v{vMX}, v{vMX2}")
            a.nop(1)
            a.e(f"v_max_f32 v{vMX}, v{vMX}, v{vMX2}")
            for r in range(16):
                a.e(f"v_sub_f32 {S(r)}, {S(r)}, v{vMX}")
            for r in range(16):
                a.e(f"v_sub_f32 v{vNM+r}, 0, v{vMX}")
            a.e(f"v_mov_b32 v{vL0}, 0")
            a.e(f"v_mov_b32 v{vL1}, 0")
        else:
            a.e(f"v_cmp_lt_f32 vcc, 0x41200000, v{vMX}")
            a.e(f"s_cbranch_vccnz {name}_rare_{tag}")
            a.lab(f"{name}_back_{tag}")
        ex = lambda r: a.e(f"v_exp_f32 {S(r)}, {S(r)}")
        ad = lambda r: a.e(f"v_add_f32 v{vL0 + (r&1)}, v{vL0 + (r&1)}, {S(r)}")
        pk = lambda d: a.e(f"v_cvt_pk_bf16_f32 {S(d)}, {S(2*d)}, {S(2*d+1)}")
        ex(0)
        for r in range(1, 8): ex(r); ad(r-1)
        pk(0); ad(7); pk(1); pk(2); pk(3)
        setprio(PP)
        a.nop(2)
        def pv(sx, t):
            a.need(("V", sx, t, 0), ("V", sx, t, 1))
            f = vF + t*4
            cop = "0" if (first and sx == 0) else f"v[{vO+16*t}:{vO+16*t+15}]"
            a.e(f"v_mfma_f32_32x32x16_bf16 v[{vO+16*t}:{vO+16*t+15}], v[{f}:{f+3}], v[{vS+4*sx}:{vS+4*sx+3}], {cop}")
        for t in range(4):
            pv(0, t); rdV(1, t)
            if t: ad(7 + 2*t)
            ex(8 + 2*t); ex(9 + 2*t); ad(8 + 2*t)
            if t: pk(3 + t)
        ad(15); pk(7)
        if regn is not None: k_addr(regn)
        else: a.nop(2)
        for t in range(4):
            pv(1, t)
            if regn is not None: rdK(t)
        if regn is None: a.drain()

    def rare(tag):
        a.lab(f"{name}_rare_{tag}")
        a.c("raise the subtracted max to the running row max and rescale what was accumulated")
        a.e(f"v_mov_b32 v{vMX2}, v{vMX}")
        a.nop(2)
        a.e(f"v_permlane32_swap_b32 v{vMX}, v{vMX2}")
        a.nop(1)
        a.e(f"v_max_f32 v{vMX}, v{vMX}, v{vMX2}")
        a.e(f"v_max_f32 v{vMX}, 0, v{vMX}")
        a.e(f"v_sub_f32 v{vMX2}, 0, v{vMX}")
        a.e(f"v_exp_f32 v{vMX2}, v{vMX2}")
        for r in range(16):
            a.e(f"v_sub_f32 v{vS+r}, v{vS+r}, v{vMX}")
        for r in range(16):
            a.e(f"v_sub_f32 v{vNM+r}, v{vNM+r}, v{vMX}")
        for r in range(64):
            a.e(f"v_mul_f32 v{vO+r}, v{vO+r}, v{vMX2}")
        a.e(f"v_mul_f32 v{vL0}, v{vL0}, v{vMX2}")
        a.e(f"v_mul_f32 v{vL1}, v{vL1}, v{vMX2}")
        a.e(f"s_branch {name}_back_{tag}")

    wait_for(("kv", 0))
    a.e("s_barrier")
    if F0: stamp_nw(a, 11)
    k_addr(0)
    for j in range(4): rdK(j)
    wait_for(("kv", 1))
    a.e("s_barrier")
    if F0: stamp_nw(a, 12)
    att_body("t0", True, 0, R)
    if F0: stamp_nw(a, 13)
    if F0: stamp_nw(a, 14)
    if C.PROF: a.e("s_waitcnt lgkmcnt(0)")
    stamp(a, 5)
    if FUSE and OPT.get("WTOUCH", True):
        a.c("pull this workgroup's 1/32 share of the quarter's Wo rows into L2 (one dword per 128-byte line)")
        def touch():
            a.e(f"s_lshr_b32 s{sT0}, s{sH0}, 3")
            a.e(f"s_lshl_b32 s{sT0}, s{sT0}, 20")
            a.e(f"s_lshl_b32 s{sT1}, s{sB}, 2")
            a.e(f"s_add_u32 s{sT1}, s{sT1}, s{sHpl}")
            a.e(f"s_lshl_b32 s{sT1}, s{sT1}, 15")
            a.e(f"s_add_u32 s{sT0}, s{sT0}, s{sT1}")
            a.e(f"s_lshl_b32 s{sT1}, s{sHS}, 14")
            a.e(f"s_add_u32 s{sT0}, s{sT0}, s{sT1}")
            a.e(f"s_lshl_b32 s{sT1}, s{sHpl}, 8")
            a.e(f"s_sub_u32 s{sT0}, s{sT0}, s{sT1}")
            a.e(f"v_lshlrev_b32 v{vT0}, 7, v{L}")
            for m in range(2):
                a.e(f"s_add_u32 s{sT1}, s{sT0}, {m*8192}")
                a.e(f"buffer_load_dword v{163+m}, v{vT0}, s[{sX}:{sX+3}], s{sT1} offen {OPT.get('WTFL', '')}")
        if not OPT.get("WTAT"): cls_block(2, touch)
    if FUSE:
        def init_check():
            a.c("request the group's start counter now; the loader waves look at it before they read any hand-off word")
            a.e(f"s_lshl_b32 s{sT0}, s{sBeta}, 3")
            a.e(f"s_add_u32 s{sT0}, s{sT0}, s{sB}")
            a.e(f"s_lshl_b32 s{sT0}, s{sT0}, 2")
            if OPT.get("DBGT"): a.e(f"s_add_u32 s{sT0}, s{sT0}, 128")
            a.e(f"v_mov_b32 v{vT0}, s{sT0}")
            a.e(f"buffer_load_dword v166, v{vT0}, s[{sDbg}:{sDbg+3}], 0 offen sc1")
        cls_block(4, init_check)
    entry_state = list(a.lg)
    a.e(f"s_mov_b32 s{sCnt}, 1")
    a.e(f"s_mov_b32 s{sTile}, {LAT*8192}")
    a.e(f"s_mov_b32 s{sRegD}, {(LAT % 5)*R}")
    a.e(f"s_mov_b32 s{sReg}, 0")
    a.e(f"s_mov_b32 s{sRegN}, {R}")
    a.e(f"s_cmp_lt_u32 s{sW}, 4")
    a.e(f"s_cbranch_scc0 {name}_aloop1")
    for var in range(2):
        a.lg = list(entry_state)
        a.lab(f"{name}_aloop{var}")
        if var == 0:
            a.e(f"s_cmp_le_u32 s{sCnt}, {16 - LAT}")
            a.e(f"s_cbranch_scc0 {name}_atailw")
            a.e(f"s_waitcnt vmcnt({8*(LAT-2)})")
            a.lab(f"{name}_atailb")
        regs = (sReg, sRegN) + ((sRegD,) if var == 0 else ())
        def rot():
            for sr in regs:
                a.e(f"s_add_u32 s{sr}, s{sr}, {R}")
                a.e(f"s_cmp_eq_u32 s{sr}, {5*R}")
                a.e(f"s_cselect_b32 s{sr}, 0, s{sr}")
        if var == 0 and OPT.get("ROTPRE", True): rot()
        a.e("s_barrier")
        if not (var == 0 and OPT.get("ROTPRE", True)): rot()
        att_body(f"lp{var}", False, ("s", sReg), ("s", sRegN))
        if var == 0:
            a.e(f"s_add_u32 s{sTile}, s{sTile}, 8192")
            a.e(f"s_cmp_le_u32 s{sCnt}, {15 - LAT}")
            a.e(f"s_cbranch_scc0 {name}_anofill")
            if not OPT.get("ANODMA"): kv_pieces(("s", sRegD), ("s", sTile), [0, 1, 2, 3])
            if FUSE:
                a.e(f"s_branch {name}_afilled")
                a.lab(f"{name}_anofill")
                a.e(f"s_cmp_eq_u32 s{sCnt}, 14")
                a.e(f"s_cbranch_scc1 {name}_afilled")
                a.e(f"s_branch {name}_awo")
                a.lab(f"{name}_afilled")
            else:
                a.lab(f"{name}_anofill")
        if var == 1 and FUSE and OPT.get("WTAT"):
            a.e(f"s_cmp_eq_u32 s{sCnt}, {OPT['WTAT']}")
            a.e(f"s_cbranch_scc1 {name}_wtl")
            a.lab(f"{name}_wtb")
        if var == 1 and PACE:
            a.e(f"s_cmp_eq_u32 s{sW}, 4")
            a.e(f"s_cbranch_scc1 {name}_pace")
            a.lab(f"{name}_paceb")
        assert a.lg == entry_state
        a.e(f"s_add_u32 s{sCnt}, s{sCnt}, 1")
        a.e(f"s_cmp_lt_u32 s{sCnt}, 15")
        a.e(f"s_cbranch_scc1 {name}_aloop{var}")
        if var == 0: a.e(f"s_branch {name}_alast")
    a.lab(f"{name}_alast")
    a.e("s_barrier")
    att_body("t15", False, (15 % 5)*R, None)
    if F0: stamp_nw(a, 15)
    stamp(a, 6)
    a.e(f"v_add_f32 v{vL0}, v{vL0}, v{vL1}")
    a.nop(1)
    a.e(f"v_mov_b32 v{vL1}, v{vL0}")
    a.nop(2)
    a.e(f"v_permlane32_swap_b32 v{vL0}, v{vL1}")
    a.nop(1)
    a.e(f"v_add_f32 v{vL0}, v{vL0}, v{vL1}")
    a.nop(1)
    a.e(f"v_rcp_f32 v{vL0}, v{vL0}")
    if OPT.get("FINEE"): stamp_nw(a, 10)
    a.nop(12)
    a.e(f"s_lshl_b32 s{sT0}, s{sQB}, 18")
    a.e(f"s_add_u32 s{sT1}, s{sH0}, s{sHS}")
    a.e(f"s_lshl_b32 s{sT1}, s{sT1}, 13")
    a.e(f"s_add_u32 s{sT0}, s{sT0}, s{sT1}")
    if FUSE:
        a.e(f"s_mul_i32 s{sT2}, s{sHS}, 10240")
        a.e(f"s_lshl_b32 s{sT3}, s{sQB}, 11")
        a.e(f"s_add_u32 s{sT2}, s{sT2}, s{sT3}")
        a.e(f"s_add_u32 s{sT2}, s{sT2}, {OSLOT0}")
        a.e(f"v_add_u32 v{vT0}, s{sT2}, v{vOst}")
    for fr in range(8):
        for r in range(4):
            q_ = vO + 8*fr + 2*r
            a.e(f"v_pk_mul_f32 v[{q_}:{q_+1}], v[{q_}:{q_+1}], v[{vL0}:{vL0+1}] op_sel_hi:[1,0]")
        for r in range(4):
            a.e(f"v_cvt_pk_bf16_f32 v{vQ+4*fr+r}, v{vO+8*fr+2*r}, v{vO+8*fr+2*r+1}")
        a.e(f"s_add_u32 s{sT1}, s{sT0}, {fr*1024}")
        a.e(f"buffer_store_dwordx4 v[{vQ+4*fr}:{vQ+4*fr+3}], v{vOst}, s[{sO}:{sO+3}], s{sT1} offen{(' ' + OPT.get('OST', 'sc1')) if FUSE else ''}")
        if FUSE and not OPT.get("STFIRST", True):
            a.e(f"ds_write_b128 v{vT0}, v[{vQ+4*fr}:{vQ+4*fr+3}] offset:{(fr >> 1)*20480 + (fr & 1)*1024}")
    if FUSE and OPT.get("STFIRST", True):
        for fr in range(8):
            a.e(f"ds_write_b128 v{vT0}, v[{vQ+4*fr}:{vQ+4*fr+3}] offset:{(fr >> 1)*20480 + (fr & 1)*1024}")
    if OPT.get("FINEE"): stamp_nw(a, 11)
    if FUSE:
        import tail
        tail.gen_tail(a, name, locals())
    else:
        a.e("s_waitcnt vmcnt(0)")
    stamp(a, 7); stamp_rt(a, 8)
    if OPT.get("DBGT") and C.PROF:
        a.e(f"s_cmp_eq_u32 s{sW}, 8")
        a.e(f"s_cbranch_scc0 {name}_nodbgt")
        a.e("s_mov_b64 exec, 1")
        for j, i in enumerate((3, 4, 5, 6, 10, 11, 12, 13, 14, 15, 7)):
            a.e(f"s_sub_u32 s{sT0}, s{64+2*i}, s66")
            a.e(f"s_lshr_b32 s{sT0}, s{sT0}, 4")
            a.e(f"v_mov_b32 v2, s{sT0}")
            a.e(f"v_mov_b32 v3, {4*j}")
            a.e(f"buffer_atomic_umax v2, v3, s[{sDbg}:{sDbg+3}], 0 offen sc1")
        a.e(f"s_not_b32 s{sT0}, s64")
        a.e(f"v_mov_b32 v2, s{sT0}")
        a.e(f"v_mov_b32 v3, 56")
        a.e(f"buffer_atomic_umax v2, v3, s[{sDbg}:{sDbg+3}], 0 offen sc1")
        a.e(f"v_mov_b32 v2, s80")
        a.e(f"v_mov_b32 v3, 60")
        a.e(f"buffer_atomic_umax v2, v3, s[{sDbg}:{sDbg+3}], 0 offen sc1")
        a.e("s_cmp_eq_u32 s2, 0")
        a.e(f"s_cbranch_scc0 {name}_nodbg0")
        a.e(f"s_sub_u32 s{sT0}, s80, s64")
        a.e(f"v_mov_b32 v2, s{sT0}")
        a.e(f"v_mov_b32 v3, 44")
        a.e(f"buffer_store_dword v2, v3, s[{sDbg}:{sDbg+3}], 0 offen sc1")
        a.e(f"s_sub_u32 s{sT0}, s78, s66")
        a.e(f"s_lshr_b32 s{sT0}, s{sT0}, 4")
        a.e(f"v_mov_b32 v2, s{sT0}")
        a.e(f"v_mov_b32 v3, 48")
        a.e(f"buffer_store_dword v2, v3, s[{sDbg}:{sDbg+3}], 0 offen sc1")
        a.lab(f"{name}_nodbg0")
        a.e("s_waitcnt vmcnt(0)")
        a.e("s_mov_b64 exec, -1")
        a.lab(f"{name}_nodbgt")
    stamp_store(a, sWS, sW, 16, 0, vT0)
    a.e(f"s_branch {name}_end")
    WNT = "nt " if OPT["WNT"] else ""
    def wo_stage_c0(sg):
        a.e(f"s_lshl_b32 s{sT0}, s{sH0}, 17")
        a.e(f"s_lshl_b32 s{sT1}, s{sL1024}, 2")
        a.e(f"s_add_u32 s{sT0}, s{sT0}, s{sT1}")
        for kh in (0, 1):
            for nn in (0, 4):
                a.e(f"s_add_u32 m0, s{sL1024}, {WSLOT[sg] + kh*8192 + nn*1024}")
                a.e(f"s_add_u32 s{sT3}, s{sT0}, {kh*131072 + sg*32768 + nn*4096}")
                a.e(f"buffer_load_dwordx4 v{vDW}, s[{sX}:{sX+3}], s{sT3} offen {WNT}lds")
    if FUSE:
        a.lab(f"{name}_awo")
        if LAT == 4:
            a.e(f"s_cmp_eq_u32 s{sCnt}, 12")
            a.e(f"s_cbranch_scc0 {name}_awo13")
            wo_stage_c0(0); wo_stage_c0(1)
            a.e(f"s_branch {name}_afilled")
            a.lab(f"{name}_awo13")
            wo_stage_c0(2)
        else:
            assert LAT == 3
            wo_stage_c0(0); wo_stage_c0(1); wo_stage_c0(2)
        a.e(f"s_branch {name}_afilled")
    if FUSE and OPT.get("WTAT"):
        a.lab(f"{name}_wtl")
        cls_block(2, touch)
        a.e(f"s_branch {name}_wtb")
    if PACE:
        CP, D = PACE
        a.lab(f"{name}_pace")
        a.c("keep the workgroups that share the memory system in step: publish the step count, wait if a partner on another XCD lags")
        a.e(f"s_add_u32 s{sT0}, s{sCnt}, 1")
        a.e(f"v_mov_b32 v166, s{sT0}")
        a.e(f"s_lshl_b32 s{sT1}, s2, 8")
        a.e(f"s_add_u32 s{sT1}, s{sT1}, 64")
        a.e("s_mov_b64 exec, 1")
        a.e(f"buffer_store_dword v166, off, s[{sWQ}:{sWQ+3}], s{sT1} sc1")
        a.e("s_mov_b64 exec, 0xff")
        for c in CP:
            lab = newlab("pc")
            a.e(f"s_cmp_eq_u32 s{sCnt}, {c - 3}")
            a.e(f"s_cbranch_scc0 {lab}")
            a.e(f"buffer_load_dword v167, v165, s[{sWQ}:{sWQ+3}], 0 offen sc1")
            a.e(f"s_branch {name}_pacex")
            a.lab(lab)
            lab = newlab("pc")
            a.e(f"s_cmp_eq_u32 s{sCnt}, {c}")
            a.e(f"s_cbranch_scc0 {lab}")
            a.e("s_waitcnt vmcnt(3)")
            a.e(f"v_cmp_gt_u32 vcc, {max(0, c - 2 - D)}, v167")
            a.e("s_nop 4")
            a.e(f"s_cbranch_vccz {name}_pacex")
            a.e(f"s_mov_b32 s{sT2}, {OPT['SPIN']}")
            l2 = newlab("pw")
            a.lab(l2)
            a.e(f"buffer_load_dword v167, v165, s[{sWQ}:{sWQ+3}], 0 offen sc1")
            a.e("s_waitcnt vmcnt(0)")
            a.e(f"v_cmp_gt_u32 vcc, {max(0, c - D)}, v167")
            a.e("s_nop 4")
            a.e(f"s_cbranch_vccz {name}_pacex")
            a.e(f"s_sub_u32 s{sT2}, s{sT2}, 1")
            a.e(f"s_cmp_lg_u32 s{sT2}, 0")
            a.e(f"s_cbranch_scc1 {l2}")
            a.e(f"s_branch {name}_pacex")
            a.lab(lab)
        a.lab(f"{name}_pacex")
        a.e("s_mov_b64 exec, -1")
        a.e(f"s_branch {name}_paceb")
    a.lab(f"{name}_atailw")
    for k in range(LAT - 2):
        t = 17 - LAT + k
        if k < LAT - 3:
            lab = newlab("tw")
            a.e(f"s_cmp_eq_u32 s{sCnt}, {t}")
            a.e(f"s_cbranch_scc0 {lab}")
        extra = ({13: 8, 14: 12}[t] if FUSE else 0)
        a.e(f"s_waitcnt vmcnt({8*(15 - (t + 1)) + extra})")
        a.e(f"s_branch {name}_atailb")
        if k < LAT - 3: a.lab(lab)
    for tag in ["lp0", "lp1", "t15"]:
        rare(tag)
    a.lab(f"{name}_end")
    a.e("s_endpgm")
    return a.text(), NV
```

```python
from dsl import *
import common as C
from common import srd, stamp, stamp_nw, stamp_rt, stamp_store, f2u, QSCALE

OPT = dict(QNT=False, ROT=2, LAT=4, PRIO=(1, 0, 1), FUSE=True, WNT=True, SPIN=1 << 16, CTOUCH=2, WTAT=13, QNT0=0,
           QW=([], [0, 1, 2, 3], [], [4, 5, 6, 7], []), QX=([], [0, 1], [], [2, 3, 4], []), QLATE=(0, 0, 0, 0, 0))

def gen_k1(name):
    a = Asm()
    QNT = OPT["QNT"]; LAT = OPT["LAT"]; NQ = OPT.get("NQ", 3)
    QW, QX = OPT["QW"], OPT["QX"]
    NC = 5
    QLATE = OPT["QLATE"]
    QN = [len(QW[c]) + len(QX[c]) for c in range(NC)]
    sKc = 3
    sX, sWQ, sK, sV, sO = 8, 12, 16, 20, 24
    sW, sHS, sQB, sHsW = 28, 29, 30, 31
    sL1024 = 32
    sReg, sRegD = 33, 34
    sT0, sT1, sT2, sT3 = 35, 36, 37, 38
    sCnt = 39
    sHs8k, sTile, sHsX, sHsXl = 40, 41, 42, 43
    sH0, sBeta, sB, sRegN = 44, 45, 46, 47
    sPtr = 48
    sWS = 56
    sCls, sBufA, sBufB = 30, 59, 61
    sKVs, sKVl = 4, 5
    FUSE = OPT["FUSE"]
    sPOut, sPWo, sDbg, sHpl = 6, 62, 96, 100
    WS_F = C.WS_BASE + (33 << 20)
    WSLOT = [32768, 49152, 65536, 0]
    OSLOT0 = 81920
    vO, vQ, vS, vNM, vF = 0, 64, 96, 112, 128
    vA = 144
    vA0K, vA0V, vL0, vL1, vMX, vMX2 = 148, 149, 150, 151, 152, 153
    vT0, vT1 = 154, 155
    vDK, vDV, vDX, vDW, vXB, vOst = 156, 157, 158, 159, 160, 161
    vLane = 162
    NV = 168
    R = 32768
    L = vLane
    uid = [0]
    def newlab(p):
        uid[0] += 1
        return f"{name}_{p}{uid[0]}"

    a.raw(f".globl {name}\n.p2align 8\n.type {name},@function\n{name}:")
    a.e("s_cmp_ge_u32 s2, 256")
    a.e(f"s_cbranch_scc1 {name}_end")
    stamp_rt(a, 0); stamp(a, 1)
    a.e(f"s_load_dwordx2 s[{sWS}:{sWS+1}], s[0:1], 96")
    if FUSE:
        a.e(f"s_load_dwordx2 s[{sPOut}:{sPOut+1}], s[0:1], 80")
        a.e(f"s_load_dwordx2 s[{sDbg}:{sDbg+1}], s[0:1], 88")
    a.e(f"s_and_b32 s{sT0}, s2, 7")
    a.e(f"s_lshr_b32 s{sT1}, s2, 3")
    a.e(f"s_lshr_b32 s{sBeta}, s{sT0}, 2")
    a.e(f"s_mul_i32 s{sT2}, s{sBeta}, 40")
    a.e(f"s_add_u32 s0, s0, s{sT2}")
    a.e(f"s_addc_u32 s1, s1, 0")
    a.e(f"s_load_dwordx8 s[{sPtr}:{sPtr+7}], s[0:1], 0")
    if FUSE: a.e(f"s_load_dwordx2 s[{sPWo}:{sPWo+1}], s[0:1], 32")
    a.e(f"s_and_b32 s{sT0}, s{sT0}, 3")
    a.e(f"s_lshr_b32 s{sB}, s{sT1}, 2")
    a.e(f"s_and_b32 s{sT1}, s{sT1}, 3")
    a.e(f"s_mov_b32 s{sHpl}, s{sT1}")
    a.e(f"s_lshl_b32 s{sT0}, s{sT0}, 2")
    a.e(f"s_add_u32 s{sH0}, s{sT0}, s{sT1}")
    a.e(f"s_lshl_b32 s{sH0}, s{sH0}, 1")
    a.e(f"v_lshrrev_b32 v1, 6, v0")
    a.e(f"v_and_b32 v{L}, 63, v0")
    a.e(f"v_readfirstlane_b32 s{sW}, v1")
    a.e(f"s_and_b32 s{sHS}, s{sW}, 1")
    a.e(f"s_lshr_b32 s{sQB}, s{sW}, 1")
    a.e(f"s_and_b32 s{sT0}, s{sW}, 3")
    a.e(f"s_lshl_b32 s{sL1024}, s{sT0}, 10")
    if OPT.get("CTOUCH"):
        a.c("waves 8, 9 of the first workgroups of an XCD group pull the kernel's own code into L2 (one dword per 128-byte line)")
        a.e(f"s_cmp_lt_u32 s{sW}, 8")
        a.e(f"s_cbranch_scc1 {name}_noct")
        a.e(f"s_lshr_b32 s{sT1}, s2, 3")
        a.e(f"s_cmp_ge_u32 s{sT1}, {OPT['CTOUCH']}")
        a.e(f"s_cbranch_scc1 {name}_noct")
        a.e(f"s_getpc_b64 s[60:61]")
        a.lab(f"{name}_pc")
        a.e(f"s_lshl_b32 s{sT1}, s{sT1}, 1")
        a.e(f"s_add_u32 s{sT1}, s{sT1}, s{sHS}")
        a.e(f"s_lshl_b32 s{sT1}, s{sT1}, 13")
        a.e(f"v_lshlrev_b32 v2, 7, v{L}")
        a.e(f"v_add_u32 v2, s{sT1}, v2")
        a.e(f"s_mov_b32 s{sT1}, {name}_end-{name}_pc")
        a.e(f"v_cmp_gt_u32 vcc, s{sT1}, v2")
        a.e(f"s_and_saveexec_b64 s[{sT2}:{sT2+1}], vcc") if False else None
        a.e(f"s_and_saveexec_b64 s[4:5], vcc")
        a.e(f"s_cbranch_execz {name}_ct2")
        a.e(f"global_load_dword v165, v2, s[60:61]")
        a.lab(f"{name}_ct2")
        a.e(f"s_mov_b64 exec, -1")
        a.lab(f"{name}_noct")
    a.e(f"""
    v_lshrrev_b32 v2, 4, v{L}            ; i>>4
    v_lshlrev_b32 v3, 2, v2
    v_and_b32 v4, 15, v{L}
    v_xor_b32 v3, v3, v4
    v_lshlrev_b32 v3, 4, v3
    v_lshl_add_u32 v{vDV}, v2, 8, v3     ; V: (i>>4)*256 + swz*16
    v_lshl_add_u32 v{vDW}, v2, 13, v3
    v_and_b32 v2, 3, v2                  ; (i>>4)&3
    v_and_b32 v4, 3, v{L}
    v_xor_b32 v2, v2, v4
    v_lshlrev_b32 v2, 4, v2
    v_lshrrev_b32 v3, 2, v{L}
    v_lshl_add_u32 v{vDX}, v3, 10, v2    ; x: (i>>2)*1024 + swz*16
    s_lshl_b32 s{sT1}, s{sT0}, 3
    v_lshrrev_b32 v2, 3, v{L}            ; i>>3
    v_add_u32 v2, s{sT1}, v2             ; row = 8l + (i>>3)
    v_bfe_u32 v3, v2, 1, 3
    v_and_b32 v4, 7, v{L}
    v_xor_b32 v3, v3, v4
    v_lshlrev_b32 v3, 4, v3
    v_lshl_add_u32 v{vDK}, v2, 8, v3
    s_lshl_b32 s{sHs8k}, s{sHS}, 13
    s_lshl_b32 s{sHsW}, s{sHS}, 8
    s_mul_i32 s{sHsX}, s{sHS}, 81920
    s_mul_i32 s{sHsXl}, s{sHS}, 5120
    s_mul_i32 s{sKc}, s{sB}, {OPT["ROT"]}
    s_mul_i32 s{sT1}, s{sHpl}, {OPT.get("ROTH", 0)}
    s_add_u32 s{sKc}, s{sKc}, s{sT1}
    s_and_b32 s{sKc}, s{sKc}, 15
    """)
    a.e("s_waitcnt lgkmcnt(0)")
    if FUSE:
        a.e(f"s_mov_b32 s{sDbg+2}, 256")
        a.e(f"s_mov_b32 s{sDbg+3}, 0x00020000")
        a.e(f"s_cmp_eq_u32 s{sW}, 0")
        a.e(f"s_cbranch_scc0 {name}_noinit")
        a.c("wave 0 clears this workgroup's two hand-off words, then counts the workgroup into its group")
        a.e(f"s_mov_b32 s{sT0}, {WS_F}")
        srd(a, sX, sWS, 65536, sT0)
        a.e(f"s_lshl_b32 s{sT0}, s2, 8")
        a.e(f"v_lshlrev_b32 v2, 6, v{L}")
        a.e(f"v_add_u32 v2, s{sT0}, v2")
        a.e(f"v_mov_b32 v3, 0")
        a.e(f"s_mov_b64 exec, 15")
        a.e(f"buffer_store_dword v3, v2, s[{sX}:{sX+3}], 0 offen sc1")
        a.e(f"s_waitcnt vmcnt(0)")
        a.e(f"s_lshl_b32 s{sT0}, s{sBeta}, 3")
        a.e(f"s_add_u32 s{sT0}, s{sT0}, s{sB}")
        a.e(f"s_lshl_b32 s{sT0}, s{sT0}, 2")
        if OPT.get("DBGT"): a.e(f"s_add_u32 s{sT0}, s{sT0}, 128")
        a.e(f"s_mov_b64 exec, 1")
        a.e(f"v_mov_b32 v2, s{sT0}")
        a.e(f"v_mov_b32 v3, 1")
        a.e(f"buffer_atomic_add v3, v2, s[{sDbg}:{sDbg+3}], 0 offen sc1")
        a.e(f"s_mov_b64 exec, -1")
        a.lab(f"{name}_noinit")
    a.e(f"s_mul_i32 s{sT0}, s{sB}, 163840")
    srd(a, sX, sPtr+0, 163840, sT0)
    a.e(f"s_lshl_b32 s{sT0}, s{sH0}, 8")
    srd(a, sWQ, sPtr+6, 0, sT0)
    a.e(f"s_sub_u32 s{sWQ+2}, 4194304, s{sT0}")
    a.e(f"s_lshl_b32 s{sT0}, s{sB}, 5")
    a.e(f"s_add_u32 s{sT0}, s{sT0}, s{sH0}")
    a.e(f"s_lshl_b32 s{sT0}, s{sT0}, 17")
    srd(a, sK, sPtr+2, 262144, sT0)
    srd(a, sV, sPtr+4, 262144, sT0)
    a.e(f"s_lshl_b32 s{sT0}, s{sBeta}, 3")
    a.e(f"s_add_u32 s{sT0}, s{sT0}, s{sB}")
    a.e(f"s_mul_i32 s{sT0}, s{sT0}, 1310720")
    if C.WS_O: a.e(f"s_add_u32 s{sT0}, s{sT0}, {C.WS_O}")
    srd(a, sO, sWS, 1310720, sT0)

    def sadd(dst, base, imm):
        if isinstance(base, tuple): a.e(f"s_add_u32 {dst}, s{base[1]}, {imm}")
        else: a.e(f"s_mov_b32 {dst}, {base + imm}")
    def sadds(dst, base, sreg):
        if isinstance(base, tuple): a.e(f"s_add_u32 {dst}, s{base[1]}, s{sreg}")
        else: a.e(f"s_add_u32 {dst}, s{sreg}, {base}")
    def vadd(dst, base, imm, vreg):
        if isinstance(base, tuple):
            if imm:
                a.e(f"s_add_u32 s{sT2}, s{base[1]}, {imm & 0xffffffff}")
                a.e(f"v_add_u32 v{dst}, s{sT2}, v{vreg}")
            else: a.e(f"v_add_u32 v{dst}, s{base[1]}, v{vreg}")
        else: a.e(f"v_add_u32 v{dst}, {base + imm}, v{vreg}")
    def dma(voff, sr, m0base, m0imm, sbase, simm, nt):
        if sr == sK and not OPT.get("KNT", True): nt = False
        if sr == sV and not OPT.get("VNT", True): nt = False
        a.e(f"s_add_u32 m0, s{m0base}, {m0imm}")
        a.e(f"s_add_u32 s{sT3}, s{sbase}, {simm}")
        a.e(f"buffer_load_dwordx4 v{voff}, s[{sr}:{sr+3}], s{sT3} offen {'nt ' if nt else ''}lds")
    def cls_block(c, body):
        lab = newlab(f"c{c}_")
        a.e(f"s_cmp_eq_u32 s{sCls}, {c}")
        a.e(f"s_cbranch_scc0 {lab}")
        body()
        a.lab(lab)

    def lo4_block(body):
        lab = newlab("lo4_")
        a.e(f"s_cmp_lt_u32 s{sW}, 4")
        a.e(f"s_cbranch_scc0 {lab}")
        body()
        a.lab(lab)
    def kv_pieces(region, tile_off, parts):
        sadds(f"s{sT0}", region, sL1024)
        sadds(f"s{sT1}", tile_off, sL1024)
        sadd(f"s{sT2}", tile_off, 0)
        for p in parts:
            hs2 = p & 1
            if p < 2:
                for half in (0, 1):
                    dma(vDK, sK, sT0, hs2*8192 + half*4096, sT2, hs2*131072 + half*128, True)
            else:
                for nn in (0, 4):
                    dma(vDV, sV, sT0, 16384 + hs2*8192 + nn*1024, sT1, hs2*131072 + nn*1024, True)
    def q_pieces(c, buf, nt0=None):
        wnt = OPT.get("WQNT", QNT) if nt0 is None else nt0
        xnt = OPT.get("XNT", QNT) if nt0 is None else nt0
        if QW[c]:
            a.e(f"s_lshl_b32 s{sT0}, s{sKc}, 18")
            a.e(f"s_add_u32 s{sT0}, s{sT0}, s{sHsW}")
            sadds(f"s{sT1}", buf, sHs8k)
            for n in QW[c]:
                dma(vDW, sWQ, sT1, 10240 + n*1024, sT0, n*32768, wnt)
        if QX[c]:
            a.e(f"s_lshl_b32 s{sT0}, s{sKc}, 6")
            a.e(f"s_add_u32 s{sT0}, s{sT0}, s{sHsX}")
            sadds(f"s{sT1}", buf, sHsXl)
            for m in QX[c]:
                dma(vDX, sX, sT1, m*1024, sT0, m*16384, xnt)
    def kc_next():
        a.e(f"s_add_u32 s{sKc}, s{sKc}, 1")
        a.e(f"s_and_b32 s{sKc}, s{sKc}, 15")

    if NQ == 3:
        QB = [2*R, 3*R, 4*R]; qbuf = lambda sg: QB[(sg + 2) % 3]; QSTR = R
    else:
        QB = [57344 + 26624*i for i in range(4)]; qbuf = lambda sg: QB[sg % 4]; QSTR = 26624
    QSET = [dict(B=(96, 100), A=104), dict(B=(136, 140), A=64)]
    def q_reads(par, buf):
        st = QSET[par]
        vadd(vA, buf, -6144, vA0V)
        vadd(vT0, buf, 0, vXB)
        a.e(f"v_xor_b32 v{vA+1}, 64, v{vA}")
        a.e(f"v_xor_b32 v{vA+2}, 128, v{vA}")
        a.e(f"v_xor_b32 v{vA+3}, 192, v{vA}")
        a.e(f"v_xor_b32 v{vT1}, 32, v{vT0}")
        L_ = []
        for sx in range(2):
            b = st["B"][sx]
            L_.append(f"ds_read_b128 v[{b}:{b+3}], v{vT0 if sx == 0 else vT1}")
            for t in range(4):
                d = st["A"] + (sx*4 + t)*4
                L_.append(f"ds_read_b64_tr_b16 v[{d}:{d+1}], v{vA+t} offset:{sx*4096}")
                L_.append(f"ds_read_b64_tr_b16 v[{d+2}:{d+3}], v{vA+t} offset:{sx*4096+1024}")
        return L_
    def q_mfmas(par, rd, fq=False):
        st = QSET[par]; nrd = 0
        for i in range(8):
            sx, t = i >> 2, i & 3
            d = st["A"] + (sx*4 + t)*4
            b = st["B"][sx]
            a.e(f"v_mfma_f32_32x32x16_bf16 v[{vO+16*t}:{vO+16*t+15}], v[{d}:{d+3}], v[{b}:{b+3}], v[{vO+16*t}:{vO+16*t+15}]")
            if rd:
                if nrd >= 12: a.e("s_waitcnt lgkmcnt(9)")
                for _ in range(3):
                    if rd: a.e(rd.pop(0)); nrd += 1
            if fq and (i & 1): stamp_nw(a, 11 + (i >> 1))

    def lane_addresses():
        a.e(f"""
        v_lshrrev_b32 v1, 5, v{L}            ; h
        v_bfe_u32 v2, v{L}, 2, 2             ; r
        v_lshl_add_u32 v3, v1, 3, v2         ; 8h+r
        v_lshlrev_b32 v3, 8, v3
        v_lshl_add_u32 v3, v2, 6, v3         ; + r*64
        v_bfe_u32 v4, v{L}, 4, 1
        v_lshl_add_u32 v3, v4, 5, v3         ; + g*32
        v_and_b32 v4, 1, v{L}
        v_lshl_add_u32 v3, v4, 4, v3         ; + c0*16
        v_bfe_u32 v4, v{L}, 1, 1
        v_lshl_add_u32 v3, v4, 3, v3         ; + c1*8
        s_add_u32 s{sT1}, s{sHs8k}, 16384
        v_add_u32 v{vA0V}, s{sT1}, v3
        v_and_b32 v2, 0x13, v{L}
        v_and_b32 v3, 4, v{L}
        v_lshl_or_b32 v2, v3, 1, v2
        v_and_b32 v3, 8, v{L}
        v_lshrrev_b32 v3, 1, v3
        v_or_b32 v2, v2, v3                  ; rho
        v_bfe_u32 v3, v2, 1, 3
        v_xor_b32 v3, v3, v1
        v_lshlrev_b32 v3, 4, v3
        v_lshl_add_u32 v3, v2, 7, v3
        v_add_u32 v{vA0K}, s{sHs8k}, v3
        v_and_b32 v2, 31, v{L}
        v_bfe_u32 v3, v{L}, 2, 2
        v_xor_b32 v3, v3, v1
        v_lshlrev_b32 v3, 4, v3
        v_lshl_add_u32 v3, v2, 6, v3
        s_lshl_b32 s{sT0}, s{sQB}, 11
        v_add_u32 v{vXB}, s{sT0}, v3
        v_lshlrev_b32 v{vOst}, 4, v{L}
        """)

    seq = []
    def push(key, n4): seq.append((key, list(n4)))
    def wait_for(key):
        idx = max(i for i, e in enumerate(seq) if e[0] == key)
        for c in range(NC):
            if not any(e[0] == key and e[1][c] for e in seq): continue
            n = min(63, sum(e[1][c] for e in seq[idx+1:]))
            cls_block(c, lambda n=n: a.e(f"s_waitcnt vmcnt({n})"))

    for c in range(1, NC):
        a.e(f"s_cmp_eq_u32 s{sCls}, {c}")
        a.e(f"s_cbranch_scc1 {name}_cls{c}")
    for c in range(NC):
        a.lab(f"{name}_cls{c}")
        for sg in range(NQ):
            q_pieces(c, qbuf(sg), True if sg < OPT.get("QNT0", 0) else None); kc_next()
        if OPT.get("QTOUCH") and c in (2, 4):
            a.c("pull this workgroup's share of the XCD group's x / Wq lines into L2 (one dword per 128-byte line)")
            if c == 2:
                a.e(f"s_mul_i32 s{sT0}, s{sHpl}, 40960")
                a.e(f"s_mul_i32 s{sT1}, s{sHS}, 20480")
                a.e(f"s_add_u32 s{sT0}, s{sT0}, s{sT1}")
                a.e(f"v_lshlrev_b32 v5, 7, v{L}")
                for m in range(3):
                    a.e(f"s_add_u32 s{sT1}, s{sT0}, {m*8192}")
                    if m == 2: a.e("s_mov_b64 exec, 0xffffffff")
                    a.e(f"buffer_load_dword v{163+m}, v5, s[{sX}:{sX+3}], s{sT1} offen {OPT.get('QTFL', '')}")
                a.e("s_mov_b64 exec, -1")
            else:
                a.e(f"s_lshl_b32 s{sT0}, s{sB}, 19")
                a.e(f"s_lshl_b32 s{sT1}, s{sHS}, 18")
                a.e(f"s_add_u32 s{sT0}, s{sT0}, s{sT1}")
                a.e(f"v_lshrrev_b32 v5, 2, v{L}")
                a.e(f"v_lshlrev_b32 v5, 13, v5")
                a.e(f"v_and_b32 v6, 3, v{L}")
                a.e(f"v_lshl_add_u32 v5, v6, 7, v5")
                for m in range(2):
                    a.e(f"s_add_u32 s{sT1}, s{sT0}, {m*16*8192}")
                    a.e(f"buffer_load_dword v{163+m}, v5, s[{sWQ}:{sWQ+3}], s{sT1} offen {OPT.get('QTFL', '')}")
        if FUSE and OPT.get("PTOUCH") and c == 4:
            a.c("address-translation warm-up: one dword from each 64 KiB of the workspace / output areas this workgroup uses later")
            st = OPT["PTOUCH"]
            srd(a, 64 if False else 92, sWS, 0x10000000) if False else None
            a.e(f"v_lshlrev_b32 v5, 16, v{L}")
            a.e(f"s_mov_b64 exec, 0xfffff")
            a.e(f"buffer_load_dword v166, v5, s[{sO}:{sO+3}], 0 offen")
            a.e(f"s_mov_b64 exec, -1")
            a.e(f"s_lshl_b32 s{sT0}, s{sBeta}, 3")
            a.e(f"s_add_u32 s{sT0}, s{sT0}, s{sB}")
            a.e(f"s_lshl_b32 s{sT0}, s{sT0}, 2")
            a.e(f"s_add_u32 s{sT0}, s{sT0}, s{sHpl}")
            a.e(f"s_mul_i32 s{sT0}, s{sT0}, 40960")
            a.e(f"s_add_u32 s{sT0}, s{sT0}, {C.WS_P}")
            a.e(f"v_mul_u32_u24 v5, {64*40960 >> 8}, v{L}")
            a.e(f"v_lshlrev_b32 v5, 8, v5")
            a.e(f"v_add_u32 v5, s{sT0}, v5")
            a.e(f"v_mov_b32 v6, {WS_F}")
            a.e(f"v_cmp_eq_u32 vcc, 4, v{L}")
            a.e(f"s_nop 1")
            a.e(f"v_cndmask_b32 v5, v5, v6, vcc")
            a.e(f"s_mov_b64 exec, 31")
            a.e(f"global_load_dword v167, v5, s[{sWS}:{sWS+1}]")
            a.e(f"s_mul_i32 s{sT0}, s{sB}, {160*2048}")
            a.e(f"v_lshlrev_b32 v5, 16, v{L}")
            a.e(f"v_add_u32 v5, s{sT0}, v5")
            a.e(f"s_mov_b64 exec, 31")
            a.e(f"global_load_dword v165, v5, s[{sPOut}:{sPOut+1}]")
            a.e(f"s_mov_b64 exec, -1")
        stamp(a, 2)
        lane_addresses()
        for r in range(64): a.e(f"v_mov_b32 v{vO+r}, 0")
        if QN[c]: a.e(f"s_waitcnt vmcnt({(NQ-1)*QN[c]})")
        a.e("s_barrier")
        rd = q_reads(0, qbuf(0))
        for i, r_ in enumerate(rd):
            if i == 14: a.e("s_waitcnt lgkmcnt(8)")
            a.e(r_)
        a.e("s_waitcnt lgkmcnt(0)")
        stamp(a, 3)
        a.e(f"s_mov_b32 s{sBufA}, {qbuf(0)}")
        a.e(f"s_mov_b32 s{sBufB}, {qbuf(1)}")
        a.e(f"s_mov_b32 s{sCnt}, 0")
        a.e(f"s_mov_b32 s{sKVs}, 0")
        a.e(f"s_mov_b32 s{sKVl}, 0")
        a.lab(f"{name}_ql{c}")
        for par in range(2):
            if QN[c]: a.e(f"s_waitcnt vmcnt({(NQ-2)*QN[c]})")
            a.e("s_barrier")
            fq = OPT.get("FINEQ") and par == 0
            if fq: stamp_nw(a, 10)
            if OPT.get("FINEQ") and par == 1: stamp_nw(a, 15)
            rd = q_reads(1 - par, ("s", sBufB))
            if QN[c] and not QLATE[c]: q_pieces(c, ("s", sBufA))
            q_mfmas(par, rd, fq)
            if QN[c] and QLATE[c]: q_pieces(c, ("s", sBufA))
            kc_next()
            a.e(f"s_mov_b32 s{sBufA}, s{sBufB}")
            a.e(f"s_add_u32 s{sBufB}, s{sBufB}, {QSTR}")
            a.e(f"s_cmp_eq_u32 s{sBufB}, {5*R}")
            a.e(f"s_cselect_b32 s{sBufB}, {QB[0]}, s{sBufB}")
            if c == 0:
                lab = newlab("nokv")
                a.e(f"s_cmp_lt_u32 s{sCnt}, {3 if (NQ == 4 and par == 1) else 4}")
                a.e(f"s_cbranch_scc0 {lab}")
                a.e(f"s_add_u32 s{sT0}, s{sKVl}, s{sL1024}")
                if par == 0:
                    for n2 in (0, 2):
                        for half in (0, 1):
                            dma(vDK, sK, sT0, half*4096 + n2*1024, sKVs, half*128 + n2*2048, True)
                else:
                    a.e(f"s_add_u32 s{sT1}, s{sKVs}, s{sL1024}")
                    for nn in (0, 2, 4, 6):
                        dma(vDV, sV, sT0, 16384 + nn*1024, sT1, nn*1024, True)
                    a.e(f"s_add_u32 s{sT0}, s{sCnt}, 1")
                    a.e(f"s_lshr_b32 s{sT1}, s{sT0}, 1")
                    a.e(f"s_and_b32 s{sT0}, s{sT0}, 1")
                    a.e(f"s_lshl_b32 s{sKVs}, s{sT1}, 13")
                    a.e(f"s_lshl_b32 s{sT2}, s{sT0}, 17")
                    a.e(f"s_add_u32 s{sKVs}, s{sKVs}, s{sT2}")
                    a.e(f"s_lshl_b32 s{sKVl}, s{sT1}, 15")
                    a.e(f"s_lshl_b32 s{sT2}, s{sT0}, 13")
                    a.e(f"s_add_u32 s{sKVl}, s{sKVl}, s{sT2}")
                a.lab(lab)
            a.e("s_waitcnt lgkmcnt(0)")
        a.e(f"s_add_u32 s{sCnt}, s{sCnt}, 1")
        a.e(f"s_cmp_lt_u32 s{sCnt}, 6")
        a.e(f"s_cbranch_scc1 {name}_ql{c}")
        if c < NC - 1: a.e(f"s_branch {name}_qtail")
    a.lab(f"{name}_qtail")
    stamp(a, 9)
    for i in range(4): push(("kv", i >> 1), [4 if (NQ == 4 and i == 3) else 8, 0, 0, 0, 0])
    for sg in range(13, 12 + NQ): push(("q", sg), QN)
    def q_iter(sg, kv):
        rd = []
        if sg < 15: wait_for(("q", sg + 1))
        a.e("s_barrier")
        if OPT.get("FINEQ2"): stamp_nw(a, 10 + sg - 12)
        if sg < 15: rd = q_reads((sg + 1) & 1, qbuf(sg + 1))
        if sg + NQ < 16:
            for c in range(NC):
                if QN[c] and not QLATE[c]: cls_block(c, lambda c=c: q_pieces(c, qbuf(sg + NQ)))
        q_mfmas(sg & 1, rd)
        if sg + NQ < 16:
            for c in range(NC):
                if QN[c] and QLATE[c]: cls_block(c, lambda c=c: q_pieces(c, qbuf(sg + NQ)))
            push(("q", sg + NQ), QN)
        if NQ == 4 and sg == 12:
            def vlast():
                a.e(f"s_add_u32 s{sT0}, s{sL1024}, {R + 16384 + 8192}")
                a.e(f"s_add_u32 s{sT1}, s{sL1024}, {8192 + 131072}")
                for nn in (0, 2, 4, 6):
                    dma(vDV, sV, sT0, nn*1024, sT1, nn*1024, True)
            cls_block(0, vlast)
            push(("kv1v", 1), [4, 0, 0, 0, 0])
        if kv is not None:
            lo4_block(lambda: kv_pieces((kv % 5)*R, kv*8192, [0, 1, 2, 3]))
            push(("kv", kv), [8, 8, 0, 0, 0])
        a.e("s_waitcnt lgkmcnt(0)")
    T4LATE = OPT.get('T4LATE', True)
    q_iter(12, None); q_iter(13, 2); q_iter(14, 3); q_iter(15, 4 if (LAT == 4 and not T4LATE) else None)
    stamp(a, 4)
    if FUSE:
        a.e(f"s_lshl_b32 s{sT0}, s{sHpl}, 8")
        srd(a, sX, sPWo, 0, sT0)
        a.e(f"s_sub_u32 s{sX+2}, 4194304, s{sT0}")
        a.e(f"v_lshrrev_b32 v{vT0}, 4, v{L}")
        a.e(f"v_mul_u32_u24 v{vT0}, 768, v{vT0}")
        a.e(f"v_add_u32 v{vDW}, v{vT0}, v{vDV}")
    PACE = OPT.get("PACE") if FUSE else None
    if PACE:
        a.e(f"s_mov_b32 s{sT0}, {WS_F}")
        srd(a, sWQ, sWS, 65536, sT0)
        a.e(f"s_andn2_b32 s{sT0}, s2, 7")
        a.e(f"v_or_b32 v165, s{sT0}, v{L}")
        a.e(f"v_lshlrev_b32 v165, 8, v165")
        a.e(f"v_add_u32 v165, 64, v165")
    a.nop(12)
    a.e(f"s_mov_b32 s{sT0}, {hex(f2u(QSCALE))}")
    a.e(f"v_mov_b32 v{vMX}, s{sT0}")
    a.nop(1)
    for r in range(32):
        a.e(f"v_pk_mul_f32 v[{vO+2*r}:{vO+2*r+1}], v[{vO+2*r}:{vO+2*r+1}], v[{vMX}:{vMX+1}] op_sel_hi:[1,0]")
    for r in range(32):
        a.e(f"v_cvt_pk_bf16_f32 v{vQ+r}, v{vO+2*r}, v{vO+2*r+1}")

    if OPT.get("FINEQ2"): stamp_nw(a, 14)
    F0 = OPT.get("FINE0")
    if F0: stamp_nw(a, 10)
    def k_addr(reg):
        vadd(vA, reg, 0, vA0K)
        a.e(f"v_xor_b32 v{vA+1}, 32, v{vA}")
        a.e(f"v_xor_b32 v{vA+2}, 64, v{vA}")
        a.e(f"v_xor_b32 v{vA+3}, 96, v{vA}")
    def rdK(j):
        f = vF + (j & 3)*4
        a.ds(f"ds_read_b128 v[{f}:{f+3}], v{vA+(j&3)} offset:{(j>>2)*4096}", ("K", j))
    def setprio(p):
        if p is not None: a.e(f"s_setprio {p}")
    S = lambda r: f"v{vS+r}"
    def att_body(tag, first, reg, regn):
        PQ, PS, PP = OPT["PRIO"]
        fine = False
        def rdV(sx, t):
            f = vF + t*4
            a.ds(f"ds_read_b64_tr_b16 v[{f}:{f+1}], v{vA+t} offset:{sx*4096}", ("V", sx, t, 0))
            a.ds(f"ds_read_b64_tr_b16 v[{f+2}:{f+3}], v{vA+t} offset:{sx*4096+1024}", ("V", sx, t, 1))
        setprio(PQ)
        for j in range(8):
            a.need(("K", j))
            f = vF + (j & 3)*4
            cop = f"v[{vS}:{vS+15}]" if j else ("0" if first else f"v[{vNM}:{vNM+15}]")
            a.e(f"v_mfma_f32_32x32x16_bf16 v[{vS}:{vS+15}], v[{f}:{f+3}], v[{vQ+4*j}:{vQ+4*j+3}], {cop}")
            if j < 4: rdK(j+4)
            if j == 3:
                vadd(vA, reg, 0, vA0V)
                a.e(f"v_xor_b32 v{vA+1}, 64, v{vA}")
                a.e(f"v_xor_b32 v{vA+2}, 128, v{vA}")
                a.e(f"v_xor_b32 v{vA+3}, 192, v{vA}")
            if j >= 4: rdV(0, j - 4)
        setprio(PS)
        a.nop(10)
        a.e(f"v_max3_f32 v{vMX}, {S(0)}, {S(1)}, {S(2)}")
        a.e(f"v_max3_f32 v{vMX2}, {S(3)}, {S(4)}, {S(5)}")
        a.e(f"v_max3_f32 v{vMX}, v{vMX}, {S(6)}, {S(7)}")
        a.e(f"v_max3_f32 v{vMX2}, v{vMX2}, {S(8)}, {S(9)}")
        a.e(f"v_max3_f32 v{vMX}, v{vMX}, {S(10)}, {S(11)}")
        a.e(f"v_max3_f32 v{vMX2}, v{vMX2}, {S(12)}, {S(13)}")
        a.e(f"v_max3_f32 v{vMX}, v{vMX}, {S(14)}, {S(15)}")
        a.e(f"v_max_f32 v{vMX}, v{vMX}, v{vMX2}")
        if first:
            a.e(f"v_mov_b32 v{vMX2}, v{vMX}")
            a.nop(2)
            a.e(f"v_permlane32_swap_b32 v{vMX}, v{vMX2}")
            a.nop(1)
            a.e(f"v_max_f32 v{vMX}, v{vMX}, v{vMX2}")
            for r in range(16):
                a.e(f"v_sub_f32 {S(r)}, {S(r)}, v{vMX}")
            for r in range(16):
                a.e(f"v_sub_f32 v{vNM+r}, 0, v{vMX}")
            a.e(f"v_mov_b32 v{vL0}, 0")
            a.e(f"v_mov_b32 v{vL1}, 0")
        else:
            a.e(f"v_cmp_lt_f32 vcc, 0x41200000, v{vMX}")
            a.e(f"s_cbranch_vccnz {name}_rare_{tag}")
            a.lab(f"{name}_back_{tag}")
        ex = lambda r: a.e(f"v_exp_f32 {S(r)}, {S(r)}")
        ad = lambda r: a.e(f"v_add_f32 v{vL0 + (r&1)}, v{vL0 + (r&1)}, {S(r)}")
        pk = lambda d: a.e(f"v_cvt_pk_bf16_f32 {S(d)}, {S(2*d)}, {S(2*d+1)}")
        ex(0)
        for r in range(1, 8): ex(r); ad(r-1)
        pk(0); ad(7); pk(1); pk(2); pk(3)
        setprio(PP)
        a.nop(2)
        def pv(sx, t):
            a.need(("V", sx, t, 0), ("V", sx, t, 1))
            f = vF + t*4
            cop = "0" if (first and sx == 0) else f"v[{vO+16*t}:{vO+16*t+15}]"
            a.e(f"v_mfma_f32_32x32x16_bf16 v[{vO+16*t}:{vO+16*t+15}], v[{f}:{f+3}], v[{vS+4*sx}:{vS+4*sx+3}], {cop}")
        for t in range(4):
            pv(0, t); rdV(1, t)
            if t: ad(7 + 2*t)
            ex(8 + 2*t); ex(9 + 2*t); ad(8 + 2*t)
            if t: pk(3 + t)
        ad(15); pk(7)
        if regn is not None: k_addr(regn)
        else: a.nop(2)
        for t in range(4):
            pv(1, t)
            if regn is not None: rdK(t)
        if regn is None: a.drain()

    def rare(tag):
        a.lab(f"{name}_rare_{tag}")
        a.c("raise the subtracted max to the running row max and rescale what was accumulated")
        a.e(f"v_mov_b32 v{vMX2}, v{vMX}")
        a.nop(2)
        a.e(f"v_permlane32_swap_b32 v{vMX}, v{vMX2}")
        a.nop(1)
        a.e(f"v_max_f32 v{vMX}, v{vMX}, v{vMX2}")
        a.e(f"v_max_f32 v{vMX}, 0, v{vMX}")
        a.e(f"v_sub_f32 v{vMX2}, 0, v{vMX}")
        a.e(f"v_exp_f32 v{vMX2}, v{vMX2}")
        for r in range(16):
            a.e(f"v_sub_f32 v{vS+r}, v{vS+r}, v{vMX}")
        for r in range(16):
            a.e(f"v_sub_f32 v{vNM+r}, v{vNM+r}, v{vMX}")
        for r in range(64):
            a.e(f"v_mul_f32 v{vO+r}, v{vO+r}, v{vMX2}")
        a.e(f"v_mul_f32 v{vL0}, v{vL0}, v{vMX2}")
        a.e(f"v_mul_f32 v{vL1}, v{vL1}, v{vMX2}")
        a.e(f"s_branch {name}_back_{tag}")

    wait_for(("kv", 0))
    a.e("s_barrier")
    if F0: stamp_nw(a, 11)
    k_addr(0)
    for j in range(4): rdK(j)
    wait_for(("kv", 1))
    a.e("s_barrier")
    if F0: stamp_nw(a, 12)
    att_body("t0", True, 0, R)
    if F0: stamp_nw(a, 13)
    if LAT == 4 and T4LATE:
        lo4_block(lambda: kv_pieces(4*R, 4*8192, [0, 1, 2, 3]))
        push(("kv", 4), [8, 8, 0, 0, 0])
    if F0: stamp_nw(a, 14)
    if C.PROF: a.e("s_waitcnt lgkmcnt(0)")
    stamp(a, 5)
    if FUSE and OPT.get("WTOUCH", True):
        a.c("pull this workgroup's 1/32 share of the quarter's Wo rows into L2 (one dword per 128-byte line)")
        def touch():
            a.e(f"s_lshr_b32 s{sT0}, s{sH0}, 3")
            a.e(f"s_lshl_b32 s{sT0}, s{sT0}, 20")
            a.e(f"s_lshl_b32 s{sT1}, s{sB}, 2")
            a.e(f"s_add_u32 s{sT1}, s{sT1}, s{sHpl}")
            a.e(f"s_lshl_b32 s{sT1}, s{sT1}, 15")
            a.e(f"s_add_u32 s{sT0}, s{sT0}, s{sT1}")
            a.e(f"s_lshl_b32 s{sT1}, s{sHS}, 14")
            a.e(f"s_add_u32 s{sT0}, s{sT0}, s{sT1}")
            a.e(f"s_lshl_b32 s{sT1}, s{sHpl}, 8")
            a.e(f"s_sub_u32 s{sT0}, s{sT0}, s{sT1}")
            a.e(f"v_lshlrev_b32 v{vT0}, 7, v{L}")
            for m in range(2):
                a.e(f"s_add_u32 s{sT1}, s{sT0}, {m*8192}")
                a.e(f"buffer_load_dword v{163+m}, v{vT0}, s[{sX}:{sX+3}], s{sT1} offen {OPT.get('WTFL', '')}")
        if not OPT.get("WTAT"): cls_block(2, touch)
    if FUSE:
        def init_check():
            a.c("request the group's start counter now; the loader waves look at it before they read any hand-off word")
            a.e(f"s_lshl_b32 s{sT0}, s{sBeta}, 3")
            a.e(f"s_add_u32 s{sT0}, s{sT0}, s{sB}")
            a.e(f"s_lshl_b32 s{sT0}, s{sT0}, 2")
            if OPT.get("DBGT"): a.e(f"s_add_u32 s{sT0}, s{sT0}, 128")
            a.e(f"v_mov_b32 v{vT0}, s{sT0}")
            a.e(f"buffer_load_dword v166, v{vT0}, s[{sDbg}:{sDbg+3}], 0 offen sc1")
        cls_block(4, init_check)
    entry_state = list(a.lg)
    a.e(f"s_mov_b32 s{sCnt}, 1")
    a.e(f"s_mov_b32 s{sTile}, {LAT*8192}")
    a.e(f"s_mov_b32 s{sRegD}, {(LAT % 5)*R}")
    a.e(f"s_mov_b32 s{sReg}, 0")
    a.e(f"s_mov_b32 s{sRegN}, {R}")
    a.e(f"s_cmp_lt_u32 s{sW}, 4")
    a.e(f"s_cbranch_scc0 {name}_aloop1")
    for var in range(2):
        a.lg = list(entry_state)
        a.lab(f"{name}_aloop{var}")
        if var == 0:
            a.e(f"s_cmp_le_u32 s{sCnt}, {16 - LAT}")
            a.e(f"s_cbranch_scc0 {name}_atailw")
            a.e(f"s_waitcnt vmcnt({8*(LAT-2)})")
            a.lab(f"{name}_atailb")
        regs = (sReg, sRegN) + ((sRegD,) if var == 0 else ())
        def rot():
            for sr in regs:
                a.e(f"s_add_u32 s{sr}, s{sr}, {R}")
                a.e(f"s_cmp_eq_u32 s{sr}, {5*R}")
                a.e(f"s_cselect_b32 s{sr}, 0, s{sr}")
        if var == 0 and OPT.get("ROTPRE", True): rot()
        a.e("s_barrier")
        if not (var == 0 and OPT.get("ROTPRE", True)): rot()
        att_body(f"lp{var}", False, ("s", sReg), ("s", sRegN))
        if var == 0:
            a.e(f"s_add_u32 s{sTile}, s{sTile}, 8192")
            a.e(f"s_cmp_le_u32 s{sCnt}, {15 - LAT}")
            a.e(f"s_cbranch_scc0 {name}_anofill")
            if not OPT.get("ANODMA"): kv_pieces(("s", sRegD), ("s", sTile), [0, 1, 2, 3])
            if FUSE:
                a.e(f"s_branch {name}_afilled")
                a.lab(f"{name}_anofill")
                a.e(f"s_cmp_eq_u32 s{sCnt}, 14")
                a.e(f"s_cbranch_scc1 {name}_afilled")
                a.e(f"s_branch {name}_awo")
                a.lab(f"{name}_afilled")
            else:
                a.lab(f"{name}_anofill")
        if var == 1 and FUSE and OPT.get("WTAT"):
            a.e(f"s_cmp_eq_u32 s{sCnt}, {OPT['WTAT']}")
            a.e(f"s_cbranch_scc1 {name}_wtl")
            a.lab(f"{name}_wtb")
        if var == 1 and PACE:
            a.e(f"s_cmp_eq_u32 s{sW}, 4")
            a.e(f"s_cbranch_scc1 {name}_pace")
            a.lab(f"{name}_paceb")
        assert a.lg == entry_state
        a.e(f"s_add_u32 s{sCnt}, s{sCnt}, 1")
        a.e(f"s_cmp_lt_u32 s{sCnt}, 15")
        a.e(f"s_cbranch_scc1 {name}_aloop{var}")
        if var == 0: a.e(f"s_branch {name}_alast")
    a.lab(f"{name}_alast")
    a.e("s_barrier")
    att_body("t15", False, (15 % 5)*R, None)
    if F0: stamp_nw(a, 15)
    stamp(a, 6)
    a.e(f"v_add_f32 v{vL0}, v{vL0}, v{vL1}")
    a.nop(1)
    a.e(f"v_mov_b32 v{vL1}, v{vL0}")
    a.nop(2)
    a.e(f"v_permlane32_swap_b32 v{vL0}, v{vL1}")
    a.nop(1)
    a.e(f"v_add_f32 v{vL0}, v{vL0}, v{vL1}")
    a.nop(1)
    a.e(f"v_rcp_f32 v{vL0}, v{vL0}")
    if OPT.get("FINEE"): stamp_nw(a, 10)
    a.nop(12)
    a.e(f"s_lshl_b32 s{sT0}, s{sQB}, 18")
    a.e(f"s_add_u32 s{sT1}, s{sH0}, s{sHS}")
    a.e(f"s_lshl_b32 s{sT1}, s{sT1}, 13")
    a.e(f"s_add_u32 s{sT0}, s{sT0}, s{sT1}")
    if FUSE:
        a.e(f"s_mul_i32 s{sT2}, s{sHS}, 10240")
        a.e(f"s_lshl_b32 s{sT3}, s{sQB}, 11")
        a.e(f"s_add_u32 s{sT2}, s{sT2}, s{sT3}")
        a.e(f"s_add_u32 s{sT2}, s{sT2}, {OSLOT0}")
        a.e(f"v_add_u32 v{vT0}, s{sT2}, v{vOst}")
    for fr in range(8):
        for r in range(4):
            q_ = vO + 8*fr + 2*r
            a.e(f"v_pk_mul_f32 v[{q_}:{q_+1}], v[{q_}:{q_+1}], v[{vL0}:{vL0+1}] op_sel_hi:[1,0]")
        for r in range(4):
            a.e(f"v_cvt_pk_bf16_f32 v{vQ+4*fr+r}, v{vO+8*fr+2*r}, v{vO+8*fr+2*r+1}")
        a.e(f"s_add_u32 s{sT1}, s{sT0}, {fr*1024}")
        a.e(f"buffer_store_dwordx4 v[{vQ+4*fr}:{vQ+4*fr+3}], v{vOst}, s[{sO}:{sO+3}], s{sT1} offen{(' ' + OPT.get('OST', 'sc1')) if FUSE else ''}")
        if FUSE and not OPT.get("STFIRST", True):
            a.e(f"ds_write_b128 v{vT0}, v[{vQ+4*fr}:{vQ+4*fr+3}] offset:{(fr >> 1)*20480 + (fr & 1)*1024}")
    if FUSE and OPT.get("STFIRST", True):
        for fr in range(8):
            a.e(f"ds_write_b128 v{vT0}, v[{vQ+4*fr}:{vQ+4*fr+3}] offset:{(fr >> 1)*20480 + (fr & 1)*1024}")
    if OPT.get("FINEE"): stamp_nw(a, 11)
    if FUSE:
        import tail
        tail.gen_tail(a, name, locals())
    else:
        a.e("s_waitcnt vmcnt(0)")
    stamp(a, 7); stamp_rt(a, 8)
    if OPT.get("DBGT") and C.PROF:
        a.e(f"s_cmp_eq_u32 s{sW}, 8")
        a.e(f"s_cbranch_scc0 {name}_nodbgt")
        a.e("s_mov_b64 exec, 1")
        for j, i in enumerate((3, 4, 5, 6, 10, 11, 12, 13, 14, 15, 7)):
            a.e(f"s_sub_u32 s{sT0}, s{64+2*i}, s66")
            a.e(f"s_lshr_b32 s{sT0}, s{sT0}, 4")
            a.e(f"v_mov_b32 v2, s{sT0}")
            a.e(f"v_mov_b32 v3, {4*j}")
            a.e(f"buffer_atomic_umax v2, v3, s[{sDbg}:{sDbg+3}], 0 offen sc1")
        a.e(f"s_not_b32 s{sT0}, s64")
        a.e(f"v_mov_b32 v2, s{sT0}")
        a.e(f"v_mov_b32 v3, 56")
        a.e(f"buffer_atomic_umax v2, v3, s[{sDbg}:{sDbg+3}], 0 offen sc1")
        a.e(f"v_mov_b32 v2, s80")
        a.e(f"v_mov_b32 v3, 60")
        a.e(f"buffer_atomic_umax v2, v3, s[{sDbg}:{sDbg+3}], 0 offen sc1")
        a.e("s_cmp_eq_u32 s2, 0")
        a.e(f"s_cbranch_scc0 {name}_nodbg0")
        a.e(f"s_sub_u32 s{sT0}, s80, s64")
        a.e(f"v_mov_b32 v2, s{sT0}")
        a.e(f"v_mov_b32 v3, 44")
        a.e(f"buffer_store_dword v2, v3, s[{sDbg}:{sDbg+3}], 0 offen sc1")
        a.e(f"s_sub_u32 s{sT0}, s78, s66")
        a.e(f"s_lshr_b32 s{sT0}, s{sT0}, 4")
        a.e(f"v_mov_b32 v2, s{sT0}")
        a.e(f"v_mov_b32 v3, 48")
        a.e(f"buffer_store_dword v2, v3, s[{sDbg}:{sDbg+3}], 0 offen sc1")
        a.lab(f"{name}_nodbg0")
        a.e("s_waitcnt vmcnt(0)")
        a.e("s_mov_b64 exec, -1")
        a.lab(f"{name}_nodbgt")
    stamp_store(a, sWS, sW, 16, 0, vT0)
    a.e(f"s_branch {name}_end")
    WNT = "nt " if OPT["WNT"] else ""
    def wo_stage_c0(sg):
        a.e(f"s_lshl_b32 s{sT0}, s{sH0}, 17")
        a.e(f"s_lshl_b32 s{sT1}, s{sL1024}, 2")
        a.e(f"s_add_u32 s{sT0}, s{sT0}, s{sT1}")
        for kh in (0, 1):
            for nn in (0, 4):
                a.e(f"s_add_u32 m0, s{sL1024}, {WSLOT[sg] + kh*8192 + nn*1024}")
                a.e(f"s_add_u32 s{sT3}, s{sT0}, {kh*131072 + sg*32768 + nn*4096}")
                a.e(f"buffer_load_dwordx4 v{vDW}, s[{sX}:{sX+3}], s{sT3} offen {WNT}lds")
    if FUSE:
        a.lab(f"{name}_awo")
        if LAT == 4:
            a.e(f"s_cmp_eq_u32 s{sCnt}, 12")
            a.e(f"s_cbranch_scc0 {name}_awo13")
            wo_stage_c0(0); wo_stage_c0(1)
            a.e(f"s_branch {name}_afilled")
            a.lab(f"{name}_awo13")
            wo_stage_c0(2)
        else:
            assert LAT == 3
            wo_stage_c0(0); wo_stage_c0(1); wo_stage_c0(2)
        a.e(f"s_branch {name}_afilled")
    if FUSE and OPT.get("WTAT"):
        a.lab(f"{name}_wtl")
        cls_block(2, touch)
        a.e(f"s_branch {name}_wtb")
    if PACE:
        CP, D = PACE
        a.lab(f"{name}_pace")
        a.c("keep the workgroups that share the memory system in step: publish the step count, wait if a partner on another XCD lags")
        a.e(f"s_add_u32 s{sT0}, s{sCnt}, 1")
        a.e(f"v_mov_b32 v166, s{sT0}")
        a.e(f"s_lshl_b32 s{sT1}, s2, 8")
        a.e(f"s_add_u32 s{sT1}, s{sT1}, 64")
        a.e("s_mov_b64 exec, 1")
        a.e(f"buffer_store_dword v166, off, s[{sWQ}:{sWQ+3}], s{sT1} sc1")
        a.e("s_mov_b64 exec, 0xff")
        for c in CP:
            lab = newlab("pc")
            a.e(f"s_cmp_eq_u32 s{sCnt}, {c - 3}")
            a.e(f"s_cbranch_scc0 {lab}")
            a.e(f"buffer_load_dword v167, v165, s[{sWQ}:{sWQ+3}], 0 offen sc1")
            a.e(f"s_branch {name}_pacex")
            a.lab(lab)
            lab = newlab("pc")
            a.e(f"s_cmp_eq_u32 s{sCnt}, {c}")
            a.e(f"s_cbranch_scc0 {lab}")
            a.e("s_waitcnt vmcnt(3)")
            a.e(f"v_cmp_gt_u32 vcc, {max(0, c - 2 - D)}, v167")
            a.e("s_nop 4")
            a.e(f"s_cbranch_vccz {name}_pacex")
            a.e(f"s_mov_b32 s{sT2}, {OPT['SPIN']}")
            l2 = newlab("pw")
            a.lab(l2)
            a.e(f"buffer_load_dword v167, v165, s[{sWQ}:{sWQ+3}], 0 offen sc1")
            a.e("s_waitcnt vmcnt(0)")
            a.e(f"v_cmp_gt_u32 vcc, {max(0, c - D)}, v167")
            a.e("s_nop 4")
            a.e(f"s_cbranch_vccz {name}_pacex")
            a.e(f"s_sub_u32 s{sT2}, s{sT2}, 1")
            a.e(f"s_cmp_lg_u32 s{sT2}, 0")
            a.e(f"s_cbranch_scc1 {l2}")
            a.e(f"s_branch {name}_pacex")
            a.lab(lab)
        a.lab(f"{name}_pacex")
        a.e("s_mov_b64 exec, -1")
        a.e(f"s_branch {name}_paceb")
    a.lab(f"{name}_atailw")
    for k in range(LAT - 2):
        t = 17 - LAT + k
        if k < LAT - 3:
            lab = newlab("tw")
            a.e(f"s_cmp_eq_u32 s{sCnt}, {t}")
            a.e(f"s_cbranch_scc0 {lab}")
        extra = ({13: 8, 14: 12}[t] if FUSE else 0)
        a.e(f"s_waitcnt vmcnt({8*(15 - (t + 1)) + extra})")
        a.e(f"s_branch {name}_atailb")
        if k < LAT - 3: a.lab(lab)
    for tag in ["lp0", "lp1", "t15"]:
        rare(tag)
    a.lab(f"{name}_end")
    a.e("s_endpgm")
    return a.text(), NV
```

```python
from dsl import *
import common as C
from common import srd, stamp, stamp_nw, stamp_rt, stamp_store, f2u, QSCALE

OPT = dict(QNT=False, ROT=2, LAT=4, PRIO=(1, 0, 1), FUSE=True, WNT=True, SPIN=1 << 16, CTOUCH=2, WTAT=13, QNT0=0, KVI0=2,
           QW=([], [0, 1, 2, 3], [], [4, 5, 6, 7], []), QX=([], [0, 1], [], [2, 3, 4], []), QLATE=(0, 0, 0, 0, 0))

def gen_k1(name):
    a = Asm()
    QNT = OPT["QNT"]; LAT = OPT["LAT"]; NQ = OPT.get("NQ", 3)
    QW, QX = OPT["QW"], OPT["QX"]
    NC = 5
    QLATE = OPT["QLATE"]
    QN = [len(QW[c]) + len(QX[c]) for c in range(NC)]
    sKc = 3
    sX, sWQ, sK, sV, sO = 8, 12, 16, 20, 24
    sW, sHS, sQB, sHsW = 28, 29, 30, 31
    sL1024 = 32
    sReg, sRegD = 33, 34
    sT0, sT1, sT2, sT3 = 35, 36, 37, 38
    sCnt = 39
    sHs8k, sTile, sHsX, sHsXl = 40, 41, 42, 43
    sH0, sBeta, sB, sRegN = 44, 45, 46, 47
    sPtr = 48
    sWS = 56
    sCls, sBufA, sBufB = 30, 59, 61
    sKVs, sKVl = 4, 5
    sRot, sTo = 58, 60
    TROT = OPT.get('TROT', 0)
    FUSE = OPT["FUSE"]
    sPOut, sPWo, sDbg, sHpl = 6, 62, 96, 100
    WS_F = C.WS_BASE + (33 << 20)
    WSLOT = [32768, 49152, 65536, 0]
    OSLOT0 = 81920
    vO, vQ, vS, vNM, vF = 0, 64, 96, 112, 128
    vA = 144
    vA0K, vA0V, vL0, vL1, vMX, vMX2 = 148, 149, 150, 151, 152, 153
    vT0, vT1 = 154, 155
    vDK, vDV, vDX, vDW, vXB, vOst = 156, 157, 158, 159, 160, 161
    vLane = 162
    NV = 168
    R = 32768
    L = vLane
    uid = [0]
    def newlab(p):
        uid[0] += 1
        return f"{name}_{p}{uid[0]}"

    a.raw(f".globl {name}\n.p2align 8\n.type {name},@function\n{name}:")
    a.e("s_cmp_ge_u32 s2, 256")
    a.e(f"s_cbranch_scc1 {name}_end")
    stamp_rt(a, 0); stamp(a, 1)
    a.e(f"s_load_dwordx2 s[{sWS}:{sWS+1}], s[0:1], 96")
    if FUSE:
        a.e(f"s_load_dwordx2 s[{sPOut}:{sPOut+1}], s[0:1], 80")
        a.e(f"s_load_dwordx2 s[{sDbg}:{sDbg+1}], s[0:1], 88")
    a.e(f"s_and_b32 s{sT0}, s2, 7")
    a.e(f"s_lshr_b32 s{sT1}, s2, 3")
    a.e(f"s_lshr_b32 s{sBeta}, s{sT0}, 2")
    a.e(f"s_mul_i32 s{sT2}, s{sBeta}, 40")
    a.e(f"s_add_u32 s0, s0, s{sT2}")
    a.e(f"s_addc_u32 s1, s1, 0")
    a.e(f"s_load_dwordx8 s[{sPtr}:{sPtr+7}], s[0:1], 0")
    if FUSE: a.e(f"s_load_dwordx2 s[{sPWo}:{sPWo+1}], s[0:1], 32")
    a.e(f"s_and_b32 s{sT0}, s{sT0}, 3")
    a.e(f"s_lshr_b32 s{sB}, s{sT1}, 2")
    a.e(f"s_and_b32 s{sT1}, s{sT1}, 3")
    a.e(f"s_mov_b32 s{sHpl}, s{sT1}")
    a.e(f"s_lshl_b32 s{sT0}, s{sT0}, 2")
    a.e(f"s_add_u32 s{sH0}, s{sT0}, s{sT1}")
    a.e(f"s_lshl_b32 s{sH0}, s{sH0}, 1")
    a.e(f"v_lshrrev_b32 v1, 6, v0")
    a.e(f"v_and_b32 v{L}, 63, v0")
    a.e(f"v_readfirstlane_b32 s{sW}, v1")
    a.e(f"s_and_b32 s{sHS}, s{sW}, 1")
    a.e(f"s_lshr_b32 s{sQB}, s{sW}, 1")
    a.e(f"s_and_b32 s{sT0}, s{sW}, 3")
    a.e(f"s_lshl_b32 s{sL1024}, s{sT0}, 10")
    if OPT.get("CTOUCH"):
        a.c("waves 8, 9 of the first workgroups of an XCD group pull the kernel's own code into L2 (one dword per 128-byte line)")
        a.e(f"s_cmp_lt_u32 s{sW}, 8")
        a.e(f"s_cbranch_scc1 {name}_noct")
        a.e(f"s_lshr_b32 s{sT1}, s2, 3")
        a.e(f"s_cmp_ge_u32 s{sT1}, {OPT['CTOUCH']}")
        a.e(f"s_cbranch_scc1 {name}_noct")
        a.e(f"s_getpc_b64 s[60:61]")
        a.lab(f"{name}_pc")
        a.e(f"s_lshl_b32 s{sT1}, s{sT1}, 1")
        a.e(f"s_add_u32 s{sT1}, s{sT1}, s{sHS}")
        a.e(f"s_lshl_b32 s{sT1}, s{sT1}, 13")
        a.e(f"v_lshlrev_b32 v2, 7, v{L}")
        a.e(f"v_add_u32 v2, s{sT1}, v2")
        a.e(f"s_mov_b32 s{sT1}, {name}_end-{name}_pc")
        a.e(f"v_cmp_gt_u32 vcc, s{sT1}, v2")
        a.e(f"s_and_saveexec_b64 s[{sT2}:{sT2+1}], vcc") if False else None
        a.e(f"s_and_saveexec_b64 s[4:5], vcc")
        a.e(f"s_cbranch_execz {name}_ct2")
        a.e(f"global_load_dword v165, v2, s[60:61]")
        a.lab(f"{name}_ct2")
        a.e(f"s_mov_b64 exec, -1")
        a.lab(f"{name}_noct")
    a.e(f"""
    v_lshrrev_b32 v2, 4, v{L}            ; i>>4
    v_lshlrev_b32 v3, 2, v2
    v_and_b32 v4, 15, v{L}
    v_xor_b32 v3, v3, v4
    v_lshlrev_b32 v3, 4, v3
    v_lshl_add_u32 v{vDV}, v2, 8, v3     ; V: (i>>4)*256 + swz*16
    v_lshl_add_u32 v{vDW}, v2, 13, v3
    v_and_b32 v2, 3, v2                  ; (i>>4)&3
    v_and_b32 v4, 3, v{L}
    v_xor_b32 v2, v2, v4
    v_lshlrev_b32 v2, 4, v2
    v_lshrrev_b32 v3, 2, v{L}
    v_lshl_add_u32 v{vDX}, v3, 10, v2    ; x: (i>>2)*1024 + swz*16
    s_lshl_b32 s{sT1}, s{sT0}, 3
    v_lshrrev_b32 v2, 3, v{L}            ; i>>3
    v_add_u32 v2, s{sT1}, v2             ; row = 8l + (i>>3)
    v_bfe_u32 v3, v2, 1, 3
    v_and_b32 v4, 7, v{L}
    v_xor_b32 v3, v3, v4
    v_lshlrev_b32 v3, 4, v3
    v_lshl_add_u32 v{vDK}, v2, 8, v3
    s_lshl_b32 s{sHs8k}, s{sHS}, 13
    s_lshl_b32 s{sHsW}, s{sHS}, 8
    s_mul_i32 s{sHsX}, s{sHS}, 81920
    s_mul_i32 s{sHsXl}, s{sHS}, 5120
    s_mul_i32 s{sKc}, s{sB}, {OPT["ROT"]}
    s_mul_i32 s{sT1}, s{sHpl}, {OPT.get("ROTH", 0)}
    s_add_u32 s{sKc}, s{sKc}, s{sT1}
    s_and_b32 s{sKc}, s{sKc}, 15
    """)
    if TROT:
        a.e(f"s_lshr_b32 s{sRot}, s2, 3")
        a.e(f"s_and_b32 s{sT1}, s2, 7")
        a.e(f"s_mul_i32 s{sT1}, s{sT1}, {TROT[1]}")
        a.e(f"s_mul_i32 s{sRot}, s{sRot}, {TROT[0]}")
        a.e(f"s_add_u32 s{sRot}, s{sRot}, s{sT1}")
        a.e(f"s_and_b32 s{sRot}, s{sRot}, 15")
        a.e(f"s_lshl_b32 s{sRot}, s{sRot}, 13")
    else:
        a.e(f"s_mov_b32 s{sRot}, 0")
    a.e("s_waitcnt lgkmcnt(0)")
    if FUSE:
        a.e(f"s_mov_b32 s{sDbg+2}, 256")
        a.e(f"s_mov_b32 s{sDbg+3}, 0x00020000")
        a.e(f"s_cmp_eq_u32 s{sW}, 0")
        a.e(f"s_cbranch_scc0 {name}_noinit")
        a.c("wave 0 clears this workgroup's two hand-off words, then counts the workgroup into its group")
        a.e(f"s_mov_b32 s{sT0}, {WS_F}")
        srd(a, sX, sWS, 65536, sT0)
        a.e(f"s_lshl_b32 s{sT0}, s2, 8")
        a.e(f"v_lshlrev_b32 v2, 6, v{L}")
        a.e(f"v_add_u32 v2, s{sT0}, v2")
        a.e(f"v_mov_b32 v3, 0")
        a.e(f"s_mov_b64 exec, 15")
        a.e(f"buffer_store_dword v3, v2, s[{sX}:{sX+3}], 0 offen sc1")
        a.e(f"s_waitcnt vmcnt(0)")
        a.e(f"s_lshl_b32 s{sT0}, s{sBeta}, 3")
        a.e(f"s_add_u32 s{sT0}, s{sT0}, s{sB}")
        a.e(f"s_lshl_b32 s{sT0}, s{sT0}, 2")
        if OPT.get("DBGT"): a.e(f"s_add_u32 s{sT0}, s{sT0}, 128")
        a.e(f"s_mov_b64 exec, 1")
        a.e(f"v_mov_b32 v2, s{sT0}")
        a.e(f"v_mov_b32 v3, 1")
        a.e(f"buffer_atomic_add v3, v2, s[{sDbg}:{sDbg+3}], 0 offen sc1")
        a.e(f"s_mov_b64 exec, -1")
        a.lab(f"{name}_noinit")
    a.e(f"s_mul_i32 s{sT0}, s{sB}, 163840")
    srd(a, sX, sPtr+0, 163840, sT0)
    a.e(f"s_lshl_b32 s{sT0}, s{sH0}, 8")
    srd(a, sWQ, sPtr+6, 0, sT0)
    a.e(f"s_sub_u32 s{sWQ+2}, 4194304, s{sT0}")
    a.e(f"s_lshl_b32 s{sT0}, s{sB}, 5")
    a.e(f"s_add_u32 s{sT0}, s{sT0}, s{sH0}")
    a.e(f"s_lshl_b32 s{sT0}, s{sT0}, 17")
    srd(a, sK, sPtr+2, 262144, sT0)
    srd(a, sV, sPtr+4, 262144, sT0)
    a.e(f"s_lshl_b32 s{sT0}, s{sBeta}, 3")
    a.e(f"s_add_u32 s{sT0}, s{sT0}, s{sB}")
    a.e(f"s_mul_i32 s{sT0}, s{sT0}, 1310720")
    if C.WS_O: a.e(f"s_add_u32 s{sT0}, s{sT0}, {C.WS_O}")
    srd(a, sO, sWS, 1310720, sT0)

    def sadd(dst, base, imm):
        if isinstance(base, tuple): a.e(f"s_add_u32 {dst}, s{base[1]}, {imm}")
        else: a.e(f"s_mov_b32 {dst}, {base + imm}")
    def sadds(dst, base, sreg):
        if isinstance(base, tuple): a.e(f"s_add_u32 {dst}, s{base[1]}, s{sreg}")
        else: a.e(f"s_add_u32 {dst}, s{sreg}, {base}")
    def vadd(dst, base, imm, vreg):
        if isinstance(base, tuple):
            if imm:
                a.e(f"s_add_u32 s{sT2}, s{base[1]}, {imm & 0xffffffff}")
                a.e(f"v_add_u32 v{dst}, s{sT2}, v{vreg}")
            else: a.e(f"v_add_u32 v{dst}, s{base[1]}, v{vreg}")
        else: a.e(f"v_add_u32 v{dst}, {base + imm}, v{vreg}")
    def dma(voff, sr, m0base, m0imm, sbase, simm, nt):
        if sr == sK and not OPT.get("KNT", True): nt = False
        if sr == sV and not OPT.get("VNT", True): nt = False
        a.e(f"s_add_u32 m0, s{m0base}, {m0imm}")
        a.e(f"s_add_u32 s{sT3}, s{sbase}, {simm}")
        a.e(f"buffer_load_dwordx4 v{voff}, s[{sr}:{sr+3}], s{sT3} offen {'nt ' if nt else ''}lds")
    def cls_block(c, body):
        lab = newlab(f"c{c}_")
        a.e(f"s_cmp_eq_u32 s{sCls}, {c}")
        a.e(f"s_cbranch_scc0 {lab}")
        body()
        a.lab(lab)

    def lo4_block(body):
        lab = newlab("lo4_")
        a.e(f"s_cmp_lt_u32 s{sW}, 4")
        a.e(f"s_cbranch_scc0 {lab}")
        body()
        a.lab(lab)
    def kv_pieces(region, tile_off, parts):
        if isinstance(tile_off, int):
            a.e(f"s_add_u32 s{sTo}, s{sRot}, {tile_off}")
            a.e(f"s_and_b32 s{sTo}, s{sTo}, 0x1ffff")
            tile_off = ("s", sTo)
        sadds(f"s{sT0}", region, sL1024)
        sadds(f"s{sT1}", tile_off, sL1024)
        sadd(f"s{sT2}", tile_off, 0)
        for p in parts:
            hs2 = p & 1
            if p < 2:
                for half in (0, 1):
                    dma(vDK, sK, sT0, hs2*8192 + half*4096, sT2, hs2*131072 + half*128, True)
            else:
                for nn in (0, 4):
                    dma(vDV, sV, sT0, 16384 + hs2*8192 + nn*1024, sT1, hs2*131072 + nn*1024, True)
    def q_pieces(c, buf, nt0=None):
        wnt = OPT.get("WQNT", QNT) if nt0 is None else nt0
        xnt = OPT.get("XNT", QNT) if nt0 is None else nt0
        if QW[c]:
            a.e(f"s_lshl_b32 s{sT0}, s{sKc}, 18")
            a.e(f"s_add_u32 s{sT0}, s{sT0}, s{sHsW}")
            sadds(f"s{sT1}", buf, sHs8k)
            for n in QW[c]:
                dma(vDW, sWQ, sT1, 10240 + n*1024, sT0, n*32768, wnt)
        if QX[c]:
            a.e(f"s_lshl_b32 s{sT0}, s{sKc}, 6")
            a.e(f"s_add_u32 s{sT0}, s{sT0}, s{sHsX}")
            sadds(f"s{sT1}", buf, sHsXl)
            for m in QX[c]:
                dma(vDX, sX, sT1, m*1024, sT0, m*16384, xnt)
    def kc_next():
        a.e(f"s_add_u32 s{sKc}, s{sKc}, 1")
        a.e(f"s_and_b32 s{sKc}, s{sKc}, 15")

    if NQ == 3:
        QB = [2*R, 3*R, 4*R]; qbuf = lambda sg: QB[(sg + 2) % 3]; QSTR = R
    else:
        QB = [57344 + 26624*i for i in range(4)]; qbuf = lambda sg: QB[sg % 4]; QSTR = 26624
    QSET = [dict(B=(96, 100), A=104), dict(B=(136, 140), A=64)]
    def q_reads(par, buf):
        st = QSET[par]
        vadd(vA, buf, -6144, vA0V)
        vadd(vT0, buf, 0, vXB)
        a.e(f"v_xor_b32 v{vA+1}, 64, v{vA}")
        a.e(f"v_xor_b32 v{vA+2}, 128, v{vA}")
        a.e(f"v_xor_b32 v{vA+3}, 192, v{vA}")
        a.e(f"v_xor_b32 v{vT1}, 32, v{vT0}")
        L_ = []
        for sx in range(2):
            b = st["B"][sx]
            L_.append(f"ds_read_b128 v[{b}:{b+3}], v{vT0 if sx == 0 else vT1}")
            for t in range(4):
                d = st["A"] + (sx*4 + t)*4
                L_.append(f"ds_read_b64_tr_b16 v[{d}:{d+1}], v{vA+t} offset:{sx*4096}")
                L_.append(f"ds_read_b64_tr_b16 v[{d+2}:{d+3}], v{vA+t} offset:{sx*4096+1024}")
        return L_
    def q_mfmas(par, rd, fq=False):
        st = QSET[par]; nrd = 0
        for i in range(8):
            sx, t = i >> 2, i & 3
            d = st["A"] + (sx*4 + t)*4
            b = st["B"][sx]
            a.e(f"v_mfma_f32_32x32x16_bf16 v[{vO+16*t}:{vO+16*t+15}], v[{d}:{d+3}], v[{b}:{b+3}], v[{vO+16*t}:{vO+16*t+15}]")
            if rd:
                if nrd >= 12: a.e("s_waitcnt lgkmcnt(9)")
                for _ in range(3):
                    if rd: a.e(rd.pop(0)); nrd += 1
            if fq and (i & 1): stamp_nw(a, 11 + (i >> 1))

    def lane_addresses():
        a.e(f"""
        v_lshrrev_b32 v1, 5, v{L}            ; h
        v_bfe_u32 v2, v{L}, 2, 2             ; r
        v_lshl_add_u32 v3, v1, 3, v2         ; 8h+r
        v_lshlrev_b32 v3, 8, v3
        v_lshl_add_u32 v3, v2, 6, v3         ; + r*64
        v_bfe_u32 v4, v{L}, 4, 1
        v_lshl_add_u32 v3, v4, 5, v3         ; + g*32
        v_and_b32 v4, 1, v{L}
        v_lshl_add_u32 v3, v4, 4, v3         ; + c0*16
        v_bfe_u32 v4, v{L}, 1, 1
        v_lshl_add_u32 v3, v4, 3, v3         ; + c1*8
        s_add_u32 s{sT1}, s{sHs8k}, 16384
        v_add_u32 v{vA0V}, s{sT1}, v3
        v_and_b32 v2, 0x13, v{L}
        v_and_b32 v3, 4, v{L}
        v_lshl_or_b32 v2, v3, 1, v2
        v_and_b32 v3, 8, v{L}
        v_lshrrev_b32 v3, 1, v3
        v_or_b32 v2, v2, v3                  ; rho
        v_bfe_u32 v3, v2, 1, 3
        v_xor_b32 v3, v3, v1
        v_lshlrev_b32 v3, 4, v3
        v_lshl_add_u32 v3, v2, 7, v3
        v_add_u32 v{vA0K}, s{sHs8k}, v3
        v_and_b32 v2, 31, v{L}
        v_bfe_u32 v3, v{L}, 2, 2
        v_xor_b32 v3, v3, v1
        v_lshlrev_b32 v3, 4, v3
        v_lshl_add_u32 v3, v2, 6, v3
        s_lshl_b32 s{sT0}, s{sQB}, 11
        v_add_u32 v{vXB}, s{sT0}, v3
        v_lshlrev_b32 v{vOst}, 4, v{L}
        """)

    seq = []
    def push(key, n4): seq.append((key, list(n4)))
    def wait_for(key):
        idx = max(i for i, e in enumerate(seq) if e[0] == key)
        for c in range(NC):
            if not any(e[0] == key and e[1][c] for e in seq): continue
            n = min(63, sum(e[1][c] for e in seq[idx+1:]))
            cls_block(c, lambda n=n: a.e(f"s_waitcnt vmcnt({n})"))

    for c in range(1, NC):
        a.e(f"s_cmp_eq_u32 s{sCls}, {c}")
        a.e(f"s_cbranch_scc1 {name}_cls{c}")
    for c in range(NC):
        a.lab(f"{name}_cls{c}")
        for sg in range(NQ):
            q_pieces(c, qbuf(sg), True if sg < OPT.get("QNT0", 0) else None); kc_next()
        if OPT.get("QTOUCH") and c in (2, 4):
            a.c("pull this workgroup's share of the XCD group's x / Wq lines into L2 (one dword per 128-byte line)")
            if c == 2:
                a.e(f"s_mul_i32 s{sT0}, s{sHpl}, 40960")
                a.e(f"s_mul_i32 s{sT1}, s{sHS}, 20480")
                a.e(f"s_add_u32 s{sT0}, s{sT0}, s{sT1}")
                a.e(f"v_lshlrev_b32 v5, 7, v{L}")
                for m in range(3):
                    a.e(f"s_add_u32 s{sT1}, s{sT0}, {m*8192}")
                    if m == 2: a.e("s_mov_b64 exec, 0xffffffff")
                    a.e(f"buffer_load_dword v{163+m}, v5, s[{sX}:{sX+3}], s{sT1} offen {OPT.get('QTFL', '')}")
                a.e("s_mov_b64 exec, -1")
            else:
                a.e(f"s_lshl_b32 s{sT0}, s{sB}, 19")
                a.e(f"s_lshl_b32 s{sT1}, s{sHS}, 18")
                a.e(f"s_add_u32 s{sT0}, s{sT0}, s{sT1}")
                a.e(f"v_lshrrev_b32 v5, 2, v{L}")
                a.e(f"v_lshlrev_b32 v5, 13, v5")
                a.e(f"v_and_b32 v6, 3, v{L}")
                a.e(f"v_lshl_add_u32 v5, v6, 7, v5")
                for m in range(2):
                    a.e(f"s_add_u32 s{sT1}, s{sT0}, {m*16*8192}")
                    a.e(f"buffer_load_dword v{163+m}, v5, s[{sWQ}:{sWQ+3}], s{sT1} offen {OPT.get('QTFL', '')}")
        if FUSE and OPT.get("PTOUCH") and c == 4:
            a.c("address-translation warm-up: one dword from each 64 KiB of the workspace / output areas this workgroup uses later")
            st = OPT["PTOUCH"]
            srd(a, 64 if False else 92, sWS, 0x10000000) if False else None
            a.e(f"v_lshlrev_b32 v5, 16, v{L}")
            a.e(f"s_mov_b64 exec, 0xfffff")
            a.e(f"buffer_load_dword v166, v5, s[{sO}:{sO+3}], 0 offen")
            a.e(f"s_mov_b64 exec, -1")
            a.e(f"s_lshl_b32 s{sT0}, s{sBeta}, 3")
            a.e(f"s_add_u32 s{sT0}, s{sT0}, s{sB}")
            a.e(f"s_lshl_b32 s{sT0}, s{sT0}, 2")
            a.e(f"s_add_u32 s{sT0}, s{sT0}, s{sHpl}")
            a.e(f"s_mul_i32 s{sT0}, s{sT0}, 40960")
            a.e(f"s_add_u32 s{sT0}, s{sT0}, {C.WS_P}")
            a.e(f"v_mul_u32_u24 v5, {64*40960 >> 8}, v{L}")
            a.e(f"v_lshlrev_b32 v5, 8, v5")
            a.e(f"v_add_u32 v5, s{sT0}, v5")
            a.e(f"v_mov_b32 v6, {WS_F}")
            a.e(f"v_cmp_eq_u32 vcc, 4, v{L}")
            a.e(f"s_nop 1")
            a.e(f"v_cndmask_b32 v5, v5, v6, vcc")
            a.e(f"s_mov_b64 exec, 31")
            a.e(f"global_load_dword v167, v5, s[{sWS}:{sWS+1}]")
            a.e(f"s_mul_i32 s{sT0}, s{sB}, {160*2048}")
            a.e(f"v_lshlrev_b32 v5, 16, v{L}")
            a.e(f"v_add_u32 v5, s{sT0}, v5")
            a.e(f"s_mov_b64 exec, 31")
            a.e(f"global_load_dword v165, v5, s[{sPOut}:{sPOut+1}]")
            a.e(f"s_mov_b64 exec, -1")
        stamp(a, 2)
        lane_addresses()
        for r in range(64): a.e(f"v_mov_b32 v{vO+r}, 0")
        if QN[c]: a.e(f"s_waitcnt vmcnt({(NQ-1)*QN[c]})")
        a.e("s_barrier")
        rd = q_reads(0, qbuf(0))
        for i, r_ in enumerate(rd):
            if i == 14: a.e("s_waitcnt lgkmcnt(8)")
            a.e(r_)
        a.e("s_waitcnt lgkmcnt(0)")
        stamp(a, 3)
        a.e(f"s_mov_b32 s{sBufA}, {qbuf(0)}")
        a.e(f"s_mov_b32 s{sBufB}, {qbuf(1)}")
        a.e(f"s_mov_b32 s{sCnt}, 0")
        a.e(f"s_mov_b32 s{sKVs}, s{sRot}")
        a.e(f"s_mov_b32 s{sKVl}, 0")
        a.lab(f"{name}_ql{c}")
        for par in range(2):
            if QN[c]: a.e(f"s_waitcnt vmcnt({(NQ-2)*QN[c]})")
            a.e("s_barrier")
            fq = OPT.get("FINEQ") and par == 0
            if fq: stamp_nw(a, 10)
            if OPT.get("FINEQ") and par == 1: stamp_nw(a, 15)
            rd = q_reads(1 - par, ("s", sBufB))
            if QN[c] and not QLATE[c]: q_pieces(c, ("s", sBufA))
            q_mfmas(par, rd, fq)
            if QN[c] and QLATE[c]: q_pieces(c, ("s", sBufA))
            kc_next()
            a.e(f"s_mov_b32 s{sBufA}, s{sBufB}")
            a.e(f"s_add_u32 s{sBufB}, s{sBufB}, {QSTR}")
            a.e(f"s_cmp_eq_u32 s{sBufB}, {5*R}")
            a.e(f"s_cselect_b32 s{sBufB}, {QB[0]}, s{sBufB}")
            if c == 0:
                lab = newlab("nokv")
                KVI0 = OPT.get("KVI0", 0)
                if KVI0:
                    a.e(f"s_cmp_ge_u32 s{sCnt}, {KVI0}")
                    a.e(f"s_cbranch_scc0 {lab}")
                a.e(f"s_cmp_lt_u32 s{sCnt}, {KVI0 + (3 if (NQ == 4 and par == 1) else 4)}")
                a.e(f"s_cbranch_scc0 {lab}")
                a.e(f"s_add_u32 s{sT0}, s{sKVl}, s{sL1024}")
                if par == 0:
                    for n2 in (0, 2):
                        for half in (0, 1):
                            dma(vDK, sK, sT0, half*4096 + n2*1024, sKVs, half*128 + n2*2048, True)
                else:
                    a.e(f"s_add_u32 s{sT1}, s{sKVs}, s{sL1024}")
                    for nn in (0, 2, 4, 6):
                        dma(vDV, sV, sT0, 16384 + nn*1024, sT1, nn*1024, True)
                    a.e(f"s_add_u32 s{sT0}, s{sCnt}, {(1 - KVI0) & 0xffffffff}")
                    a.e(f"s_lshr_b32 s{sT1}, s{sT0}, 1")
                    a.e(f"s_and_b32 s{sT0}, s{sT0}, 1")
                    a.e(f"s_lshl_b32 s{sKVs}, s{sT1}, 13")
                    a.e(f"s_add_u32 s{sKVs}, s{sKVs}, s{sRot}")
                    a.e(f"s_and_b32 s{sKVs}, s{sKVs}, 0x1ffff")
                    a.e(f"s_lshl_b32 s{sT2}, s{sT0}, 17")
                    a.e(f"s_add_u32 s{sKVs}, s{sKVs}, s{sT2}")
                    a.e(f"s_lshl_b32 s{sKVl}, s{sT1}, 15")
                    a.e(f"s_lshl_b32 s{sT2}, s{sT0}, 13")
                    a.e(f"s_add_u32 s{sKVl}, s{sKVl}, s{sT2}")
                a.lab(lab)
            a.e("s_waitcnt lgkmcnt(0)")
        a.e(f"s_add_u32 s{sCnt}, s{sCnt}, 1")
        a.e(f"s_cmp_lt_u32 s{sCnt}, 6")
        a.e(f"s_cbranch_scc1 {name}_ql{c}")
        if c < NC - 1: a.e(f"s_branch {name}_qtail")
    a.lab(f"{name}_qtail")
    stamp(a, 9)
    for i in range(4): push(("kv", i >> 1), [4 if (NQ == 4 and i == 3) else 8, 0, 0, 0, 0])
    for sg in range(13, 12 + NQ): push(("q", sg), QN)
    def q_iter(sg, kv):
        rd = []
        if sg < 15: wait_for(("q", sg + 1))
        a.e("s_barrier")
        if OPT.get("FINEQ2"): stamp_nw(a, 10 + sg - 12)
        if sg < 15: rd = q_reads((sg + 1) & 1, qbuf(sg + 1))
        if sg + NQ < 16:
            for c in range(NC):
                if QN[c] and not QLATE[c]: cls_block(c, lambda c=c: q_pieces(c, qbuf(sg + NQ)))
        q_mfmas(sg & 1, rd)
        if sg + NQ < 16:
            for c in range(NC):
                if QN[c] and QLATE[c]: cls_block(c, lambda c=c: q_pieces(c, qbuf(sg + NQ)))
            push(("q", sg + NQ), QN)
        if NQ == 4 and sg == 12:
            def vlast():
                a.e(f"s_add_u32 s{sT0}, s{sL1024}, {R + 16384 + 8192}")
                a.e(f"s_add_u32 s{sT1}, s{sRot}, 8192")
                a.e(f"s_and_b32 s{sT1}, s{sT1}, 0x1ffff")
                a.e(f"s_add_u32 s{sT1}, s{sT1}, s{sL1024}")
                a.e(f"s_add_u32 s{sT1}, s{sT1}, 131072")
                for nn in (0, 2, 4, 6):
                    dma(vDV, sV, sT0, nn*1024, sT1, nn*1024, True)
            cls_block(0, vlast)
            push(("kv1v", 1), [4, 0, 0, 0, 0])
        if kv is not None:
            lo4_block(lambda: kv_pieces((kv % 5)*R, kv*8192, [0, 1, 2, 3]))
            push(("kv", kv), [8, 8, 0, 0, 0])
        a.e("s_waitcnt lgkmcnt(0)")
    T4LATE = OPT.get('T4LATE', True)
    q_iter(12, None); q_iter(13, 2); q_iter(14, 3); q_iter(15, 4 if (LAT == 4 and not T4LATE) else None)
    stamp(a, 4)
    if FUSE:
        a.e(f"s_lshl_b32 s{sT0}, s{sHpl}, 8")
        srd(a, sX, sPWo, 0, sT0)
        a.e(f"s_sub_u32 s{sX+2}, 4194304, s{sT0}")
        a.e(f"v_lshrrev_b32 v{vT0}, 4, v{L}")
        a.e(f"v_mul_u32_u24 v{vT0}, 768, v{vT0}")
        a.e(f"v_add_u32 v{vDW}, v{vT0}, v{vDV}")
    PACE = OPT.get("PACE") if FUSE else None
    if PACE:
        a.e(f"s_mov_b32 s{sT0}, {WS_F}")
        srd(a, sWQ, sWS, 65536, sT0)
        a.e(f"s_andn2_b32 s{sT0}, s2, 7")
        a.e(f"v_or_b32 v165, s{sT0}, v{L}")
        a.e(f"v_lshlrev_b32 v165, 8, v165")
        a.e(f"v_add_u32 v165, 64, v165")
    a.nop(12)
    a.e(f"s_mov_b32 s{sT0}, {hex(f2u(QSCALE))}")
    a.e(f"v_mov_b32 v{vMX}, s{sT0}")
    a.nop(1)
    for r in range(32):
        a.e(f"v_pk_mul_f32 v[{vO+2*r}:{vO+2*r+1}], v[{vO+2*r}:{vO+2*r+1}], v[{vMX}:{vMX+1}] op_sel_hi:[1,0]")
    for r in range(32):
        a.e(f"v_cvt_pk_bf16_f32 v{vQ+r}, v{vO+2*r}, v{vO+2*r+1}")

    if OPT.get("FINEQ2"): stamp_nw(a, 14)
    F0 = OPT.get("FINE0")
    if F0: stamp_nw(a, 10)
    def k_addr(reg):
        vadd(vA, reg, 0, vA0K)
        a.e(f"v_xor_b32 v{vA+1}, 32, v{vA}")
        a.e(f"v_xor_b32 v{vA+2}, 64, v{vA}")
        a.e(f"v_xor_b32 v{vA+3}, 96, v{vA}")
    def rdK(j):
        f = vF + (j & 3)*4
        a.ds(f"ds_read_b128 v[{f}:{f+3}], v{vA+(j&3)} offset:{(j>>2)*4096}", ("K", j))
    def setprio(p):
        if p is not None: a.e(f"s_setprio {p}")
    S = lambda r: f"v{vS+r}"
    def att_body(tag, first, reg, regn):
        PQ, PS, PP = OPT["PRIO"]
        fine = False
        def rdV(sx, t):
            f = vF + t*4
            a.ds(f"ds_read_b64_tr_b16 v[{f}:{f+1}], v{vA+t} offset:{sx*4096}", ("V", sx, t, 0))
            a.ds(f"ds_read_b64_tr_b16 v[{f+2}:{f+3}], v{vA+t} offset:{sx*4096+1024}", ("V", sx, t, 1))
        setprio(PQ)
        for j in range(8):
            a.need(("K", j))
            f = vF + (j & 3)*4
            cop = f"v[{vS}:{vS+15}]" if j else ("0" if first else f"v[{vNM}:{vNM+15}]")
            a.e(f"v_mfma_f32_32x32x16_bf16 v[{vS}:{vS+15}], v[{f}:{f+3}], v[{vQ+4*j}:{vQ+4*j+3}], {cop}")
            if j < 4: rdK(j+4)
            if j == 3:
                vadd(vA, reg, 0, vA0V)
                a.e(f"v_xor_b32 v{vA+1}, 64, v{vA}")
                a.e(f"v_xor_b32 v{vA+2}, 128, v{vA}")
                a.e(f"v_xor_b32 v{vA+3}, 192, v{vA}")
            if j >= 4: rdV(0, j - 4)
        setprio(PS)
        a.nop(10)
        a.e(f"v_max3_f32 v{vMX}, {S(0)}, {S(1)}, {S(2)}")
        a.e(f"v_max3_f32 v{vMX2}, {S(3)}, {S(4)}, {S(5)}")
        a.e(f"v_max3_f32 v{vMX}, v{vMX}, {S(6)}, {S(7)}")
        a.e(f"v_max3_f32 v{vMX2}, v{vMX2}, {S(8)}, {S(9)}")
        a.e(f"v_max3_f32 v{vMX}, v{vMX}, {S(10)}, {S(11)}")
        a.e(f"v_max3_f32 v{vMX2}, v{vMX2}, {S(12)}, {S(13)}")
        a.e(f"v_max3_f32 v{vMX}, v{vMX}, {S(14)}, {S(15)}")
        a.e(f"v_max_f32 v{vMX}, v{vMX}, v{vMX2}")
        if first:
            a.e(f"v_mov_b32 v{vMX2}, v{vMX}")
            a.nop(2)
            a.e(f"v_permlane32_swap_b32 v{vMX}, v{vMX2}")
            a.nop(1)
            a.e(f"v_max_f32 v{vMX}, v{vMX}, v{vMX2}")
            for r in range(16):
                a.e(f"v_sub_f32 {S(r)}, {S(r)}, v{vMX}")
            for r in range(16):
                a.e(f"v_sub_f32 v{vNM+r}, 0, v{vMX}")
            a.e(f"v_mov_b32 v{vL0}, 0")
            a.e(f"v_mov_b32 v{vL1}, 0")
        else:
            a.e(f"v_cmp_lt_f32 vcc, 0x41200000, v{vMX}")
            a.e(f"s_cbranch_vccnz {name}_rare_{tag}")
            a.lab(f"{name}_back_{tag}")
        ex = lambda r: a.e(f"v_exp_f32 {S(r)}, {S(r)}")
        ad = lambda r: a.e(f"v_add_f32 v{vL0 + (r&1)}, v{vL0 + (r&1)}, {S(r)}")
        pk = lambda d: a.e(f"v_cvt_pk_bf16_f32 {S(d)}, {S(2*d)}, {S(2*d+1)}")
        ex(0)
        for r in range(1, 8): ex(r); ad(r-1)
        pk(0); ad(7); pk(1); pk(2); pk(3)
        setprio(PP)
        a.nop(2)
        def pv(sx, t):
            a.need(("V", sx, t, 0), ("V", sx, t, 1))
            f = vF + t*4
            cop = "0" if (first and sx == 0) else f"v[{vO+16*t}:{vO+16*t+15}]"
            a.e(f"v_mfma_f32_32x32x16_bf16 v[{vO+16*t}:{vO+16*t+15}], v[{f}:{f+3}], v[{vS+4*sx}:{vS+4*sx+3}], {cop}")
        for t in range(4):
            pv(0, t); rdV(1, t)
            if t: ad(7 + 2*t)
            ex(8 + 2*t); ex(9 + 2*t); ad(8 + 2*t)
            if t: pk(3 + t)
        ad(15); pk(7)
        if regn is not None: k_addr(regn)
        else: a.nop(2)
        for t in range(4):
            pv(1, t)
            if regn is not None: rdK(t)
        if regn is None: a.drain()

    def rare(tag):
        a.lab(f"{name}_rare_{tag}")
        a.c("raise the subtracted max to the running row max and rescale what was accumulated")
        a.e(f"v_mov_b32 v{vMX2}, v{vMX}")
        a.nop(2)
        a.e(f"v_permlane32_swap_b32 v{vMX}, v{vMX2}")
        a.nop(1)
        a.e(f"v_max_f32 v{vMX}, v{vMX}, v{vMX2}")
        a.e(f"v_max_f32 v{vMX}, 0, v{vMX}")
        a.e(f"v_sub_f32 v{vMX2}, 0, v{vMX}")
        a.e(f"v_exp_f32 v{vMX2}, v{vMX2}")
        for r in range(16):
            a.e(f"v_sub_f32 v{vS+r}, v{vS+r}, v{vMX}")
        for r in range(16):
            a.e(f"v_sub_f32 v{vNM+r}, v{vNM+r}, v{vMX}")
        for r in range(64):
            a.e(f"v_mul_f32 v{vO+r}, v{vO+r}, v{vMX2}")
        a.e(f"v_mul_f32 v{vL0}, v{vL0}, v{vMX2}")
        a.e(f"v_mul_f32 v{vL1}, v{vL1}, v{vMX2}")
        a.e(f"s_branch {name}_back_{tag}")

    wait_for(("kv", 0))
    a.e("s_barrier")
    if F0: stamp_nw(a, 11)
    k_addr(0)
    for j in range(4): rdK(j)
    wait_for(("kv", 1))
    a.e("s_barrier")
    if F0: stamp_nw(a, 12)
    att_body("t0", True, 0, R)
    if F0: stamp_nw(a, 13)
    if LAT == 4 and T4LATE:
        lo4_block(lambda: kv_pieces(4*R, 4*8192, [0, 1, 2, 3]))
        push(("kv", 4), [8, 8, 0, 0, 0])
    if F0: stamp_nw(a, 14)
    if C.PROF: a.e("s_waitcnt lgkmcnt(0)")
    stamp(a, 5)
    if FUSE and OPT.get("WTOUCH", True):
        a.c("pull this workgroup's 1/32 share of the quarter's Wo rows into L2 (one dword per 128-byte line)")
        def touch():
            a.e(f"s_lshr_b32 s{sT0}, s{sH0}, 3")
            a.e(f"s_lshl_b32 s{sT0}, s{sT0}, 20")
            a.e(f"s_lshl_b32 s{sT1}, s{sB}, 2")
            a.e(f"s_add_u32 s{sT1}, s{sT1}, s{sHpl}")
            a.e(f"s_lshl_b32 s{sT1}, s{sT1}, 15")
            a.e(f"s_add_u32 s{sT0}, s{sT0}, s{sT1}")
            a.e(f"s_lshl_b32 s{sT1}, s{sHS}, 14")
            a.e(f"s_add_u32 s{sT0}, s{sT0}, s{sT1}")
            a.e(f"s_lshl_b32 s{sT1}, s{sHpl}, 8")
            a.e(f"s_sub_u32 s{sT0}, s{sT0}, s{sT1}")
            a.e(f"v_lshlrev_b32 v{vT0}, 7, v{L}")
            for m in range(2):
                a.e(f"s_add_u32 s{sT1}, s{sT0}, {m*8192}")
                a.e(f"buffer_load_dword v{163+m}, v{vT0}, s[{sX}:{sX+3}], s{sT1} offen {OPT.get('WTFL', '')}")
        if not OPT.get("WTAT"): cls_block(2, touch)
    if FUSE:
        def init_check():
            a.c("request the group's start counter now; the loader waves look at it before they read any hand-off word")
            a.e(f"s_lshl_b32 s{sT0}, s{sBeta}, 3")
            a.e(f"s_add_u32 s{sT0}, s{sT0}, s{sB}")
            a.e(f"s_lshl_b32 s{sT0}, s{sT0}, 2")
            if OPT.get("DBGT"): a.e(f"s_add_u32 s{sT0}, s{sT0}, 128")
            a.e(f"v_mov_b32 v{vT0}, s{sT0}")
            a.e(f"buffer_load_dword v166, v{vT0}, s[{sDbg}:{sDbg+3}], 0 offen sc1")
        cls_block(4, init_check)
    entry_state = list(a.lg)
    a.e(f"s_mov_b32 s{sCnt}, 1")
    a.e(f"s_add_u32 s{sTile}, s{sRot}, {LAT*8192}")
    a.e(f"s_and_b32 s{sTile}, s{sTile}, 0x1ffff")
    a.e(f"s_mov_b32 s{sRegD}, {(LAT % 5)*R}")
    a.e(f"s_mov_b32 s{sReg}, 0")
    a.e(f"s_mov_b32 s{sRegN}, {R}")
    a.e(f"s_cmp_lt_u32 s{sW}, 4")
    a.e(f"s_cbranch_scc0 {name}_aloop1")
    for var in range(2):
        a.lg = list(entry_state)
        a.lab(f"{name}_aloop{var}")
        if var == 0:
            a.e(f"s_cmp_le_u32 s{sCnt}, {16 - LAT}")
            a.e(f"s_cbranch_scc0 {name}_atailw")
            a.e(f"s_waitcnt vmcnt({8*(LAT-2)})")
            a.lab(f"{name}_atailb")
        regs = (sReg, sRegN) + ((sRegD,) if var == 0 else ())
        def rot():
            for sr in regs:
                a.e(f"s_add_u32 s{sr}, s{sr}, {R}")
                a.e(f"s_cmp_eq_u32 s{sr}, {5*R}")
                a.e(f"s_cselect_b32 s{sr}, 0, s{sr}")
        if var == 0 and OPT.get("ROTPRE", True): rot()
        a.e("s_barrier")
        if not (var == 0 and OPT.get("ROTPRE", True)): rot()
        att_body(f"lp{var}", False, ("s", sReg), ("s", sRegN))
        if var == 0:
            a.e(f"s_add_u32 s{sTile}, s{sTile}, 8192")
            a.e(f"s_and_b32 s{sTile}, s{sTile}, 0x1ffff")
            a.e(f"s_cmp_le_u32 s{sCnt}, {15 - LAT}")
            a.e(f"s_cbranch_scc0 {name}_anofill")
            if not OPT.get("ANODMA"): kv_pieces(("s", sRegD), ("s", sTile), [0, 1, 2, 3])
            if FUSE:
                a.e(f"s_branch {name}_afilled")
                a.lab(f"{name}_anofill")
                a.e(f"s_cmp_eq_u32 s{sCnt}, 14")
                a.e(f"s_cbranch_scc1 {name}_afilled")
                a.e(f"s_branch {name}_awo")
                a.lab(f"{name}_afilled")
            else:
                a.lab(f"{name}_anofill")
        if var == 1 and FUSE and OPT.get("WTAT"):
            a.e(f"s_cmp_eq_u32 s{sCnt}, {OPT['WTAT']}")
            a.e(f"s_cbranch_scc1 {name}_wtl")
            a.lab(f"{name}_wtb")
        if var == 1 and PACE:
            a.e(f"s_cmp_eq_u32 s{sW}, 4")
            a.e(f"s_cbranch_scc1 {name}_pace")
            a.lab(f"{name}_paceb")
        assert a.lg == entry_state
        a.e(f"s_add_u32 s{sCnt}, s{sCnt}, 1")
        a.e(f"s_cmp_lt_u32 s{sCnt}, 15")
        a.e(f"s_cbranch_scc1 {name}_aloop{var}")
        if var == 0: a.e(f"s_branch {name}_alast")
    a.lab(f"{name}_alast")
    a.e("s_barrier")
    att_body("t15", False, (15 % 5)*R, None)
    if F0: stamp_nw(a, 15)
    stamp(a, 6)
    a.e(f"v_add_f32 v{vL0}, v{vL0}, v{vL1}")
    a.nop(1)
    a.e(f"v_mov_b32 v{vL1}, v{vL0}")
    a.nop(2)
    a.e(f"v_permlane32_swap_b32 v{vL0}, v{vL1}")
    a.nop(1)
    a.e(f"v_add_f32 v{vL0}, v{vL0}, v{vL1}")
    a.nop(1)
    a.e(f"v_rcp_f32 v{vL0}, v{vL0}")
    if OPT.get("FINEE"): stamp_nw(a, 10)
    a.nop(12)
    a.e(f"s_lshl_b32 s{sT0}, s{sQB}, 18")
    a.e(f"s_add_u32 s{sT1}, s{sH0}, s{sHS}")
    a.e(f"s_lshl_b32 s{sT1}, s{sT1}, 13")
    a.e(f"s_add_u32 s{sT0}, s{sT0}, s{sT1}")
    if FUSE:
        a.e(f"s_mul_i32 s{sT2}, s{sHS}, 10240")
        a.e(f"s_lshl_b32 s{sT3}, s{sQB}, 11")
        a.e(f"s_add_u32 s{sT2}, s{sT2}, s{sT3}")
        a.e(f"s_add_u32 s{sT2}, s{sT2}, {OSLOT0}")
        a.e(f"v_add_u32 v{vT0}, s{sT2}, v{vOst}")
    for fr in range(8):
        for r in range(4):
            q_ = vO + 8*fr + 2*r
            a.e(f"v_pk_mul_f32 v[{q_}:{q_+1}], v[{q_}:{q_+1}], v[{vL0}:{vL0+1}] op_sel_hi:[1,0]")
        for r in range(4):
            a.e(f"v_cvt_pk_bf16_f32 v{vQ+4*fr+r}, v{vO+8*fr+2*r}, v{vO+8*fr+2*r+1}")
        a.e(f"s_add_u32 s{sT1}, s{sT0}, {fr*1024}")
        a.e(f"buffer_store_dwordx4 v[{vQ+4*fr}:{vQ+4*fr+3}], v{vOst}, s[{sO}:{sO+3}], s{sT1} offen{(' ' + OPT.get('OST', 'sc1')) if FUSE else ''}")
        if FUSE and not OPT.get("STFIRST", True):
            a.e(f"ds_write_b128 v{vT0}, v[{vQ+4*fr}:{vQ+4*fr+3}] offset:{(fr >> 1)*20480 + (fr & 1)*1024}")
    if FUSE and OPT.get("STFIRST", True):
        for fr in range(8):
            a.e(f"ds_write_b128 v{vT0}, v[{vQ+4*fr}:{vQ+4*fr+3}] offset:{(fr >> 1)*20480 + (fr & 1)*1024}")
    if OPT.get("FINEE"): stamp_nw(a, 11)
    if FUSE:
        import tail
        tail.gen_tail(a, name, locals())
    else:
        a.e("s_waitcnt vmcnt(0)")
    stamp(a, 7); stamp_rt(a, 8)
    if OPT.get("DBGT") and C.PROF:
        a.e(f"s_cmp_eq_u32 s{sW}, 8")
        a.e(f"s_cbranch_scc0 {name}_nodbgt")
        a.e("s_mov_b64 exec, 1")
        for j, i in enumerate((3, 4, 5, 6, 10, 11, 12, 13, 14, 15, 7)):
            a.e(f"s_sub_u32 s{sT0}, s{64+2*i}, s66")
            a.e(f"s_lshr_b32 s{sT0}, s{sT0}, 4")
            a.e(f"v_mov_b32 v2, s{sT0}")
            a.e(f"v_mov_b32 v3, {4*j}")
            a.e(f"buffer_atomic_umax v2, v3, s[{sDbg}:{sDbg+3}], 0 offen sc1")
        a.e(f"s_not_b32 s{sT0}, s64")
        a.e(f"v_mov_b32 v2, s{sT0}")
        a.e(f"v_mov_b32 v3, 56")
        a.e(f"buffer_atomic_umax v2, v3, s[{sDbg}:{sDbg+3}], 0 offen sc1")
        a.e(f"v_mov_b32 v2, s80")
        a.e(f"v_mov_b32 v3, 60")
        a.e(f"buffer_atomic_umax v2, v3, s[{sDbg}:{sDbg+3}], 0 offen sc1")
        a.e("s_cmp_eq_u32 s2, 0")
        a.e(f"s_cbranch_scc0 {name}_nodbg0")
        a.e(f"s_sub_u32 s{sT0}, s80, s64")
        a.e(f"v_mov_b32 v2, s{sT0}")
        a.e(f"v_mov_b32 v3, 44")
        a.e(f"buffer_store_dword v2, v3, s[{sDbg}:{sDbg+3}], 0 offen sc1")
        a.e(f"s_sub_u32 s{sT0}, s78, s66")
        a.e(f"s_lshr_b32 s{sT0}, s{sT0}, 4")
        a.e(f"v_mov_b32 v2, s{sT0}")
        a.e(f"v_mov_b32 v3, 48")
        a.e(f"buffer_store_dword v2, v3, s[{sDbg}:{sDbg+3}], 0 offen sc1")
        a.lab(f"{name}_nodbg0")
        a.e("s_waitcnt vmcnt(0)")
        a.e("s_mov_b64 exec, -1")
        a.lab(f"{name}_nodbgt")
    stamp_store(a, sWS, sW, 16, 0, vT0)
    a.e(f"s_branch {name}_end")
    WNT = "nt " if OPT["WNT"] else ""
    def wo_stage_c0(sg):
        a.e(f"s_lshl_b32 s{sT0}, s{sH0}, 17")
        a.e(f"s_lshl_b32 s{sT1}, s{sL1024}, 2")
        a.e(f"s_add_u32 s{sT0}, s{sT0}, s{sT1}")
        for kh in (0, 1):
            for nn in (0, 4):
                a.e(f"s_add_u32 m0, s{sL1024}, {WSLOT[sg] + kh*8192 + nn*1024}")
                a.e(f"s_add_u32 s{sT3}, s{sT0}, {kh*131072 + sg*32768 + nn*4096}")
                a.e(f"buffer_load_dwordx4 v{vDW}, s[{sX}:{sX+3}], s{sT3} offen {WNT}lds")
    if FUSE:
        a.lab(f"{name}_awo")
        if LAT == 4:
            a.e(f"s_cmp_eq_u32 s{sCnt}, 12")
            a.e(f"s_cbranch_scc0 {name}_awo13")
            wo_stage_c0(0); wo_stage_c0(1)
            a.e(f"s_branch {name}_afilled")
            a.lab(f"{name}_awo13")
            wo_stage_c0(2)
        else:
            assert LAT == 3
            wo_stage_c0(0); wo_stage_c0(1); wo_stage_c0(2)
        a.e(f"s_branch {name}_afilled")
    if FUSE and OPT.get("WTAT"):
        a.lab(f"{name}_wtl")
        cls_block(2, touch)
        a.e(f"s_branch {name}_wtb")
    if PACE:
        CP, D = PACE
        a.lab(f"{name}_pace")
        a.c("keep the workgroups that share the memory system in step: publish the step count, wait if a partner on another XCD lags")
        a.e(f"s_add_u32 s{sT0}, s{sCnt}, 1")
        a.e(f"v_mov_b32 v166, s{sT0}")
        a.e(f"s_lshl_b32 s{sT1}, s2, 8")
        a.e(f"s_add_u32 s{sT1}, s{sT1}, 64")
        a.e("s_mov_b64 exec, 1")
        a.e(f"buffer_store_dword v166, off, s[{sWQ}:{sWQ+3}], s{sT1} sc1")
        a.e("s_mov_b64 exec, 0xff")
        for c in CP:
            lab = newlab("pc")
            a.e(f"s_cmp_eq_u32 s{sCnt}, {c - 3}")
            a.e(f"s_cbranch_scc0 {lab}")
            a.e(f"buffer_load_dword v167, v165, s[{sWQ}:{sWQ+3}], 0 offen sc1")
            a.e(f"s_branch {name}_pacex")
            a.lab(lab)
            lab = newlab("pc")
            a.e(f"s_cmp_eq_u32 s{sCnt}, {c}")
            a.e(f"s_cbranch_scc0 {lab}")
            a.e("s_waitcnt vmcnt(3)")
            a.e(f"v_cmp_gt_u32 vcc, {max(0, c - 2 - D)}, v167")
            a.e("s_nop 4")
            a.e(f"s_cbranch_vccz {name}_pacex")
            a.e(f"s_mov_b32 s{sT2}, {OPT['SPIN']}")
            l2 = newlab("pw")
            a.lab(l2)
            a.e(f"buffer_load_dword v167, v165, s[{sWQ}:{sWQ+3}], 0 offen sc1")
            a.e("s_waitcnt vmcnt(0)")
            a.e(f"v_cmp_gt_u32 vcc, {max(0, c - D)}, v167")
            a.e("s_nop 4")
            a.e(f"s_cbranch_vccz {name}_pacex")
            a.e(f"s_sub_u32 s{sT2}, s{sT2}, 1")
            a.e(f"s_cmp_lg_u32 s{sT2}, 0")
            a.e(f"s_cbranch_scc1 {l2}")
            a.e(f"s_branch {name}_pacex")
            a.lab(lab)
        a.lab(f"{name}_pacex")
        a.e("s_mov_b64 exec, -1")
        a.e(f"s_branch {name}_paceb")
    a.lab(f"{name}_atailw")
    for k in range(LAT - 2):
        t = 17 - LAT + k
        if k < LAT - 3:
            lab = newlab("tw")
            a.e(f"s_cmp_eq_u32 s{sCnt}, {t}")
            a.e(f"s_cbranch_scc0 {lab}")
        extra = ({13: 8, 14: 12}[t] if FUSE else 0)
        a.e(f"s_waitcnt vmcnt({8*(15 - (t + 1)) + extra})")
        a.e(f"s_branch {name}_atailb")
        if k < LAT - 3: a.lab(lab)
    for tag in ["lp0", "lp1", "t15"]:
        rare(tag)
    a.lab(f"{name}_end")
    a.e("s_endpgm")
    return a.text(), NV
```

```python
from dsl import *
import common as C
from common import srd, stamp, stamp_nw, stamp_rt, stamp_store, f2u, QSCALE

OPT = dict(QNT=False, ROT=2, LAT=4, PRIO=(1, 0, 1), FUSE=True, WNT=True, SPIN=1 << 16, CTOUCH=2, WTAT=13, QNT0=0, KVI0=2, TROT=(1, 2), RPG=(4, 4), EPI='pipe', OUTST='nt',
           QW=([], [0, 1, 2, 3], [], [4, 5, 6, 7], []), QX=([], [0, 1], [], [2, 3, 4], []), QLATE=(0, 0, 0, 0, 0))

def gen_k1(name):
    a = Asm()
    QNT = OPT["QNT"]; LAT = OPT["LAT"]; NQ = OPT.get("NQ", 3)
    QW, QX = OPT["QW"], OPT["QX"]
    NC = 5
    QLATE = OPT["QLATE"]
    QN = [len(QW[c]) + len(QX[c]) for c in range(NC)]
    sKc = 3
    sX, sWQ, sK, sV, sO = 8, 12, 16, 20, 24
    sW, sHS, sQB, sHsW = 28, 29, 30, 31
    sL1024 = 32
    sReg, sRegD = 33, 34
    sT0, sT1, sT2, sT3 = 35, 36, 37, 38
    sCnt = 39
    sHs8k, sTile, sHsX, sHsXl = 40, 41, 42, 43
    sH0, sBeta, sB, sRegN = 44, 45, 46, 47
    sPtr = 48
    sWS = 56
    sCls, sBufA, sBufB = 30, 59, 61
    sKVs, sKVl = 4, 5
    sRot, sTo = 58, 60
    TROT = OPT.get('TROT', 0)
    FUSE = OPT["FUSE"]
    sPOut, sPWo, sDbg, sHpl = 6, 62, 96, 100
    WS_F = C.WS_BASE + (33 << 20)
    WSLOT = [32768, 49152, 65536, 0]
    OSLOT0 = 81920
    vO, vQ, vS, vNM, vF = 0, 64, 96, 112, 128
    vA = 144
    vA0K, vA0V, vL0, vL1, vMX, vMX2 = 148, 149, 150, 151, 152, 153
    vT0, vT1 = 154, 155
    vDK, vDV, vDX, vDW, vXB, vOst = 156, 157, 158, 159, 160, 161
    vLane = 162
    NV = 168
    R = 32768
    L = vLane
    uid = [0]
    def newlab(p):
        uid[0] += 1
        return f"{name}_{p}{uid[0]}"

    a.raw(f".globl {name}\n.p2align 8\n.type {name},@function\n{name}:")
    a.e("s_cmp_ge_u32 s2, 256")
    a.e(f"s_cbranch_scc1 {name}_end")
    stamp_rt(a, 0); stamp(a, 1)
    a.e(f"s_load_dwordx2 s[{sWS}:{sWS+1}], s[0:1], 96")
    if FUSE:
        a.e(f"s_load_dwordx2 s[{sPOut}:{sPOut+1}], s[0:1], 80")
        a.e(f"s_load_dwordx2 s[{sDbg}:{sDbg+1}], s[0:1], 88")
    a.e(f"s_and_b32 s{sT0}, s2, 7")
    a.e(f"s_lshr_b32 s{sT1}, s2, 3")
    a.e(f"s_lshr_b32 s{sBeta}, s{sT0}, 2")
    a.e(f"s_mul_i32 s{sT2}, s{sBeta}, 40")
    a.e(f"s_add_u32 s0, s0, s{sT2}")
    a.e(f"s_addc_u32 s1, s1, 0")
    a.e(f"s_load_dwordx8 s[{sPtr}:{sPtr+7}], s[0:1], 0")
    if FUSE: a.e(f"s_load_dwordx2 s[{sPWo}:{sPWo+1}], s[0:1], 32")
    a.e(f"s_and_b32 s{sT0}, s{sT0}, 3")
    a.e(f"s_lshr_b32 s{sB}, s{sT1}, 2")
    a.e(f"s_and_b32 s{sT1}, s{sT1}, 3")
    a.e(f"s_mov_b32 s{sHpl}, s{sT1}")
    a.e(f"s_lshl_b32 s{sT0}, s{sT0}, 2")
    a.e(f"s_add_u32 s{sH0}, s{sT0}, s{sT1}")
    a.e(f"s_lshl_b32 s{sH0}, s{sH0}, 1")
    a.e(f"v_lshrrev_b32 v1, 6, v0")
    a.e(f"v_and_b32 v{L}, 63, v0")
    a.e(f"v_readfirstlane_b32 s{sW}, v1")
    a.e(f"s_and_b32 s{sHS}, s{sW}, 1")
    a.e(f"s_lshr_b32 s{sQB}, s{sW}, 1")
    a.e(f"s_and_b32 s{sT0}, s{sW}, 3")
    a.e(f"s_lshl_b32 s{sL1024}, s{sT0}, 10")
    if OPT.get("CTOUCH"):
        a.c("waves 8, 9 of the first workgroups of an XCD group pull the kernel's own code into L2 (one dword per 128-byte line)")
        a.e(f"s_cmp_lt_u32 s{sW}, 8")
        a.e(f"s_cbranch_scc1 {name}_noct")
        a.e(f"s_lshr_b32 s{sT1}, s2, 3")
        a.e(f"s_cmp_ge_u32 s{sT1}, {OPT['CTOUCH']}")
        a.e(f"s_cbranch_scc1 {name}_noct")
        a.e(f"s_getpc_b64 s[60:61]")
        a.lab(f"{name}_pc")
        a.e(f"s_lshl_b32 s{sT1}, s{sT1}, 1")
        a.e(f"s_add_u32 s{sT1}, s{sT1}, s{sHS}")
        a.e(f"s_lshl_b32 s{sT1}, s{sT1}, 13")
        a.e(f"v_lshlrev_b32 v2, 7, v{L}")
        a.e(f"v_add_u32 v2, s{sT1}, v2")
        a.e(f"s_mov_b32 s{sT1}, {name}_end-{name}_pc")
        a.e(f"v_cmp_gt_u32 vcc, s{sT1}, v2")
        a.e(f"s_and_saveexec_b64 s[{sT2}:{sT2+1}], vcc") if False else None
        a.e(f"s_and_saveexec_b64 s[4:5], vcc")
        a.e(f"s_cbranch_execz {name}_ct2")
        a.e(f"global_load_dword v165, v2, s[60:61]")
        a.lab(f"{name}_ct2")
        a.e(f"s_mov_b64 exec, -1")
        a.lab(f"{name}_noct")
    a.e(f"""
    v_lshrrev_b32 v2, 4, v{L}            ; i>>4
    v_lshlrev_b32 v3, 2, v2
    v_and_b32 v4, 15, v{L}
    v_xor_b32 v3, v3, v4
    v_lshlrev_b32 v3, 4, v3
    v_lshl_add_u32 v{vDV}, v2, 8, v3     ; V: (i>>4)*256 + swz*16
    v_lshl_add_u32 v{vDW}, v2, 13, v3
    v_and_b32 v2, 3, v2                  ; (i>>4)&3
    v_and_b32 v4, 3, v{L}
    v_xor_b32 v2, v2, v4
    v_lshlrev_b32 v2, 4, v2
    v_lshrrev_b32 v3, 2, v{L}
    v_lshl_add_u32 v{vDX}, v3, 10, v2    ; x: (i>>2)*1024 + swz*16
    s_lshl_b32 s{sT1}, s{sT0}, 3
    v_lshrrev_b32 v2, 3, v{L}            ; i>>3
    v_add_u32 v2, s{sT1}, v2             ; row = 8l + (i>>3)
    v_bfe_u32 v3, v2, 1, 3
    v_and_b32 v4, 7, v{L}
    v_xor_b32 v3, v3, v4
    v_lshlrev_b32 v3, 4, v3
    v_lshl_add_u32 v{vDK}, v2, 8, v3
    s_lshl_b32 s{sHs8k}, s{sHS}, 13
    s_lshl_b32 s{sHsW}, s{sHS}, 8
    s_mul_i32 s{sHsX}, s{sHS}, 81920
    s_mul_i32 s{sHsXl}, s{sHS}, 5120
    s_mul_i32 s{sKc}, s{sB}, {OPT["ROT"]}
    s_mul_i32 s{sT1}, s{sHpl}, {OPT.get("ROTH", 0)}
    s_add_u32 s{sKc}, s{sKc}, s{sT1}
    s_and_b32 s{sKc}, s{sKc}, 15
    """)
    if TROT:
        a.e(f"s_lshr_b32 s{sRot}, s2, 3")
        a.e(f"s_and_b32 s{sT1}, s2, 7")
        a.e(f"s_mul_i32 s{sT1}, s{sT1}, {TROT[1]}")
        a.e(f"s_mul_i32 s{sRot}, s{sRot}, {TROT[0]}")
        a.e(f"s_add_u32 s{sRot}, s{sRot}, s{sT1}")
        a.e(f"s_and_b32 s{sRot}, s{sRot}, 15")
        a.e(f"s_lshl_b32 s{sRot}, s{sRot}, 13")
    else:
        a.e(f"s_mov_b32 s{sRot}, 0")
    a.e("s_waitcnt lgkmcnt(0)")
    if FUSE:
        a.e(f"s_mov_b32 s{sDbg+2}, 256")
        a.e(f"s_mov_b32 s{sDbg+3}, 0x00020000")
        a.e(f"s_cmp_eq_u32 s{sW}, 0")
        a.e(f"s_cbranch_scc0 {name}_noinit")
        a.c("wave 0 clears this workgroup's two hand-off words, then counts the workgroup into its group")
        a.e(f"s_mov_b32 s{sT0}, {WS_F}")
        srd(a, sX, sWS, 65536, sT0)
        a.e(f"s_lshl_b32 s{sT0}, s2, 8")
        a.e(f"v_lshlrev_b32 v2, 6, v{L}")
        a.e(f"v_add_u32 v2, s{sT0}, v2")
        a.e(f"v_mov_b32 v3, 0")
        a.e(f"s_mov_b64 exec, 15")
        a.e(f"buffer_store_dword v3, v2, s[{sX}:{sX+3}], 0 offen sc1")
        a.e(f"s_waitcnt vmcnt(0)")
        a.e(f"s_lshl_b32 s{sT0}, s{sBeta}, 3")
        a.e(f"s_add_u32 s{sT0}, s{sT0}, s{sB}")
        a.e(f"s_lshl_b32 s{sT0}, s{sT0}, 2")
        if OPT.get("DBGT"): a.e(f"s_add_u32 s{sT0}, s{sT0}, 128")
        a.e(f"s_mov_b64 exec, 1")
        a.e(f"v_mov_b32 v2, s{sT0}")
        a.e(f"v_mov_b32 v3, 1")
        a.e(f"buffer_atomic_add v3, v2, s[{sDbg}:{sDbg+3}], 0 offen sc1")
        a.e(f"s_mov_b64 exec, -1")
        a.lab(f"{name}_noinit")
    a.e(f"s_mul_i32 s{sT0}, s{sB}, 163840")
    srd(a, sX, sPtr+0, 163840, sT0)
    a.e(f"s_lshl_b32 s{sT0}, s{sH0}, 8")
    srd(a, sWQ, sPtr+6, 0, sT0)
    a.e(f"s_sub_u32 s{sWQ+2}, 4194304, s{sT0}")
    a.e(f"s_lshl_b32 s{sT0}, s{sB}, 5")
    a.e(f"s_add_u32 s{sT0}, s{sT0}, s{sH0}")
    a.e(f"s_lshl_b32 s{sT0}, s{sT0}, 17")
    srd(a, sK, sPtr+2, 262144, sT0)
    srd(a, sV, sPtr+4, 262144, sT0)
    a.e(f"s_lshl_b32 s{sT0}, s{sBeta}, 3")
    a.e(f"s_add_u32 s{sT0}, s{sT0}, s{sB}")
    a.e(f"s_mul_i32 s{sT0}, s{sT0}, 1310720")
    if C.WS_O: a.e(f"s_add_u32 s{sT0}, s{sT0}, {C.WS_O}")
    srd(a, sO, sWS, 1310720, sT0)

    def sadd(dst, base, imm):
        if isinstance(base, tuple): a.e(f"s_add_u32 {dst}, s{base[1]}, {imm}")
        else: a.e(f"s_mov_b32 {dst}, {base + imm}")
    def sadds(dst, base, sreg):
        if isinstance(base, tuple): a.e(f"s_add_u32 {dst}, s{base[1]}, s{sreg}")
        else: a.e(f"s_add_u32 {dst}, s{sreg}, {base}")
    def vadd(dst, base, imm, vreg):
        if isinstance(base, tuple):
            if imm:
                a.e(f"s_add_u32 s{sT2}, s{base[1]}, {imm & 0xffffffff}")
                a.e(f"v_add_u32 v{dst}, s{sT2}, v{vreg}")
            else: a.e(f"v_add_u32 v{dst}, s{base[1]}, v{vreg}")
        else: a.e(f"v_add_u32 v{dst}, {base + imm}, v{vreg}")
    def dma(voff, sr, m0base, m0imm, sbase, simm, nt):
        if sr == sK and not OPT.get("KNT", True): nt = False
        if sr == sV and not OPT.get("VNT", True): nt = False
        a.e(f"s_add_u32 m0, s{m0base}, {m0imm}")
        a.e(f"s_add_u32 s{sT3}, s{sbase}, {simm}")
        a.e(f"buffer_load_dwordx4 v{voff}, s[{sr}:{sr+3}], s{sT3} offen {'nt ' if nt else ''}lds")
    def cls_block(c, body):
        lab = newlab(f"c{c}_")
        a.e(f"s_cmp_eq_u32 s{sCls}, {c}")
        a.e(f"s_cbranch_scc0 {lab}")
        body()
        a.lab(lab)

    def lo4_block(body):
        lab = newlab("lo4_")
        a.e(f"s_cmp_lt_u32 s{sW}, 4")
        a.e(f"s_cbranch_scc0 {lab}")
        body()
        a.lab(lab)
    def kv_pieces(region, tile_off, parts):
        if isinstance(tile_off, int):
            a.e(f"s_add_u32 s{sTo}, s{sRot}, {tile_off}")
            a.e(f"s_and_b32 s{sTo}, s{sTo}, 0x1ffff")
            tile_off = ("s", sTo)
        sadds(f"s{sT0}", region, sL1024)
        sadds(f"s{sT1}", tile_off, sL1024)
        sadd(f"s{sT2}", tile_off, 0)
        for p in parts:
            hs2 = p & 1
            if p < 2:
                for half in (0, 1):
                    dma(vDK, sK, sT0, hs2*8192 + half*4096, sT2, hs2*131072 + half*128, True)
            else:
                for nn in (0, 4):
                    dma(vDV, sV, sT0, 16384 + hs2*8192 + nn*1024, sT1, hs2*131072 + nn*1024, True)
    def q_pieces(c, buf, nt0=None):
        wnt = OPT.get("WQNT", QNT) if nt0 is None else nt0
        xnt = OPT.get("XNT", QNT) if nt0 is None else nt0
        if QW[c]:
            a.e(f"s_lshl_b32 s{sT0}, s{sKc}, 18")
            a.e(f"s_add_u32 s{sT0}, s{sT0}, s{sHsW}")
            sadds(f"s{sT1}", buf, sHs8k)
            for n in QW[c]:
                dma(vDW, sWQ, sT1, 10240 + n*1024, sT0, n*32768, wnt)
        if QX[c]:
            a.e(f"s_lshl_b32 s{sT0}, s{sKc}, 6")
            a.e(f"s_add_u32 s{sT0}, s{sT0}, s{sHsX}")
            sadds(f"s{sT1}", buf, sHsXl)
            for m in QX[c]:
                dma(vDX, sX, sT1, m*1024, sT0, m*16384, xnt)
    def kc_next():
        a.e(f"s_add_u32 s{sKc}, s{sKc}, 1")
        a.e(f"s_and_b32 s{sKc}, s{sKc}, 15")

    if NQ == 3:
        QB = [2*R, 3*R, 4*R]; qbuf = lambda sg: QB[(sg + 2) % 3]; QSTR = R
    else:
        QB = [57344 + 26624*i for i in range(4)]; qbuf = lambda sg: QB[sg % 4]; QSTR = 26624
    QSET = [dict(B=(96, 100), A=104), dict(B=(136, 140), A=64)]
    def q_reads(par, buf):
        st = QSET[par]
        vadd(vA, buf, -6144, vA0V)
        vadd(vT0, buf, 0, vXB)
        a.e(f"v_xor_b32 v{vA+1}, 64, v{vA}")
        a.e(f"v_xor_b32 v{vA+2}, 128, v{vA}")
        a.e(f"v_xor_b32 v{vA+3}, 192, v{vA}")
        a.e(f"v_xor_b32 v{vT1}, 32, v{vT0}")
        L_ = []
        for sx in range(2):
            b = st["B"][sx]
            L_.append(f"ds_read_b128 v[{b}:{b+3}], v{vT0 if sx == 0 else vT1}")
            for t in range(4):
                d = st["A"] + (sx*4 + t)*4
                L_.append(f"ds_read_b64_tr_b16 v[{d}:{d+1}], v{vA+t} offset:{sx*4096}")
                L_.append(f"ds_read_b64_tr_b16 v[{d+2}:{d+3}], v{vA+t} offset:{sx*4096+1024}")
        return L_
    def q_mfmas(par, rd, fq=False):
        st = QSET[par]; nrd = 0
        for i in range(8):
            sx, t = i >> 2, i & 3
            d = st["A"] + (sx*4 + t)*4
            b = st["B"][sx]
            a.e(f"v_mfma_f32_32x32x16_bf16 v[{vO+16*t}:{vO+16*t+15}], v[{d}:{d+3}], v[{b}:{b+3}], v[{vO+16*t}:{vO+16*t+15}]")
            if rd:
                if nrd >= 12: a.e("s_waitcnt lgkmcnt(9)")
                for _ in range(3):
                    if rd: a.e(rd.pop(0)); nrd += 1
            if fq and (i & 1): stamp_nw(a, 11 + (i >> 1))

    def lane_addresses():
        a.e(f"""
        v_lshrrev_b32 v1, 5, v{L}            ; h
        v_bfe_u32 v2, v{L}, 2, 2             ; r
        v_lshl_add_u32 v3, v1, 3, v2         ; 8h+r
        v_lshlrev_b32 v3, 8, v3
        v_lshl_add_u32 v3, v2, 6, v3         ; + r*64
        v_bfe_u32 v4, v{L}, 4, 1
        v_lshl_add_u32 v3, v4, 5, v3         ; + g*32
        v_and_b32 v4, 1, v{L}
        v_lshl_add_u32 v3, v4, 4, v3         ; + c0*16
        v_bfe_u32 v4, v{L}, 1, 1
        v_lshl_add_u32 v3, v4, 3, v3         ; + c1*8
        s_add_u32 s{sT1}, s{sHs8k}, 16384
        v_add_u32 v{vA0V}, s{sT1}, v3
        v_and_b32 v2, 0x13, v{L}
        v_and_b32 v3, 4, v{L}
        v_lshl_or_b32 v2, v3, 1, v2
        v_and_b32 v3, 8, v{L}
        v_lshrrev_b32 v3, 1, v3
        v_or_b32 v2, v2, v3                  ; rho
        v_bfe_u32 v3, v2, 1, 3
        v_xor_b32 v3, v3, v1
        v_lshlrev_b32 v3, 4, v3
        v_lshl_add_u32 v3, v2, 7, v3
        v_add_u32 v{vA0K}, s{sHs8k}, v3
        v_and_b32 v2, 31, v{L}
        v_bfe_u32 v3, v{L}, 2, 2
        v_xor_b32 v3, v3, v1
        v_lshlrev_b32 v3, 4, v3
        v_lshl_add_u32 v3, v2, 6, v3
        s_lshl_b32 s{sT0}, s{sQB}, 11
        v_add_u32 v{vXB}, s{sT0}, v3
        v_lshlrev_b32 v{vOst}, 4, v{L}
        """)

    seq = []
    def push(key, n4): seq.append((key, list(n4)))
    def wait_for(key):
        idx = max(i for i, e in enumerate(seq) if e[0] == key)
        for c in range(NC):
            if not any(e[0] == key and e[1][c] for e in seq): continue
            n = min(63, sum(e[1][c] for e in seq[idx+1:]))
            cls_block(c, lambda n=n: a.e(f"s_waitcnt vmcnt({n})"))

    for c in range(1, NC):
        a.e(f"s_cmp_eq_u32 s{sCls}, {c}")
        a.e(f"s_cbranch_scc1 {name}_cls{c}")
    for c in range(NC):
        a.lab(f"{name}_cls{c}")
        for sg in range(NQ):
            q_pieces(c, qbuf(sg), True if sg < OPT.get("QNT0", 0) else None); kc_next()
        if OPT.get("QTOUCH") and c in (2, 4):
            a.c("pull this workgroup's share of the XCD group's x / Wq lines into L2 (one dword per 128-byte line)")
            if c == 2:
                a.e(f"s_mul_i32 s{sT0}, s{sHpl}, 40960")
                a.e(f"s_mul_i32 s{sT1}, s{sHS}, 20480")
                a.e(f"s_add_u32 s{sT0}, s{sT0}, s{sT1}")
                a.e(f"v_lshlrev_b32 v5, 7, v{L}")
                for m in range(3):
                    a.e(f"s_add_u32 s{sT1}, s{sT0}, {m*8192}")
                    if m == 2: a.e("s_mov_b64 exec, 0xffffffff")
                    a.e(f"buffer_load_dword v{163+m}, v5, s[{sX}:{sX+3}], s{sT1} offen {OPT.get('QTFL', '')}")
                a.e("s_mov_b64 exec, -1")
            else:
                a.e(f"s_lshl_b32 s{sT0}, s{sB}, 19")
                a.e(f"s_lshl_b32 s{sT1}, s{sHS}, 18")
                a.e(f"s_add_u32 s{sT0}, s{sT0}, s{sT1}")
                a.e(f"v_lshrrev_b32 v5, 2, v{L}")
                a.e(f"v_lshlrev_b32 v5, 13, v5")
                a.e(f"v_and_b32 v6, 3, v{L}")
                a.e(f"v_lshl_add_u32 v5, v6, 7, v5")
                for m in range(2):
                    a.e(f"s_add_u32 s{sT1}, s{sT0}, {m*16*8192}")
                    a.e(f"buffer_load_dword v{163+m}, v5, s[{sWQ}:{sWQ+3}], s{sT1} offen {OPT.get('QTFL', '')}")
        if FUSE and OPT.get("PTOUCH") and c == 4:
            a.c("address-translation warm-up: one dword from each 64 KiB of the workspace / output areas this workgroup uses later")
            st = OPT["PTOUCH"]
            srd(a, 64 if False else 92, sWS, 0x10000000) if False else None
            a.e(f"v_lshlrev_b32 v5, 16, v{L}")
            a.e(f"s_mov_b64 exec, 0xfffff")
            a.e(f"buffer_load_dword v166, v5, s[{sO}:{sO+3}], 0 offen")
            a.e(f"s_mov_b64 exec, -1")
            a.e(f"s_lshl_b32 s{sT0}, s{sBeta}, 3")
            a.e(f"s_add_u32 s{sT0}, s{sT0}, s{sB}")
            a.e(f"s_lshl_b32 s{sT0}, s{sT0}, 2")
            a.e(f"s_add_u32 s{sT0}, s{sT0}, s{sHpl}")
            a.e(f"s_mul_i32 s{sT0}, s{sT0}, 40960")
            a.e(f"s_add_u32 s{sT0}, s{sT0}, {C.WS_P}")
            a.e(f"v_mul_u32_u24 v5, {64*40960 >> 8}, v{L}")
            a.e(f"v_lshlrev_b32 v5, 8, v5")
            a.e(f"v_add_u32 v5, s{sT0}, v5")
            a.e(f"v_mov_b32 v6, {WS_F}")
            a.e(f"v_cmp_eq_u32 vcc, 4, v{L}")
            a.e(f"s_nop 1")
            a.e(f"v_cndmask_b32 v5, v5, v6, vcc")
            a.e(f"s_mov_b64 exec, 31")
            a.e(f"global_load_dword v167, v5, s[{sWS}:{sWS+1}]")
            a.e(f"s_mul_i32 s{sT0}, s{sB}, {160*2048}")
            a.e(f"v_lshlrev_b32 v5, 16, v{L}")
            a.e(f"v_add_u32 v5, s{sT0}, v5")
            a.e(f"s_mov_b64 exec, 31")
            a.e(f"global_load_dword v165, v5, s[{sPOut}:{sPOut+1}]")
            a.e(f"s_mov_b64 exec, -1")
        stamp(a, 2)
        lane_addresses()
        for r in range(64): a.e(f"v_mov_b32 v{vO+r}, 0")
        if QN[c]: a.e(f"s_waitcnt vmcnt({(NQ-1)*QN[c]})")
        a.e("s_barrier")
        rd = q_reads(0, qbuf(0))
        for i, r_ in enumerate(rd):
            if i == 14: a.e("s_waitcnt lgkmcnt(8)")
            a.e(r_)
        a.e("s_waitcnt lgkmcnt(0)")
        stamp(a, 3)
        a.e(f"s_mov_b32 s{sBufA}, {qbuf(0)}")
        a.e(f"s_mov_b32 s{sBufB}, {qbuf(1)}")
        a.e(f"s_mov_b32 s{sCnt}, 0")
        a.e(f"s_mov_b32 s{sKVs}, s{sRot}")
        a.e(f"s_mov_b32 s{sKVl}, 0")
        a.lab(f"{name}_ql{c}")
        for par in range(2):
            if QN[c]: a.e(f"s_waitcnt vmcnt({(NQ-2)*QN[c]})")
            a.e("s_barrier")
            fq = OPT.get("FINEQ") and par == 0
            if fq: stamp_nw(a, 10)
            if OPT.get("FINEQ") and par == 1: stamp_nw(a, 15)
            rd = q_reads(1 - par, ("s", sBufB))
            if QN[c] and not QLATE[c]: q_pieces(c, ("s", sBufA))
            q_mfmas(par, rd, fq)
            if QN[c] and QLATE[c]: q_pieces(c, ("s", sBufA))
            kc_next()
            a.e(f"s_mov_b32 s{sBufA}, s{sBufB}")
            a.e(f"s_add_u32 s{sBufB}, s{sBufB}, {QSTR}")
            a.e(f"s_cmp_eq_u32 s{sBufB}, {5*R}")
            a.e(f"s_cselect_b32 s{sBufB}, {QB[0]}, s{sBufB}")
            if c == 0:
                lab = newlab("nokv")
                KVI0 = OPT.get("KVI0", 0)
                if KVI0:
                    a.e(f"s_cmp_ge_u32 s{sCnt}, {KVI0}")
                    a.e(f"s_cbranch_scc0 {lab}")
                a.e(f"s_cmp_lt_u32 s{sCnt}, {KVI0 + (3 if (NQ == 4 and par == 1) else 4)}")
                a.e(f"s_cbranch_scc0 {lab}")
                a.e(f"s_add_u32 s{sT0}, s{sKVl}, s{sL1024}")
                if par == 0:
                    for n2 in (0, 2):
                        for half in (0, 1):
                            dma(vDK, sK, sT0, half*4096 + n2*1024, sKVs, half*128 + n2*2048, True)
                else:
                    a.e(f"s_add_u32 s{sT1}, s{sKVs}, s{sL1024}")
                    for nn in (0, 2, 4, 6):
                        dma(vDV, sV, sT0, 16384 + nn*1024, sT1, nn*1024, True)
                    a.e(f"s_add_u32 s{sT0}, s{sCnt}, {(1 - KVI0) & 0xffffffff}")
                    a.e(f"s_lshr_b32 s{sT1}, s{sT0}, 1")
                    a.e(f"s_and_b32 s{sT0}, s{sT0}, 1")
                    a.e(f"s_lshl_b32 s{sKVs}, s{sT1}, 13")
                    a.e(f"s_add_u32 s{sKVs}, s{sKVs}, s{sRot}")
                    a.e(f"s_and_b32 s{sKVs}, s{sKVs}, 0x1ffff")
                    a.e(f"s_lshl_b32 s{sT2}, s{sT0}, 17")
                    a.e(f"s_add_u32 s{sKVs}, s{sKVs}, s{sT2}")
                    a.e(f"s_lshl_b32 s{sKVl}, s{sT1}, 15")
                    a.e(f"s_lshl_b32 s{sT2}, s{sT0}, 13")
                    a.e(f"s_add_u32 s{sKVl}, s{sKVl}, s{sT2}")
                a.lab(lab)
            a.e("s_waitcnt lgkmcnt(0)")
        a.e(f"s_add_u32 s{sCnt}, s{sCnt}, 1")
        a.e(f"s_cmp_lt_u32 s{sCnt}, 6")
        a.e(f"s_cbranch_scc1 {name}_ql{c}")
        if c < NC - 1: a.e(f"s_branch {name}_qtail")
    a.lab(f"{name}_qtail")
    stamp(a, 9)
    for i in range(4): push(("kv", i >> 1), [4 if (NQ == 4 and i == 3) else 8, 0, 0, 0, 0])
    for sg in range(13, 12 + NQ): push(("q", sg), QN)
    def q_iter(sg, kv):
        rd = []
        if sg < 15: wait_for(("q", sg + 1))
        a.e("s_barrier")
        if OPT.get("FINEQ2"): stamp_nw(a, 10 + sg - 12)
        if sg < 15: rd = q_reads((sg + 1) & 1, qbuf(sg + 1))
        if sg + NQ < 16:
            for c in range(NC):
                if QN[c] and not QLATE[c]: cls_block(c, lambda c=c: q_pieces(c, qbuf(sg + NQ)))
        q_mfmas(sg & 1, rd)
        if sg + NQ < 16:
            for c in range(NC):
                if QN[c] and QLATE[c]: cls_block(c, lambda c=c: q_pieces(c, qbuf(sg + NQ)))
            push(("q", sg + NQ), QN)
        if NQ == 4 and sg == 12:
            def vlast():
                a.e(f"s_add_u32 s{sT0}, s{sL1024}, {R + 16384 + 8192}")
                a.e(f"s_add_u32 s{sT1}, s{sRot}, 8192")
                a.e(f"s_and_b32 s{sT1}, s{sT1}, 0x1ffff")
                a.e(f"s_add_u32 s{sT1}, s{sT1}, s{sL1024}")
                a.e(f"s_add_u32 s{sT1}, s{sT1}, 131072")
                for nn in (0, 2, 4, 6):
                    dma(vDV, sV, sT0, nn*1024, sT1, nn*1024, True)
            cls_block(0, vlast)
            push(("kv1v", 1), [4, 0, 0, 0, 0])
        if kv is not None:
            lo4_block(lambda: kv_pieces((kv % 5)*R, kv*8192, [0, 1, 2, 3]))
            push(("kv", kv), [8, 8, 0, 0, 0])
        a.e("s_waitcnt lgkmcnt(0)")
    T4LATE = OPT.get('T4LATE', True)
    q_iter(12, None); q_iter(13, 2); q_iter(14, 3); q_iter(15, 4 if (LAT == 4 and not T4LATE) else None)
    stamp(a, 4)
    if FUSE:
        a.e(f"s_lshl_b32 s{sT0}, s{sHpl}, 8")
        srd(a, sX, sPWo, 0, sT0)
        a.e(f"s_sub_u32 s{sX+2}, 4194304, s{sT0}")
        a.e(f"v_lshrrev_b32 v{vT0}, 4, v{L}")
        a.e(f"v_mul_u32_u24 v{vT0}, 768, v{vT0}")
        a.e(f"v_add_u32 v{vDW}, v{vT0}, v{vDV}")
    PACE = OPT.get("PACE") if FUSE else None
    if PACE:
        a.e(f"s_mov_b32 s{sT0}, {WS_F}")
        srd(a, sWQ, sWS, 65536, sT0)
        a.e(f"s_andn2_b32 s{sT0}, s2, 7")
        a.e(f"v_or_b32 v165, s{sT0}, v{L}")
        a.e(f"v_lshlrev_b32 v165, 8, v165")
        a.e(f"v_add_u32 v165, 64, v165")
    a.nop(12)
    a.e(f"s_mov_b32 s{sT0}, {hex(f2u(QSCALE))}")
    a.e(f"v_mov_b32 v{vMX}, s{sT0}")
    a.nop(1)
    if OPT.get("QPK", False):
        for r in range(32):
            a.e(f"v_pk_mul_f32 v[{vO+2*r}:{vO+2*r+1}], v[{vO+2*r}:{vO+2*r+1}], v[{vMX}:{vMX+1}] op_sel_hi:[1,0]")
    else:
        for r in range(64):
            a.e(f"v_mul_f32 v{vO+r}, s{sT0}, v{vO+r}")
    for r in range(32):
        a.e(f"v_cvt_pk_bf16_f32 v{vQ+r}, v{vO+2*r}, v{vO+2*r+1}")

    if OPT.get("FINEQ2"): stamp_nw(a, 14)
    F0 = OPT.get("FINE0")
    if F0: stamp_nw(a, 10)
    def k_addr(reg):
        vadd(vA, reg, 0, vA0K)
        a.e(f"v_xor_b32 v{vA+1}, 32, v{vA}")
        a.e(f"v_xor_b32 v{vA+2}, 64, v{vA}")
        a.e(f"v_xor_b32 v{vA+3}, 96, v{vA}")
    def rdK(j):
        f = vF + (j & 3)*4
        a.ds(f"ds_read_b128 v[{f}:{f+3}], v{vA+(j&3)} offset:{(j>>2)*4096}", ("K", j))
    def setprio(p):
        if p is not None: a.e(f"s_setprio {p}")
    S = lambda r: f"v{vS+r}"
    def att_body(tag, first, reg, regn):
        PQ, PS, PP = OPT["PRIO"]
        fine = False
        def rdV(sx, t):
            f = vF + t*4
            a.ds(f"ds_read_b64_tr_b16 v[{f}:{f+1}], v{vA+t} offset:{sx*4096}", ("V", sx, t, 0))
            a.ds(f"ds_read_b64_tr_b16 v[{f+2}:{f+3}], v{vA+t} offset:{sx*4096+1024}", ("V", sx, t, 1))
        setprio(PQ)
        for j in range(8):
            a.need(("K", j))
            f = vF + (j & 3)*4
            cop = f"v[{vS}:{vS+15}]" if j else ("0" if first else f"v[{vNM}:{vNM+15}]")
            a.e(f"v_mfma_f32_32x32x16_bf16 v[{vS}:{vS+15}], v[{f}:{f+3}], v[{vQ+4*j}:{vQ+4*j+3}], {cop}")
            if j < 4: rdK(j+4)
            if j == 3:
                vadd(vA, reg, 0, vA0V)
                a.e(f"v_xor_b32 v{vA+1}, 64, v{vA}")
                a.e(f"v_xor_b32 v{vA+2}, 128, v{vA}")
                a.e(f"v_xor_b32 v{vA+3}, 192, v{vA}")
            if j >= 4: rdV(0, j - 4)
        setprio(PS)
        a.nop(10)
        a.e(f"v_max3_f32 v{vMX}, {S(0)}, {S(1)}, {S(2)}")
        a.e(f"v_max3_f32 v{vMX2}, {S(3)}, {S(4)}, {S(5)}")
        a.e(f"v_max3_f32 v{vMX}, v{vMX}, {S(6)}, {S(7)}")
        a.e(f"v_max3_f32 v{vMX2}, v{vMX2}, {S(8)}, {S(9)}")
        a.e(f"v_max3_f32 v{vMX}, v{vMX}, {S(10)}, {S(11)}")
        a.e(f"v_max3_f32 v{vMX2}, v{vMX2}, {S(12)}, {S(13)}")
        a.e(f"v_max3_f32 v{vMX}, v{vMX}, {S(14)}, {S(15)}")
        a.e(f"v_max_f32 v{vMX}, v{vMX}, v{vMX2}")
        if first:
            a.e(f"v_mov_b32 v{vMX2}, v{vMX}")
            a.nop(2)
            a.e(f"v_permlane32_swap_b32 v{vMX}, v{vMX2}")
            a.nop(1)
            a.e(f"v_max_f32 v{vMX}, v{vMX}, v{vMX2}")
            for r in range(16):
                a.e(f"v_sub_f32 {S(r)}, {S(r)}, v{vMX}")
            for r in range(16):
                a.e(f"v_sub_f32 v{vNM+r}, 0, v{vMX}")
            a.e(f"v_mov_b32 v{vL0}, 0")
            a.e(f"v_mov_b32 v{vL1}, 0")
        else:
            a.e(f"v_cmp_lt_f32 vcc, 0x41200000, v{vMX}")
            a.e(f"s_cbranch_vccnz {name}_rare_{tag}")
            a.lab(f"{name}_back_{tag}")
        ex = lambda r: a.e(f"v_exp_f32 {S(r)}, {S(r)}")
        ad = lambda r: a.e(f"v_add_f32 v{vL0 + (r&1)}, v{vL0 + (r&1)}, {S(r)}")
        pk = lambda d: a.e(f"v_cvt_pk_bf16_f32 {S(d)}, {S(2*d)}, {S(2*d+1)}")
        ex(0)
        for r in range(1, 8): ex(r); ad(r-1)
        pk(0); ad(7); pk(1); pk(2); pk(3)
        setprio(PP)
        a.nop(2)
        def pv(sx, t):
            a.need(("V", sx, t, 0), ("V", sx, t, 1))
            f = vF + t*4
            cop = "0" if (first and sx == 0) else f"v[{vO+16*t}:{vO+16*t+15}]"
            a.e(f"v_mfma_f32_32x32x16_bf16 v[{vO+16*t}:{vO+16*t+15}], v[{f}:{f+3}], v[{vS+4*sx}:{vS+4*sx+3}], {cop}")
        for t in range(4):
            pv(0, t); rdV(1, t)
            if t: ad(7 + 2*t)
            ex(8 + 2*t); ex(9 + 2*t); ad(8 + 2*t)
            if t: pk(3 + t)
        ad(15); pk(7)
        if regn is not None: k_addr(regn)
        else: a.nop(2)
        for t in range(4):
            pv(1, t)
            if regn is not None: rdK(t)
        if regn is None: a.drain()

    def rare(tag):
        a.lab(f"{name}_rare_{tag}")
        a.c("raise the subtracted max to the running row max and rescale what was accumulated")
        a.e(f"v_mov_b32 v{vMX2}, v{vMX}")
        a.nop(2)
        a.e(f"v_permlane32_swap_b32 v{vMX}, v{vMX2}")
        a.nop(1)
        a.e(f"v_max_f32 v{vMX}, v{vMX}, v{vMX2}")
        a.e(f"v_max_f32 v{vMX}, 0, v{vMX}")
        a.e(f"v_sub_f32 v{vMX2}, 0, v{vMX}")
        a.e(f"v_exp_f32 v{vMX2}, v{vMX2}")
        for r in range(16):
            a.e(f"v_sub_f32 v{vS+r}, v{vS+r}, v{vMX}")
        for r in range(16):
            a.e(f"v_sub_f32 v{vNM+r}, v{vNM+r}, v{vMX}")
        for r in range(64):
            a.e(f"v_mul_f32 v{vO+r}, v{vO+r}, v{vMX2}")
        a.e(f"v_mul_f32 v{vL0}, v{vL0}, v{vMX2}")
        a.e(f"v_mul_f32 v{vL1}, v{vL1}, v{vMX2}")
        a.e(f"s_branch {name}_back_{tag}")

    wait_for(("kv", 0))
    a.e("s_barrier")
    if F0: stamp_nw(a, 11)
    k_addr(0)
    for j in range(4): rdK(j)
    wait_for(("kv", 1))
    a.e("s_barrier")
    if F0: stamp_nw(a, 12)
    att_body("t0", True, 0, R)
    if F0: stamp_nw(a, 13)
    if LAT == 4 and T4LATE:
        lo4_block(lambda: kv_pieces(4*R, 4*8192, [0, 1, 2, 3]))
        push(("kv", 4), [8, 8, 0, 0, 0])
    if F0: stamp_nw(a, 14)
    if C.PROF: a.e("s_waitcnt lgkmcnt(0)")
    stamp(a, 5)
    if FUSE and OPT.get("WTOUCH", True):
        a.c("pull this workgroup's 1/32 share of the quarter's Wo rows into L2 (one dword per 128-byte line)")
        def touch():
            a.e(f"s_lshr_b32 s{sT0}, s{sH0}, 3")
            a.e(f"s_lshl_b32 s{sT0}, s{sT0}, 20")
            a.e(f"s_lshl_b32 s{sT1}, s{sB}, 2")
            a.e(f"s_add_u32 s{sT1}, s{sT1}, s{sHpl}")
            a.e(f"s_lshl_b32 s{sT1}, s{sT1}, 15")
            a.e(f"s_add_u32 s{sT0}, s{sT0}, s{sT1}")
            a.e(f"s_lshl_b32 s{sT1}, s{sHS}, 14")
            a.e(f"s_add_u32 s{sT0}, s{sT0}, s{sT1}")
            a.e(f"s_lshl_b32 s{sT1}, s{sHpl}, 8")
            a.e(f"s_sub_u32 s{sT0}, s{sT0}, s{sT1}")
            a.e(f"v_lshlrev_b32 v{vT0}, 7, v{L}")
            for m in range(2):
                a.e(f"s_add_u32 s{sT1}, s{sT0}, {m*8192}")
                a.e(f"buffer_load_dword v{163+m}, v{vT0}, s[{sX}:{sX+3}], s{sT1} offen {OPT.get('WTFL', '')}")
        if not OPT.get("WTAT"): cls_block(2, touch)
    if FUSE:
        def init_check():
            a.c("request the group's start counter now; the loader waves look at it before they read any hand-off word")
            a.e(f"s_lshl_b32 s{sT0}, s{sBeta}, 3")
            a.e(f"s_add_u32 s{sT0}, s{sT0}, s{sB}")
            a.e(f"s_lshl_b32 s{sT0}, s{sT0}, 2")
            if OPT.get("DBGT"): a.e(f"s_add_u32 s{sT0}, s{sT0}, 128")
            a.e(f"v_mov_b32 v{vT0}, s{sT0}")
            a.e(f"buffer_load_dword v166, v{vT0}, s[{sDbg}:{sDbg+3}], 0 offen sc1")
        cls_block(4, init_check)
    entry_state = list(a.lg)
    a.e(f"s_mov_b32 s{sCnt}, 1")
    a.e(f"s_add_u32 s{sTile}, s{sRot}, {LAT*8192}")
    a.e(f"s_and_b32 s{sTile}, s{sTile}, 0x1ffff")
    a.e(f"s_mov_b32 s{sRegD}, {(LAT % 5)*R}")
    a.e(f"s_mov_b32 s{sReg}, 0")
    a.e(f"s_mov_b32 s{sRegN}, {R}")
    a.e(f"s_cmp_lt_u32 s{sW}, 4")
    a.e(f"s_cbranch_scc0 {name}_aloop1")
    for var in range(2):
        a.lg = list(entry_state)
        a.lab(f"{name}_aloop{var}")
        if var == 0:
            a.e(f"s_cmp_le_u32 s{sCnt}, {16 - LAT}")
            a.e(f"s_cbranch_scc0 {name}_atailw")
            a.e(f"s_waitcnt vmcnt({8*(LAT-2)})")
            a.lab(f"{name}_atailb")
        regs = (sReg, sRegN) + ((sRegD,) if var == 0 else ())
        def rot():
            for sr in regs:
                a.e(f"s_add_u32 s{sr}, s{sr}, {R}")
                a.e(f"s_cmp_eq_u32 s{sr}, {5*R}")
                a.e(f"s_cselect_b32 s{sr}, 0, s{sr}")
        if var == 0 and OPT.get("ROTPRE", True): rot()
        a.e("s_barrier")
        if not (var == 0 and OPT.get("ROTPRE", True)): rot()
        att_body(f"lp{var}", False, ("s", sReg), ("s", sRegN))
        if var == 0:
            a.e(f"s_add_u32 s{sTile}, s{sTile}, 8192")
            a.e(f"s_and_b32 s{sTile}, s{sTile}, 0x1ffff")
            a.e(f"s_cmp_le_u32 s{sCnt}, {15 - LAT}")
            a.e(f"s_cbranch_scc0 {name}_anofill")
            if not OPT.get("ANODMA"): kv_pieces(("s", sRegD), ("s", sTile), [0, 1, 2, 3])
            if FUSE:
                a.e(f"s_branch {name}_afilled")
                a.lab(f"{name}_anofill")
                a.e(f"s_cmp_eq_u32 s{sCnt}, 14")
                a.e(f"s_cbranch_scc1 {name}_afilled")
                a.e(f"s_branch {name}_awo")
                a.lab(f"{name}_afilled")
            else:
                a.lab(f"{name}_anofill")
        if var == 1 and FUSE and OPT.get("WTAT"):
            a.e(f"s_cmp_eq_u32 s{sCnt}, {OPT['WTAT']}")
            a.e(f"s_cbranch_scc1 {name}_wtl")
            a.lab(f"{name}_wtb")
        if var == 1 and PACE:
            a.e(f"s_cmp_eq_u32 s{sW}, 4")
            a.e(f"s_cbranch_scc1 {name}_pace")
            a.lab(f"{name}_paceb")
        assert a.lg == entry_state
        a.e(f"s_add_u32 s{sCnt}, s{sCnt}, 1")
        a.e(f"s_cmp_lt_u32 s{sCnt}, 15")
        a.e(f"s_cbranch_scc1 {name}_aloop{var}")
        if var == 0: a.e(f"s_branch {name}_alast")
    a.lab(f"{name}_alast")
    a.e("s_barrier")
    att_body("t15", False, (15 % 5)*R, None)
    if F0: stamp_nw(a, 15)
    stamp(a, 6)
    a.e(f"v_add_f32 v{vL0}, v{vL0}, v{vL1}")
    a.nop(1)
    a.e(f"v_mov_b32 v{vL1}, v{vL0}")
    a.nop(2)
    a.e(f"v_permlane32_swap_b32 v{vL0}, v{vL1}")
    a.nop(1)
    a.e(f"v_add_f32 v{vL0}, v{vL0}, v{vL1}")
    a.nop(1)
    a.e(f"v_rcp_f32 v{vL0}, v{vL0}")
    if OPT.get("FINEE"): stamp_nw(a, 10)
    a.nop(12)
    a.e(f"s_lshl_b32 s{sT0}, s{sQB}, 18")
    a.e(f"s_add_u32 s{sT1}, s{sH0}, s{sHS}")
    a.e(f"s_lshl_b32 s{sT1}, s{sT1}, 13")
    a.e(f"s_add_u32 s{sT0}, s{sT0}, s{sT1}")
    if FUSE:
        a.e(f"s_mul_i32 s{sT2}, s{sHS}, 10240")
        a.e(f"s_lshl_b32 s{sT3}, s{sQB}, 11")
        a.e(f"s_add_u32 s{sT2}, s{sT2}, s{sT3}")
        a.e(f"s_add_u32 s{sT2}, s{sT2}, {OSLOT0}")
        a.e(f"v_add_u32 v{vT0}, s{sT2}, v{vOst}")
    EPI = OPT.get("EPI", "pk")
    def scale(fr):
        if EPI == "pk":
            for r in range(4):
                q_ = vO + 8*fr + 2*r
                a.e(f"v_pk_mul_f32 v[{q_}:{q_+1}], v[{q_}:{q_+1}], v[{vL0}:{vL0+1}] op_sel_hi:[1,0]")
        else:
            for r in range(8):
                a.e(f"v_mul_f32 v{vO+8*fr+r}, v{vO+8*fr+r}, v{vL0}")
    if EPI == "pipe": scale(0)
    for fr in range(8):
        if EPI == "pipe":
            if fr < 7: scale(fr + 1)
        else: scale(fr)
        for r in range(4):
            a.e(f"v_cvt_pk_bf16_f32 v{vQ+4*fr+r}, v{vO+8*fr+2*r}, v{vO+8*fr+2*r+1}")
        a.e(f"s_add_u32 s{sT1}, s{sT0}, {fr*1024}")
        a.e(f"buffer_store_dwordx4 v[{vQ+4*fr}:{vQ+4*fr+3}], v{vOst}, s[{sO}:{sO+3}], s{sT1} offen{(' ' + OPT.get('OST', 'sc1')) if FUSE else ''}")
        if FUSE and not OPT.get("STFIRST", True):
            a.e(f"ds_write_b128 v{vT0}, v[{vQ+4*fr}:{vQ+4*fr+3}] offset:{(fr >> 1)*20480 + (fr & 1)*1024}")
    if FUSE and OPT.get("STFIRST", True):
        for fr in range(8):
            a.e(f"ds_write_b128 v{vT0}, v[{vQ+4*fr}:{vQ+4*fr+3}] offset:{(fr >> 1)*20480 + (fr & 1)*1024}")
    if OPT.get("FINEE"): stamp_nw(a, 11)
    if FUSE:
        import tail
        tail.gen_tail(a, name, locals())
    else:
        a.e("s_waitcnt vmcnt(0)")
    stamp(a, 7); stamp_rt(a, 8)
    if OPT.get("DBGT") and C.PROF:
        a.e(f"s_cmp_eq_u32 s{sW}, 8")
        a.e(f"s_cbranch_scc0 {name}_nodbgt")
        a.e("s_mov_b64 exec, 1")
        for j, i in enumerate((3, 4, 5, 6, 10, 11, 12, 13, 14, 15, 7)):
            a.e(f"s_sub_u32 s{sT0}, s{64+2*i}, s66")
            a.e(f"s_lshr_b32 s{sT0}, s{sT0}, 4")
            a.e(f"v_mov_b32 v2, s{sT0}")
            a.e(f"v_mov_b32 v3, {4*j}")
            a.e(f"buffer_atomic_umax v2, v3, s[{sDbg}:{sDbg+3}], 0 offen sc1")
        a.e(f"s_not_b32 s{sT0}, s64")
        a.e(f"v_mov_b32 v2, s{sT0}")
        a.e(f"v_mov_b32 v3, 56")
        a.e(f"buffer_atomic_umax v2, v3, s[{sDbg}:{sDbg+3}], 0 offen sc1")
        a.e(f"v_mov_b32 v2, s80")
        a.e(f"v_mov_b32 v3, 60")
        a.e(f"buffer_atomic_umax v2, v3, s[{sDbg}:{sDbg+3}], 0 offen sc1")
        a.e("s_cmp_eq_u32 s2, 0")
        a.e(f"s_cbranch_scc0 {name}_nodbg0")
        a.e(f"s_sub_u32 s{sT0}, s80, s64")
        a.e(f"v_mov_b32 v2, s{sT0}")
        a.e(f"v_mov_b32 v3, 44")
        a.e(f"buffer_store_dword v2, v3, s[{sDbg}:{sDbg+3}], 0 offen sc1")
        a.e(f"s_sub_u32 s{sT0}, s78, s66")
        a.e(f"s_lshr_b32 s{sT0}, s{sT0}, 4")
        a.e(f"v_mov_b32 v2, s{sT0}")
        a.e(f"v_mov_b32 v3, 48")
        a.e(f"buffer_store_dword v2, v3, s[{sDbg}:{sDbg+3}], 0 offen sc1")
        a.lab(f"{name}_nodbg0")
        a.e("s_waitcnt vmcnt(0)")
        a.e("s_mov_b64 exec, -1")
        a.lab(f"{name}_nodbgt")
    stamp_store(a, sWS, sW, 16, 0, vT0)
    a.e(f"s_branch {name}_end")
    WNT = "nt " if OPT["WNT"] else ""
    def wo_stage_c0(sg):
        a.e(f"s_lshl_b32 s{sT0}, s{sH0}, 17")
        a.e(f"s_lshl_b32 s{sT1}, s{sL1024}, 2")
        a.e(f"s_add_u32 s{sT0}, s{sT0}, s{sT1}")
        for kh in (0, 1):
            for nn in (0, 4):
                a.e(f"s_add_u32 m0, s{sL1024}, {WSLOT[sg] + kh*8192 + nn*1024}")
                a.e(f"s_add_u32 s{sT3}, s{sT0}, {kh*131072 + sg*32768 + nn*4096}")
                a.e(f"buffer_load_dwordx4 v{vDW}, s[{sX}:{sX+3}], s{sT3} offen {WNT}lds")
    if FUSE:
        a.lab(f"{name}_awo")
        if LAT == 4:
            a.e(f"s_cmp_eq_u32 s{sCnt}, 12")
            a.e(f"s_cbranch_scc0 {name}_awo13")
            wo_stage_c0(0); wo_stage_c0(1)
            a.e(f"s_branch {name}_afilled")
            a.lab(f"{name}_awo13")
            wo_stage_c0(2)
        else:
            assert LAT == 3
            wo_stage_c0(0); wo_stage_c0(1); wo_stage_c0(2)
        a.e(f"s_branch {name}_afilled")
    if FUSE and OPT.get("WTAT"):
        a.lab(f"{name}_wtl")
        cls_block(2, touch)
        a.e(f"s_branch {name}_wtb")
    if PACE:
        CP, D = PACE
        a.lab(f"{name}_pace")
        a.c("keep the workgroups that share the memory system in step: publish the step count, wait if a partner on another XCD lags")
        a.e(f"s_add_u32 s{sT0}, s{sCnt}, 1")
        a.e(f"v_mov_b32 v166, s{sT0}")
        a.e(f"s_lshl_b32 s{sT1}, s2, 8")
        a.e(f"s_add_u32 s{sT1}, s{sT1}, 64")
        a.e("s_mov_b64 exec, 1")
        a.e(f"buffer_store_dword v166, off, s[{sWQ}:{sWQ+3}], s{sT1} sc1")
        a.e("s_mov_b64 exec, 0xff")
        for c in CP:
            lab = newlab("pc")
            a.e(f"s_cmp_eq_u32 s{sCnt}, {c - 3}")
            a.e(f"s_cbranch_scc0 {lab}")
            a.e(f"buffer_load_dword v167, v165, s[{sWQ}:{sWQ+3}], 0 offen sc1")
            a.e(f"s_branch {name}_pacex")
            a.lab(lab)
            lab = newlab("pc")
            a.e(f"s_cmp_eq_u32 s{sCnt}, {c}")
            a.e(f"s_cbranch_scc0 {lab}")
            a.e("s_waitcnt vmcnt(3)")
            a.e(f"v_cmp_gt_u32 vcc, {max(0, c - 2 - D)}, v167")
            a.e("s_nop 4")
            a.e(f"s_cbranch_vccz {name}_pacex")
            a.e(f"s_mov_b32 s{sT2}, {OPT['SPIN']}")
            l2 = newlab("pw")
            a.lab(l2)
            a.e(f"buffer_load_dword v167, v165, s[{sWQ}:{sWQ+3}], 0 offen sc1")
            a.e("s_waitcnt vmcnt(0)")
            a.e(f"v_cmp_gt_u32 vcc, {max(0, c - D)}, v167")
            a.e("s_nop 4")
            a.e(f"s_cbranch_vccz {name}_pacex")
            a.e(f"s_sub_u32 s{sT2}, s{sT2}, 1")
            a.e(f"s_cmp_lg_u32 s{sT2}, 0")
            a.e(f"s_cbranch_scc1 {l2}")
            a.e(f"s_branch {name}_pacex")
            a.lab(lab)
        a.lab(f"{name}_pacex")
        a.e("s_mov_b64 exec, -1")
        a.e(f"s_branch {name}_paceb")
    a.lab(f"{name}_atailw")
    for k in range(LAT - 2):
        t = 17 - LAT + k
        if k < LAT - 3:
            lab = newlab("tw")
            a.e(f"s_cmp_eq_u32 s{sCnt}, {t}")
            a.e(f"s_cbranch_scc0 {lab}")
        extra = ({13: 8, 14: 12}[t] if FUSE else 0)
        a.e(f"s_waitcnt vmcnt({8*(15 - (t + 1)) + extra})")
        a.e(f"s_branch {name}_atailb")
        if k < LAT - 3: a.lab(lab)
    for tag in ["lp0", "lp1", "t15"]:
        rare(tag)
    a.lab(f"{name}_end")
    a.e("s_endpgm")
    return a.text(), NV
```

```python
from dsl import *
import common as C
from common import srd, stamp

def gen_tail(a, name, g):
    OPT = g["OPT"] if "OPT" in g else __import__("k1").OPT
    sW, sHS, sQB, sH0, sHpl, sBeta, sB, sWS = g["sW"], g["sHS"], g["sQB"], g["sH0"], g["sHpl"], g["sBeta"], g["sB"], g["sWS"]
    sT0, sT1, sT2, sT3, sCnt, sCls = g["sT0"], g["sT1"], g["sT2"], g["sT3"], g["sCnt"], g["sCls"]
    sWo, sO, sDbg, sPOut = g["sX"], g["sO"], g["sDbg"], g["sPOut"]
    sP, sOut, sF = g["sWQ"], g["sK"], g["sV"]
    sWsl, sOsl, sNT, sKH = g["sReg"], g["sRegD"], g["sRegN"], g["sTile"]
    sIss, sHb, sWd, sOd = g["sBufA"], g["sBufB"], g["sKVs"], g["sKVl"]
    sSpin = g["sHs8k"]
    sWl, sWr = g["sHsX"], g["sHsXl"]
    sKq, sOwn = g["sHsW"], g["sL1024"]
    vOst, vDW, vA0V, vT0, vT1, L = g["vOst"], g["vDW"], g["vA0V"], g["vT0"], g["vT1"], g["L"]
    WSLOT, OSLOT0, WS_F = g["WSLOT"], g["OSLOT0"], g["WS_F"]
    WNT = "nt " if OPT["WNT"] else ""
    OFL = OPT.get("OFL", "sc1 ")
    SPIN = OPT["SPIN"]
    vAcc, vB, vAF, vAW, vBW, vA0W, vPo, vPr = 0, 80, 120, 128, 129, 130, 131, 132
    FINEO = OPT.get("FINEO")
    def fs(i, at=9):
        if not (FINEO and C.PROF): return
        lab = f"{name}_fs{i}_{len(a.L)}"
        a.e(f"s_cmp_eq_u32 s{FINEO_CNT[0]}, {at}")
        a.e(f"s_cbranch_scc0 {lab}")
        a.e(f"s_memtime s[{64+2*i}:{65+2*i}]")
        a.lab(lab)
    FINEO_CNT = [sCnt]
    real_stamp = C.stamp_nw
    def fe(i):
        if OPT.get("FINEE"): real_stamp(a, i)
    stamp_nw = (lambda a, i: None) if (FINEO or OPT.get("FINE0") or OPT.get("FINEE") or OPT.get("FINEQ2")) else C.stamp_nw
    nbar = [0]
    def barrier(): a.e("s_barrier")

    a.e(f"s_mov_b32 s{sT0}, {WS_F}")
    srd(a, sF, sWS, 65536, sT0)
    a.e(f"s_lshl_b32 s{sT0}, s{sBeta}, 3")
    a.e(f"s_add_u32 s{sT0}, s{sT0}, s{sB}")
    a.e(f"s_lshl_b32 s{sT0}, s{sT0}, 2")
    a.e(f"s_add_u32 s{sT0}, s{sT0}, s{sHpl}")
    a.e(f"s_mul_i32 s{sT0}, s{sT0}, 40960")
    a.e(f"s_add_u32 s{sT0}, s{sT0}, {C.WS_P}")
    srd(a, sP, sWS, 3*64*40960 + 40960, sT0)
    srd(a, sOut, sPOut, 8*160*1024*2)
    a.e(f"s_cmp_ge_u32 s{sW}, 8")
    a.e(f"s_cbranch_scc1 {name}_oload")

    a.e(f"s_and_b32 s{sNT}, s{sW}, 3")
    a.e(f"s_lshr_b32 s{sKH}, s{sW}, 2")
    a.e(f"s_lshl_b32 s{sT0}, s{sHS}, 13")
    a.e(f"s_add_u32 s{sT0}, s{sT0}, 16384")
    a.e(f"v_subrev_u32 v{vA0W}, s{sT0}, v{vA0V}")
    a.e(f"s_lshl_b32 s{sT0}, s{sNT}, 6")
    a.e(f"v_xor_b32 v{vA0W}, s{sT0}, v{vA0W}")
    a.e(f"s_lshl_b32 s{sT0}, s{sHpl}, 1")
    a.e(f"s_sub_u32 s{sHb}, s{sH0}, s{sT0}")
    a.e(f"s_add_u32 s{sHb}, s{sHb}, s{sKH}")
    a.e(f"s_lshl_b32 s{sWl}, s{sKH}, 13")
    a.e(f"s_lshl_b32 s{sT0}, s{sNT}, 11")
    a.e(f"s_add_u32 s{sWl}, s{sWl}, s{sT0}")
    a.e(f"s_lshl_b32 s{sWr}, s{sNT}, 13")
    def w_issue():
        a.e(f"s_lshr_b32 s{sT0}, s{sIss}, 2")
        a.e(f"s_add_u32 s{sT0}, s{sT0}, s{sHpl}")
        a.e(f"s_and_b32 s{sT0}, s{sT0}, 3")
        a.e(f"s_lshl_b32 s{sT0}, s{sT0}, 1")
        a.e(f"s_add_u32 s{sT0}, s{sT0}, s{sHb}")
        a.e(f"s_lshl_b32 s{sT0}, s{sT0}, 17")
        a.e(f"s_and_b32 s{sT1}, s{sIss}, 3")
        a.e(f"s_lshl_b32 s{sT1}, s{sT1}, 15")
        a.e(f"s_add_u32 s{sT0}, s{sT0}, s{sT1}")
        a.e(f"s_add_u32 s{sT0}, s{sT0}, s{sWr}")
        a.e(f"s_add_u32 s{sT1}, s{sWd}, s{sWl}")
        for m in range(2):
            a.e(f"s_add_u32 m0, s{sT1}, {m*1024}")
            a.e(f"s_add_u32 s{sT3}, s{sT0}, {m*4096}")
            if not OPT.get("XNOW"): a.e(f"buffer_load_dwordx4 v{vDW}, s[{sWo}:{sWo+3}], s{sT3} offen {WNT}lds")
    def w_next():
        a.e(f"s_add_u32 s{sIss}, s{sIss}, 1")
        rot_w(sWd)
    def rot_w(r):
        a.e(f"s_cmp_eq_u32 s{r}, 0")
        a.e(f"s_cselect_b32 s{sT0}, 16384, s{r}")
        a.e(f"s_add_u32 s{sT0}, s{sT0}, 16384")
        a.e(f"s_cmp_eq_u32 s{sT0}, 81920")
        a.e(f"s_cselect_b32 s{r}, 0, s{sT0}")
    def next_slots():
        a.e(f"s_add_u32 s{sOsl}, s{sOsl}, 20480")
        a.e(f"s_cmp_eq_u32 s{sOsl}, {OSLOT0 + 4*20480}")
        a.e(f"s_cselect_b32 s{sOsl}, {OSLOT0}, s{sOsl}")
        rot_w(sWsl)
    def addr():
        a.e(f"v_add_u32 v{vAW}, s{sWsl}, v{vA0W}")
        a.e(f"v_add_u32 v{vBW}, s{sOsl}, v{vOst}")
    a.e("s_waitcnt vmcnt(8) lgkmcnt(0)")
    fe(12)
    barrier()
    fe(13)
    stamp_nw(a, 10)
    a.e(f"s_mov_b32 s{sWsl}, {WSLOT[0]}")
    a.e(f"s_mov_b32 s{sOsl}, {OSLOT0}")
    a.e(f"s_mov_b32 s{sIss}, 3")
    a.e(f"s_mov_b32 s{sWd}, {WSLOT[3]}")
    a.e(f"s_cmp_eq_u32 s{sKH}, 0")
    a.e(f"s_cbranch_scc0 {name}_og1")
    for gq, qbs in ((0, (3, 4)), (1, (0, 1, 2))):
        nq_ = len(qbs)
        SETSZ = 4 + 4*nq_
        vSet = 16*nq_
        a.lab(f"{name}_og{gq}")
        def reads(ks):
            kh, sx = ks >> 1, ks & 1
            d = vSet + ks*SETSZ
            R = [(f"ds_read_b64_tr_b16 v[{d}:{d+1}], v{vAW} offset:{kh*8192 + sx*4096}", ("A", ks, 0)),
                 (f"ds_read_b64_tr_b16 v[{d+2}:{d+3}], v{vAW} offset:{kh*8192 + sx*4096 + 1024}", ("A", ks, 1))]
            for i, qb in enumerate(qbs):
                b = d + 4 + 4*i
                R.append((f"ds_read_b128 v[{b}:{b+3}], v{vBW} offset:{kh*10240 + (qb*2+sx)*1024}", ("B", ks, i)))
            return R
        def groups(order, rd, zero=(), need=()):
            rd = list(rd)
            issued = {}
            slot = 0
            for gi, ks in enumerate(order):
                d = vSet + ks*SETSZ
                for i in range(nq_):
                    if ks in need: a.need(("A", ks, 0), ("A", ks, 1), ("B", ks, i))
                    b = d + 4 + 4*i
                    cop = "0" if ks in zero else f"v[{16*i}:{16*i+15}]"
                    a.e(f"v_mfma_f32_32x32x16_bf16 v[{16*i}:{16*i+15}], v[{d}:{d+3}], v[{b}:{b+3}], {cop}")
                    slot += 1
                    last_of_group = (i == nq_ - 1)
                    n = 0
                    while rd and n < RPG:
                        eg, r_ = rd[0]
                        if not (gi > eg or (gi == eg and last_of_group) or eg < 0): break
                        if len(a.lg) >= 14:
                            old_ = [t_ for t_ in a.lg if slot - issued.get(t_, -99) >= OPT.get("RAGE", 3)]
                            if not (OPT.get("RETIRE", True) and old_): break
                            a.need(*old_)
                        a.ds(*r_); issued[r_[1]] = slot; rd.pop(0); n += 1
            assert not rd, rd
        RPG = OPT.get('RPG', (3, 3))[gq]
        addr()
        if gq == 1: w_issue(); w_next()
        for r_ in reads(0) + reads(1): a.ds(*r_)
        groups([0, 1], [(-1, r_) for r_ in reads(2) + reads(3)], zero=(0,), need=(0, 1))
        next_slots(); addr()
        a.drain()
        if gq == 0: w_issue(); w_next()
        a.e(f"s_mov_b32 s{sCnt}, 1")
        fe(14)
        a.e("s_waitcnt vmcnt(2)")
        fe(15)
        def maybe_issue():
            lab = f"{name}_onow{gq}"
            a.e(f"s_cmp_lt_u32 s{sIss}, 16")
            a.e(f"s_cbranch_scc0 {lab}")
            w_issue(); w_next()
            a.lab(lab)
        def body():
            groups([2, 3, 0, 1], [(-1, r_) for r_ in reads(0) + reads(1)] + [(0, r_) for r_ in reads(2)] + [(1, r_) for r_ in reads(3)], need=(0, 1))
        def wait_w(tag):
            a.e(f"s_cmp_lt_u32 s{sCnt}, 13")
            a.e(f"s_cbranch_scc0 {name}_owt{gq}")
            a.e("s_waitcnt vmcnt(4)")
            a.lab(f"{name}_ogo{gq}")
        if gq == 0:
            a.e(f"s_branch {name}_obar0")
            a.lab(f"{name}_oloop0")
            a.lab(f"{name}_obar0")
            barrier()
            fs(10); fs(11); fs(12, 10)
            body()
            fs(13)
            next_slots(); addr()
            a.drain()
            maybe_issue()
            fs(14)
            wait_w("a")
            a.e(f"s_add_u32 s{sCnt}, s{sCnt}, 1")
            a.e(f"s_cmp_lt_u32 s{sCnt}, 16")
            a.e(f"s_cbranch_scc1 {name}_oloop0")
        else:
            barrier()
            a.lab(f"{name}_oloop1")
            fs(10); fs(12, 10)
            maybe_issue()
            fs(11)
            body()
            fs(13)
            a.drain()
            wait_w("b")
            fs(14)
            a.e(f"s_cmp_eq_u32 s{sCnt}, 15")
            a.e(f"s_cbranch_scc1 {name}_oend1")
            barrier()
            next_slots(); addr()
            a.e(f"s_add_u32 s{sCnt}, s{sCnt}, 1")
            a.e(f"s_branch {name}_oloop1")
            a.lab(f"{name}_oend1")
        groups([2, 3], [])
        stamp_nw(a, 13)
        a.e(f"s_lshr_b32 s{sKq}, s{sH0}, 3")
        a.e(f"s_mul_i32 s{sT1}, s{sKq}, {64*40960}")
        a.e(f"s_mul_i32 s{sT0}, s{sNT}, 10240")
        a.e(f"s_add_u32 s{sT1}, s{sT1}, s{sT0}")
        a.e(f"s_mov_b32 s{sOwn}, 7")
        a.nop(8)
        for i, qb in enumerate(qbs):
            lab = f"{name}_pown{gq}_{i}"
            if qb < 4:
                a.e(f"s_add_u32 s{sT0}, s{sNT}, {qb}")
                a.e(f"s_and_b32 s{sT0}, s{sT0}, 3")
                a.e(f"s_cmp_eq_u32 s{sT0}, s{sKq}")
            else:
                a.e(f"s_cmp_eq_u32 s{sNT}, s{sKq}")
            a.e(f"s_cselect_b32 s{sOwn}, {i}, s{sOwn}")
            a.e(f"s_cbranch_scc1 {lab}")
            t = 64 + 8*i
            for r in range(8):
                a.e(f"v_cvt_pk_bf16_f32 v{t+r}, v{16*i+2*r}, v{16*i+2*r+1}")
            for u in range(2):
                a.e(f"s_add_u32 s{sT2}, s{sT1}, {qb*2048 + u*1024}")
                a.e(f"buffer_store_dwordx4 v[{t+4*u}:{t+4*u+3}], v{vOst}, s[{sP}:{sP+3}], s{sT2} offen {OPT.get('PST', 'sc1')}")
            a.lab(lab)
        a.e(f"s_mov_b32 s{sCnt}, {1 - gq}")
        a.e(f"s_branch {name}_pdone")
        a.lab(f"{name}_owt{gq}")
        a.e("s_waitcnt vmcnt(0)")
        a.e(f"s_branch {name}_ogo{gq}")

    a.lab(f"{name}_oload")
    a.e(f"s_sub_u32 s{sKH}, s{sW}, 8")
    a.e(f"s_lshl_b32 s{sT0}, s{sHpl}, 1")
    a.e(f"s_sub_u32 s{sHb}, s{sH0}, s{sT0}")
    a.e(f"s_add_u32 s{sHb}, s{sHb}, s{sKH}")
    a.e("s_waitcnt lgkmcnt(0)")
    fe(12)
    barrier()
    fe(13)
    stamp_nw(a, 10)
    fe(14)
    a.e("s_waitcnt vmcnt(0)")
    fe(15)
    barrier()
    stamp_nw(a, 11)
    a.e(f"s_cmp_eq_u32 s{sW}, 8")
    a.e(f"s_cbranch_scc0 {name}_nopub")
    a.e(f"s_lshl_b32 s{sT0}, s2, 8")
    a.e(f"v_mov_b32 v{vT0}, s{sT0}")
    a.e(f"v_mov_b32 v{vT1}, 1")
    a.e("s_mov_b64 exec, 1")
    a.e(f"buffer_store_dword v{vT1}, v{vT0}, s[{sF}:{sF+3}], 0 offen sc1")
    a.e("s_mov_b64 exec, -1")
    a.lab(f"{name}_nopub")
    def poll(tag, srdreg, voff, nl, want):
        NP = OPT.get("NPOLL", 1)
        a.e(f"s_mov_b32 s{sSpin}, {SPIN}")
        a.e(f"s_mov_b64 exec, {(1 << nl) - 1}")
        for i in range(NP - 1):
            a.e(f"buffer_load_dword v{vPr+i}, v{voff}, s[{srdreg}:{srdreg+3}], 0 offen sc1")
            a.e("s_sleep 4")
        a.lab(f"{name}_poll{tag}")
        for i in range(NP):
            a.e(f"buffer_load_dword v{vPr + (i + NP - 1) % NP}, v{voff}, s[{srdreg}:{srdreg+3}], 0 offen sc1")
            a.e(f"s_waitcnt vmcnt({NP - 1})")
            a.e(f"v_cmp_ne_u32 vcc, {want}, v{vPr+i}")
            a.e("s_nop 4")
            a.e(f"s_cbranch_vccz {name}_pollok{tag}")
        a.e(f"s_sub_u32 s{sSpin}, s{sSpin}, 1")
        a.e(f"s_cmp_lg_u32 s{sSpin}, 0")
        a.e(f"s_cbranch_scc1 {name}_poll{tag}")
        a.lab(f"{name}_pollok{tag}")
        a.e("s_waitcnt vmcnt(0)")
        a.e("s_mov_b64 exec, -1")
    a.e(f"v_cmp_gt_u32 vcc, 16, v166")
    a.e("s_nop 4")
    a.e(f"s_cbranch_vccz {name}_initok")
    a.e(f"s_lshl_b32 s{sT0}, s{sBeta}, 3")
    a.e(f"s_add_u32 s{sT0}, s{sT0}, s{sB}")
    a.e(f"s_lshl_b32 s{sT0}, s{sT0}, 2")
    if OPT.get("DBGT"): a.e(f"s_add_u32 s{sT0}, s{sT0}, 128")
    a.e(f"v_mov_b32 v{vPo}, s{sT0}")
    a.e(f"s_mov_b32 s{sSpin}, {SPIN}")
    a.lab(f"{name}_polli")
    a.e(f"buffer_load_dword v166, v{vPo}, s[{sDbg}:{sDbg+3}], 0 offen sc1")
    a.e("s_waitcnt vmcnt(0)")
    a.e(f"v_cmp_gt_u32 vcc, 16, v166")
    a.e("s_nop 4")
    a.e(f"s_cbranch_vccz {name}_initok")
    a.e(f"s_sub_u32 s{sSpin}, s{sSpin}, 1")
    a.e(f"s_cmp_lg_u32 s{sSpin}, 0")
    a.e(f"s_cbranch_scc1 {name}_polli")
    a.lab(f"{name}_initok")
    a.e(f"s_andn2_b32 s{sT0}, s2, 0x18")
    a.e(f"v_lshlrev_b32 v{vPo}, 3, v{L}")
    a.e(f"v_or_b32 v{vPo}, s{sT0}, v{vPo}")
    a.e(f"v_lshlrev_b32 v{vPo}, 8, v{vPo}")
    poll("o", sF, vPo, 4, 1)
    stamp_nw(a, 12)
    a.e(f"s_mov_b32 s{sIss}, 4")
    a.e(f"s_mov_b32 s{sOd}, {OSLOT0}")
    def issue_stage():
        a.e(f"s_lshr_b32 s{sT0}, s{sIss}, 2")
        if OPT.get("XOWN"): a.e(f"s_mov_b32 s{sT0}, 0")
        a.e(f"s_add_u32 s{sT0}, s{sT0}, s{sHpl}")
        a.e(f"s_and_b32 s{sT0}, s{sT0}, 3")
        a.e(f"s_lshl_b32 s{sT0}, s{sT0}, 1")
        a.e(f"s_add_u32 s{sT2}, s{sT0}, s{sHb}")
        a.e(f"s_and_b32 s{sCnt}, s{sIss}, 3")
        a.e(f"s_lshl_b32 s{sT0}, s{sT2}, 13")
        a.e(f"s_lshl_b32 s{sT1}, s{sCnt}, 11")
        a.e(f"s_add_u32 s{sT0}, s{sT0}, s{sT1}")
        a.e(f"s_mul_i32 s{sT1}, s{sKH}, 10240")
        a.e(f"s_add_u32 s{sT1}, s{sT1}, s{sOd}")
        for qb in range(5):
            for sx in range(2):
                a.e(f"s_add_u32 m0, s{sT1}, {(qb*2+sx)*1024}")
                a.e(f"s_add_u32 s{sT3}, s{sT0}, {qb*262144 + sx*1024}")
                if not OPT.get("XNOO"): a.e(f"buffer_load_dwordx4 v{vOst}, s[{sO}:{sO+3}], s{sT3} offen {OFL}lds")
        a.e(f"s_add_u32 s{sIss}, s{sIss}, 1")
        a.e(f"s_add_u32 s{sOd}, s{sOd}, 20480")
        a.e(f"s_cmp_eq_u32 s{sOd}, {OSLOT0 + 4*20480}")
        a.e(f"s_cselect_b32 s{sOd}, {OSLOT0}, s{sOd}")
    issue_stage()
    barrier()
    issue_stage()
    a.lab(f"{name}_lloop")
    FINEO_CNT[0] = sIss
    fs(10)
    a.e("s_waitcnt vmcnt(20)")
    fs(11)
    barrier()
    fs(12)
    issue_stage_keep = True
    issue_stage()
    if FINEO and C.PROF:
        a.e(f"s_cmp_eq_u32 s{sIss}, 10")
        a.e(f"s_cbranch_scc0 {name}_fsl")
        a.e(f"s_memtime s[{64+2*13}:{65+2*13}]")
        a.lab(f"{name}_fsl")
    a.e(f"s_cmp_lt_u32 s{sIss}, 16")
    a.e(f"s_cbranch_scc1 {name}_lloop")
    a.e("s_waitcnt vmcnt(20)"); barrier()
    a.e("s_waitcnt vmcnt(10)"); barrier()
    a.e("s_waitcnt vmcnt(0)"); barrier()
    stamp_nw(a, 13)

    a.e(f"s_mov_b32 s{sOwn}, 7")
    a.lab(f"{name}_pdone")
    a.e("s_waitcnt vmcnt(0)")
    barrier()
    stamp_nw(a, 14)
    a.e(f"s_cmp_eq_u32 s{sW}, 8")
    a.e(f"s_cbranch_scc0 {name}_nopoll")
    a.e(f"s_lshl_b32 s{sT0}, s2, 8")
    a.e(f"s_add_u32 s{sT0}, s{sT0}, 128")
    a.e(f"v_mov_b32 v{vT0}, s{sT0}")
    a.e(f"v_mov_b32 v{vT1}, 1")
    a.e("s_mov_b64 exec, 1")
    a.e(f"buffer_store_dword v{vT1}, v{vT0}, s[{sF}:{sF+3}], 0 offen sc1")
    a.e("s_mov_b64 exec, -1")
    a.e(f"s_andn2_b32 s{sT0}, s2, 3")
    a.e(f"v_or_b32 v{vPo}, s{sT0}, v{L}")
    a.e(f"v_lshlrev_b32 v{vPo}, 8, v{vPo}")
    a.e(f"v_add_u32 v{vPo}, 128, v{vPo}")
    poll("p", sF, vPo, 4, 1)
    a.lab(f"{name}_nopoll")
    barrier()
    stamp_nw(a, 15)
    a.e(f"s_cmp_eq_u32 s{sOwn}, 7")
    a.e(f"s_cbranch_scc1 {name}_odone")
    a.e(f"s_mul_i32 s{sT0}, s{sCnt}, 3")
    a.e(f"s_add_u32 s{sT0}, s{sT0}, s{sOwn}")
    a.e(f"s_mul_i32 s{sT1}, s{sNT}, 5")
    a.e(f"s_add_u32 s{sT1}, s{sT1}, s{sT0}")
    a.e(f"s_lshl_b32 s{sT1}, s{sT1}, 11")
    for dd in range(1, 4):
        a.e(f"s_add_u32 s{sT2}, s{sKq}, {dd}")
        a.e(f"s_and_b32 s{sT2}, s{sT2}, 3")
        a.e(f"s_mul_i32 s{sT2}, s{sT2}, {64*40960}")
        a.e(f"s_add_u32 s{sT2}, s{sT2}, s{sT1}")
        for u in range(2):
            d = 64 + (dd-1)*8 + 4*u
            a.e(f"s_add_u32 s{sT3}, s{sT2}, {u*1024}")
            a.e(f"buffer_load_dwordx4 v[{d}:{d+3}], v{vOst}, s[{sP}:{sP+3}], s{sT3} offen {OPT.get('PLD', 'sc1')}")
    a.e(f"s_mul_i32 s{sT1}, s{sB}, 160")
    a.e(f"s_lshl_b32 s{sT0}, s{sT0}, 5")
    a.e(f"s_add_u32 s{sT0}, s{sT0}, s{sT1}")
    a.e(f"s_lshl_b32 s{sT0}, s{sT0}, 11")
    a.e(f"s_lshl_b32 s{sT2}, s{sBeta}, 10")
    a.e(f"s_add_u32 s{sT0}, s{sT0}, s{sT2}")
    a.e(f"s_lshl_b32 s{sT2}, s{sHpl}, 8")
    a.e(f"s_add_u32 s{sT0}, s{sT0}, s{sT2}")
    a.e(f"s_lshl_b32 s{sT2}, s{sNT}, 6")
    a.e(f"s_add_u32 s{sT0}, s{sT0}, s{sT2}")
    a.e(f"v_and_b32 v4, 31, v{L}") if False else None
    a.e(f"v_and_b32 v{vAW}, 31, v{L}")
    a.e(f"v_lshlrev_b32 v{vAW}, 11, v{vAW}")
    a.e(f"v_lshrrev_b32 v{vBW}, 5, v{L}")
    a.e(f"v_lshl_add_u32 v{vAW}, v{vBW}, 4, v{vAW}")
    for i in range(3):
        lab = f"{name}_mvown{i}"
        a.e(f"s_cmp_eq_u32 s{sOwn}, {i}")
        a.e(f"s_cbranch_scc0 {lab}")
        for r in range(16): a.e(f"v_mov_b32 v{96+r}, v{16*i+r}")
        a.lab(lab)
    for dd in range(3):
        a.e(f"s_waitcnt vmcnt({4 - 2*dd})")
        for r in range(8):
            src = 64 + dd*8 + r
            a.e(f"v_lshlrev_b32 v112, 16, v{src}")
            a.e(f"v_and_b32 v113, 0xffff0000, v{src}")
            a.e(f"v_add_f32 v{96+2*r}, v{96+2*r}, v112")
            a.e(f"v_add_f32 v{96+2*r+1}, v{96+2*r+1}, v113")
    for r in range(8): a.e(f"v_cvt_pk_bf16_f32 v{64+r}, v{96+2*r}, v{96+2*r+1}")
    a.e(f"buffer_store_dwordx4 v[64:67], v{vAW}, s[{sOut}:{sOut+3}], s{sT0} offen {OPT.get('OUTST', '')}")
    a.e(f"buffer_store_dwordx4 v[68:71], v{vAW}, s[{sOut}:{sOut+3}], s{sT0} offen offset:32 {OPT.get('OUTST', '')}")
    a.lab(f"{name}_odone")
    if C.PROF: a.e("s_waitcnt vmcnt(0)")
```
